```python
import torch

def _softmax(x, axis=-1):
    return torch.softmax(x, dim=axis)

def _gelu(x):
    return torch.nn.functional.gelu(x, approximate='tanh')

def _silu(x):
    return torch.nn.functional.silu(x)

def _sigmoid(x):
    return torch.sigmoid(x)

def _layernorm(x, axis=-1, eps=1e-05):
    m = x.mean(dim=axis, keepdim=True)
    v = x.var(dim=axis, keepdim=True, unbiased=False)
    return (x - m) / torch.sqrt(v + eps)

def _scatter_add(tgt, idx, src, axis=0):
    return tgt.clone().index_add_(axis, idx, src)

def _segment_sum(src, seg, n):
    out = torch.zeros((n,) + src.shape[1:], dtype=src.dtype)
    return out.index_add_(0, seg, src)

def _pad(x, pw):
    flat = tuple((v for pair in reversed(pw) for v in pair))
    return torch.nn.functional.pad(x, flat)
kernel_name = 'standalone__window_attn_twins__vision'

def setup_inputs():

    _w = lambda a: (lambda t: t.to(torch.bfloat16) if t.is_floating_point() else t)(torch.as_tensor(a))
    H = W = 224 // 7 * 7
    C = 96
    return {'x': _w((lambda *s: torch.randn(*s, dtype=torch.bfloat16) * 0.8)(1, H, W, C)), 'wq': _w((lambda *s: torch.randn(*s, dtype=torch.bfloat16) * 0.8)(C, C)), 'wkv': _w((lambda *s: torch.randn(*s, dtype=torch.bfloat16) * 0.8)(C, 2 * C)), 'wo': _w((lambda *s: torch.randn(*s, dtype=torch.bfloat16) * 0.05)(C, C))}

def reference(x, wq, wkv, wo):
    B, H, W, C = x.shape
    win = 7
    nh, nw = (H // win, W // win)
    xs = x.reshape(B, nh, win, nw, win, C).mean(axis=(2, 4)).reshape(B, nh * nw, C)
    q = x.reshape(B, H * W, C) @ wq
    kv = xs @ wkv
    k, v = (kv[..., :C].clone(), kv[..., C:].clone())
    scale = C ** (-0.5)
    p = _softmax(torch.einsum('bqc,bkc->bqk', q, k) * scale, axis=-1)
    o = torch.einsum('bqk,bkc->bqc', p, v) @ wo
    return o.reshape(B, H, W, C)
```

```python
import sys, struct, math
L=[]
def A(s=""): L.append(s)
def I(s): L.append("    "+s)
def R(x,n=1):
    if x>=256:
        return f"a{x-256}" if n==1 else f"a[{x-256}:{x-256+n-1}]"
    return f"v{x}" if n==1 else f"v[{x}:{x+n-1}]"
def M16(d,a,b,c=None):
    c = R(d,4) if c is None else (c if isinstance(c,str) else R(c,4))
    return f"v_mfma_f32_16x16x32_bf16 {R(d,4)}, {R(a,4)}, {R(b,4)}, {c}"
def f32(x): return "0x%08x"%struct.unpack("<I",struct.pack("<f",x))[0]
def srd(d, lo, size):
    I(f"s_mov_b32 s{d}, s{lo}"); I(f"s_mov_b32 s{d+1}, s{lo+1}"); I(f"s_mov_b32 s{d+2}, {size}"); I(f"s_mov_b32 s{d+3}, 0x00020000")
XB=9633792
WSB=0x10000000
def base(ct): return 32*(ct//2)+4*(ct%2)
OOB=0x40000000

HDR=open('standalone__window_attn_twins__vision.s.ref').read().split('\n')
for l in HDR[:8]: A(l)
K1LDS=58112
REG=25*1024+512
K2LDS=4*REG+64
A(f"; @launch kernel=window_prep_kernel grid=(256,1,1) block=(256,1,1) lds={K1LDS}")
A(f"; @launch kernel=standalone__window_attn_twins__vision_kernel grid=(256,1,1) block=(256,1,1) lds={K2LDS}")
A('.amdgcn_target "amdgcn-amd-amdhsa--gfx950"')
A(".text")

def k1():
    A(".globl window_prep_kernel"); A(".p2align 8"); A(".type window_prep_kernel,@function"); A("window_prep_kernel:")
    I("s_cmp_ge_u32 s2, 256"); I("s_cbranch_scc1 K1_done")
    I("s_load_dwordx8 s[4:11], s[0:1], 0"); I("s_load_dwordx2 s[12:13], s[0:1], 48")
    I("v_lshrrev_b32 v1, 6, v0"); I("v_and_b32 v0, 63, v0")
    I("v_and_b32 v2, 15, v0")
    I("v_lshrrev_b32 v3, 4, v0")
    I("v_readfirstlane_b32 s36, v1")
    I("v_lshlrev_b32 v4, 4, v0")
    I("v_mul_u32_u24 v5, 192, v3"); I("v_lshl_add_u32 v5, v2, 4, v5")
    I(f"v_mov_b32 v7, {OOB}")
    I("v_cmp_gt_u32 vcc, 12, v2"); I("s_nop 1"); I("v_cndmask_b32 v5, v7, v5, vcc")
    I("v_add_u32 v6, 768, v5")
    I("v_cmp_gt_u32 vcc, 3, v3"); I("s_nop 1"); I("v_cndmask_b32 v6, v7, v6, vcc")
    I("v_lshrrev_b32 v8, 2, v2"); I("v_and_b32 v9, 3, v2")
    I("v_lshl_add_u32 v10, v8, 3, v9"); I("v_mul_u32_u24 v10, 192, v10"); I("v_lshl_add_u32 v10, v3, 4, v10")
    I("s_lshr_b32 s37, s2, 3"); I("s_and_b32 s38, s2, 7")
    I("s_mul_i32 s37, s37, 301056")
    I("s_mul_i32 s38, s38, 5376"); I("s_add_u32 s37, s37, s38")
    I("s_mul_i32 s38, s36, 1344"); I("s_add_u32 s37, s37, s38")
    I("s_and_b32 s39, s36, 1")
    I("s_lshr_b32 s40, s36, 1")
    I("s_cmp_eq_u32 s39, 0")
    I(f"s_cselect_b32 s41, {base(0)}, {base(3)}"); I(f"s_cselect_b32 s42, {base(1)}, {base(4)}"); I(f"s_cselect_b32 s43, {base(2)}, {base(5)}")
    I("s_mul_i32 s44, s41, 192"); I("s_mul_i32 s45, s42, 192"); I("s_mul_i32 s46, s43, 192")
    I("s_waitcnt lgkmcnt(0)")
    srd(16,4,XB); srd(20,6,18432); srd(24,8,36864); srd(28,10,18432); srd(32,12,WSB)
    WQ=120; X=64; W1=160
    for a in range(3):
        for u in range(3):
            I(f"buffer_load_dwordx4 {R(WQ+12*a+4*u,4)}, v10, s[20:23], s{44+a} offen offset:{64*u}")
    I("s_mul_i32 s47, s36, 9216")
    for j in range(9):
        if j%4==0:
            if j: I("s_add_u32 s47, s47, 4096")
            I("s_mov_b32 m0, s47"); I("s_nop 0")
        I(f"buffer_load_dwordx4 v4, s[24:27], s47 offen offset:{(j%4)*1024} lds")
    I("s_lshl_b32 s47, s36, 10")
    for i in range(5):
        if i: I("s_add_u32 s47, s47, 4096")
        I("s_add_u32 s48, s47, 36864"); I("s_mov_b32 m0, s48"); I("s_nop 0")
        I(f"buffer_load_dwordx4 v4, s[28:31], s47 offen lds")
    for r in range(7):
        if r: I("s_add_u32 s37, s37, 43008")
        I(f"buffer_load_dwordx4 {R(X+8*r,4)}, v5, s[16:19], s37 offen")
        I(f"buffer_load_dwordx4 {R(X+8*r+4,4)}, v6, s[16:19], s37 offen")
    I("v_and_b32 v11, 1, v2"); I("v_lshlrev_b32 v11, 4, v11"); I("v_mov_b32 v16, 0x3f80"); I("v_lshlrev_b32 v11, v11, v16")
    I("v_lshrrev_b32 v16, 1, v2")
    for d in range(4):
        I(f"v_cmp_eq_u32 vcc, {d}, v16"); I("s_nop 1"); I(f"v_cndmask_b32 v{12+d}, 0, v11, vcc")
    I("v_lshl_add_u32 v17, v3, 3, v8")
    I("v_mul_u32_u24 v18, 384, v17"); I("v_lshl_add_u32 v18, v9, 4, v18")
    I("s_mul_i32 s48, s40, 192"); I("v_add_u32 v18, s48, v18")
    I("v_mul_u32_u24 v19, 192, v17"); I("v_lshl_add_u32 v19, v9, 4, v19")
    for a in range(3):
        I(f"s_lshl_b32 s48, s{41+a}, 1"); I(f"v_add_u32 v{20+a}, s48, v19")
    I("s_waitcnt vmcnt(14)"); I("s_barrier")
    for nt in range(6):
        for s in range(3):
            for h in range(2):
                I(f"ds_read_b64_tr_b16 {R(W1+12*nt+4*s+2*h,2)}, v18 offset:{(32*s+4*h)*384+base(nt)*2}")
    I("s_cmp_eq_u32 s40, 0"); I("s_cbranch_scc1 K1_nowo")
    for a in range(3):
        for u in range(3):
            for h in range(2):
                I(f"ds_read_b64_tr_b16 {R(WQ+12*a+4*u+2*h,2)}, v{20+a} offset:{36864+(32*u+4*h)*192}")
    A("K1_nowo:")
    for j in range(14):
        I(f"s_waitcnt vmcnt({13-j})")
        I(M16(24,12,X+4*j,"0" if j==0 else None))
    XS=57344
    I("s_mul_i32 s48, s36, 192"); I(f"s_add_u32 s48, s48, {XS}")
    I("v_lshlrev_b32 v28, 4, v2"); I("v_lshl_add_u32 v28, v3, 3, v28"); I("v_add_u32 v28, s48, v28")
    I("v_mul_u32_u24 v29, 192, v9"); I("v_lshl_add_u32 v29, v3, 4, v29")
    I("v_cmp_gt_u32 vcc, 12, v2"); I("v_cmp_gt_u32 s[50:51], 2, v3"); I("s_nop 1"); I("s_and_b64 s[50:51], s[50:51], vcc")
    I("s_nop 4")
    for i in range(4): I(f"v_mul_f32 v{24+i}, {f32(1/49)}, v{24+i}")
    I("v_cvt_pk_bf16_f32 v24, v24, v25"); I("v_cvt_pk_bf16_f32 v25, v26, v27")
    I("s_mov_b64 exec, s[50:51]")
    I("ds_write_b64 v28, v[24:25]")
    I("s_mov_b64 exec, -1")
    I("s_waitcnt lgkmcnt(0)"); I("s_barrier")
    for s in range(3): I(f"ds_read_b128 {R(64+4*s,4)}, v29 offset:{XS+64*s}")
    I("s_lshr_b32 s48, s2, 3"); I("s_mul_i32 s48, s48, 12288")
    I("s_bfe_u32 s49, s2, 0x10002")
    I("s_and_b32 s52, s2, 3")
    I("s_waitcnt lgkmcnt(0)")
    D1=80
    for nt in range(6):
        for s in range(3):
            I(M16(D1+4*nt, W1+12*nt+4*s, 64+4*s, "0" if s==0 else None))
    KB=104
    for u in range(3):
        if u==2: I("s_nop 4")
        for e in range(2):
            for z in range(2):
                I(f"v_cvt_pk_bf16_f32 v{KB+4*u+2*e+z}, v{D1+8*u+4*e+2*z}, v{D1+8*u+4*e+2*z+1}")
    I("s_cmp_eq_u32 s40, 0"); I("s_cbranch_scc0 K1_vpath")
    for a in range(3):
        for u in range(3):
            I(M16(D1+4*a, WQ+12*a+4*u, KB+4*u, "0" if u==0 else None))
    I("v_cmp_gt_u32 vcc, 4, v2"); I("s_nop 1"); I("v_cndmask_b32 v30, v7, v4, vcc")
    I("s_mul_i32 s49, s49, 3072"); I("s_add_u32 s48, s48, s49"); I("s_lshl_b32 s52, s52, 6"); I("s_add_u32 s48, s48, s52")
    for a in range(3):
        I(f"s_and_b32 s{53+a}, s{41+a}, 0x60"); I(f"s_lshl_b32 s{53+a}, s{53+a}, 5"); I(f"s_and_b32 s56, s{41+a}, 4"); I("s_lshl_b32 s56, s56, 1")
        I(f"s_add_u32 s{53+a}, s{53+a}, s56"); I(f"s_add_u32 s{53+a}, s{53+a}, s48")
    sc=f32(96**-0.5*math.log2(math.e))
    for a in range(3):
        for i in range(4): I(f"v_mul_f32 v{D1+4*a+i}, {sc}, v{D1+4*a+i}")
        I(f"v_cvt_pk_bf16_f32 v{D1+4*a}, v{D1+4*a}, v{D1+4*a+1}"); I(f"v_cvt_pk_bf16_f32 v{D1+4*a+1}, v{D1+4*a+2}, v{D1+4*a+3}")
        I(f"buffer_store_dwordx2 {R(D1+4*a,2)}, v30, s[32:35], s{53+a} offen")
    I("s_endpgm")
    A("K1_vpath:")
    for a in range(3):
        for u in range(3):
            I(M16(D1+4*a, KB+4*u, WQ+12*a+4*u, "0" if u==0 else None))
    I("v_cmp_gt_u32 vcc, 16, v0"); I("s_nop 1"); I("v_cndmask_b32 v30, v7, v4, vcc")
    I("s_lshl_b32 s49, s49, 3"); I("s_add_u32 s48, s48, s49"); I("s_lshl_b32 s52, s52, 8"); I("s_add_u32 s48, s48, s52")
    I("s_mul_i32 s49, s39, 3072"); I("s_add_u32 s48, s48, s49"); I("s_add_u32 s48, s48, 6144")
    I("s_nop 4")
    for a in range(3):
        I(f"v_cvt_pk_bf16_f32 v{D1+4*a}, v{D1+4*a}, v{D1+4*a+1}"); I(f"v_cvt_pk_bf16_f32 v{D1+4*a+1}, v{D1+4*a+2}, v{D1+4*a+3}")
        I(f"buffer_store_dwordx2 {R(D1+4*a,2)}, v30, s[32:35], s48 offen offset:{1024*a}")
    A("K1_done:")
    I("s_endpgm")

S0=8; P0=32; ONES=44; MM=48; LL=76; OK=104; VF=176; TMP=224
OS=256; OX=256+72; XF=256+96; KF=256+180
def Oreg(t): return OS+24*t if t<3 else (OK+24*(t-3) if t<6 else OX)
def kload(stage,f):
    v,o=(3,f*1024) if f<4 else (4,(f-4)*1024)
    return f"buffer_load_dwordx4 {R(KF+24*stage+4*f,4)}, v{v}, s[24:27], s28 offen offset:{o}"
def vload(stage,ct):
    v,o=(4,2048+ct*1024) if ct<2 else (5,(ct-2)*1024)
    return f"buffer_load_dwordx4 {R(VF+24*stage+4*ct,4)}, v{v}, s[24:27], s28 offen offset:{o}"
def slots_of(qg):
    a=[(0,t) for t in range(6)]+([(0,6)] if qg==0 else [])
    b=[(1,t) for t in range(6)]+([(1,6)] if qg==1 else [])
    return a+b
color=lambda n: (n%13)%2 if n%13<12 else 2
def qk(n,st,t):
    S=S0+8*color(n)
    return [M16(S+4*k, KF+24*st+4*(3*k+j), XF+12*t+4*j, MM+4*t if j==0 else None) for k in range(2) for j in range(3)]
def pv(n,st,t):
    P=P0+4*color(n)
    return [M16(Oreg(t)+4*c, VF+24*st+4*c, P) for c in range(6)]+[M16(LL+4*t, ONES, P)]
def expgaps(n):
    S=S0+8*color(n); P=P0+4*color(n)
    E=lambda j: f"v_exp_f32 v{S+j}, v{S+j}"
    C=lambda j: f"v_cvt_pk_bf16_f32 v{P+j}, v{S+2*j}, v{S+2*j+1}"
    return [[E(0)],[E(1)],[E(2)],[E(3)],[E(4)],[C(0),C(1)],[E(5)],[E(6)],[E(7)],[],[C(2),C(3)],[],[]]
def body(qg):
    sl=slots_of(qg)
    for n,(st,t) in enumerate(sl):
        idx=[i for i,(s2,_) in enumerate(sl) if s2==st]
        pos=n-idx[0]; last=len(idx)-1
        mm=qk(n,st,t)+pv(n-2,*sl[(n-2)%13])
        g=expgaps(n-1)
        fr=(9,11,12)
        if pos==0:
            for i in range(3): g[fr[i]].append(kload(1-st,3+i))
        elif pos==1: g[11].append("s_waitcnt vmcnt(6)")
        elif pos in (2,3):
            for i in range(3): g[fr[i]].append(vload(1-st,3*(pos-2)+i))
        if pos==last-1:
            g[11].append("s_waitcnt vmcnt(6)"); g[12].append("s_add_u32 s28, s28, 12288")
            if n==11: g[9].append("s_sub_u32 s29, s29, 1")
        if pos==last:
            for i in range(3): g[fr[i]].append(kload(st,i))
            if n==12: g[10].append("s_cmp_lg_u32 s29, 0")
        for i in range(13):
            I(mm[i])
            for x in g[i]: I(x)
def drain(qg):
    sl=slots_of(qg)
    mm=pv(11,*sl[11]); g=expgaps(12)
    g=[x for y in g for x in y]
    I("s_nop 7")
    k=0
    for i in range(7):
        I(mm[i])
        for _ in range(2):
            if k<len(g): I(g[k]); k+=1
    assert k==len(g)
    I("s_nop 1")
    for x in pv(12,*sl[12]): I(x)

def k2():
    N="standalone__window_attn_twins__vision_kernel"
    A(f".globl {N}"); A(".p2align 8"); A(f".type {N},@function"); A(f"{N}:")
    I("s_cmp_ge_u32 s2, 256"); I("s_cbranch_scc1 K2_done")
    I("s_load_dwordx2 s[4:5], s[0:1], 0"); I("s_load_dwordx2 s[6:7], s[0:1], 32"); I("s_load_dwordx2 s[8:9], s[0:1], 48")
    I("v_lshrrev_b32 v1, 6, v0"); I("v_and_b32 v0, 63, v0")
    I("v_and_b32 v6, 15, v0"); I("v_lshrrev_b32 v7, 4, v0")
    I("v_readfirstlane_b32 s36, v1")
    I("v_mul_u32_u24 v1, 192, v6"); I("v_lshl_add_u32 v1, v7, 4, v1")
    I(f"v_mov_b32 v2, {OOB}"); I("v_cmp_gt_u32 vcc, 4, v6"); I("s_nop 1"); I("v_cndmask_b32 v2, v2, v1, vcc")
    I("v_lshlrev_b32 v3, 4, v0"); I("v_add_u32 v4, 4096, v3"); I("v_add_u32 v5, 8192, v3")
    I("s_and_b32 s37, s36, 1")
    I("s_lshr_b32 s38, s36, 1")
    I("s_mul_i32 s39, s2, 37632")
    I("s_mul_i32 s40, s37, 18432"); I("s_add_u32 s40, s40, s39")
    I("s_mul_i32 s41, s38, 9216"); I("s_add_u32 s42, s40, s41")
    I("s_sub_u32 s41, 9216, s41"); I("s_add_u32 s41, s40, s41")
    I("s_add_u32 s43, s39, 36864")
    I(f"s_mul_i32 s44, s36, {REG}"); I("v_add_u32 v6, s44, v3")
    I("s_xor_b32 s45, s36, 2"); I(f"s_mul_i32 s45, s45, {REG}"); I("v_add_u32 v7, s45, v3")
    I("s_mul_i32 s46, s38, 196608")
    I("s_mov_b32 s30, 0")
    I("s_waitcnt lgkmcnt(0)")
    srd(16,4,XB); srd(20,6,XB); srd(24,8,WSB)
    for t in range(7):
        sb = 41 if t<3 else (42 if t<6 else 43)
        if t%3==0: I(f"s_mov_b32 s47, s{sb}")
        else: I("s_add_u32 s47, s47, 3072")
        for s in range(3):
            I(f"buffer_load_dwordx4 {R(XF+12*t+4*s,4)}, v{1 if t<6 else 2}, s[16:19], s47 offen offset:{64*s}")
    for r in range(28): I(f"v_mov_b32 v{MM+r}, 0")
    I(f"v_mov_b32 v{TMP}, {4*REG}"); I(f"ds_write_b32 v{TMP}, v{MM}")
    A("K2_pass:")
    I("s_mov_b32 s28, s46")
    for f in range(6): I(kload(0,f))
    for c in range(6): I(vload(0,c))
    I("s_add_u32 s28, s28, 12288")
    for f in range(3): I(kload(1,f))
    for r in range(96): I(f"v_accvgpr_write_b32 a{r}, 0")
    for r in range(LL,LL+28+72): I(f"v_mov_b32 v{r}, 0")
    for r in range(24): I(f"v_mov_b32 v{VF+24+r}, 0")
    for r in range(4): I(f"v_mov_b32 v{ONES+r}, 0x3f803f80")
    for r in range(4): I(f"v_mov_b32 v{P0+4*color(11)+r}, 0")
    for r in range(8): I(f"v_mov_b32 v{S0+8*color(12)+r}, {f32(-1e30)}")
    I("s_mov_b32 s29, 8")
    I("s_cmp_eq_u32 s37, 0")
    I("s_waitcnt vmcnt(9)")
    I("s_cbranch_scc0 K2_loop1")
    A(".p2align 6"); A("K2_loop0:"); body(0); I("s_cbranch_scc1 K2_loop0"); drain(0); I("s_branch K2_epi")
    A(".p2align 6"); A("K2_loop1:"); body(1); I("s_cbranch_scc1 K2_loop1"); drain(1)
    A("K2_epi:")
    I("v_lshrrev_b32 v8, 2, v3")
    I(f"v_add_u32 v9, s44, v8"); I("v_add_u32 v10, s45, v8")
    I("s_waitcnt vmcnt(0)"); I("s_nop 7")
    for q in range(18): I(f"ds_write_b128 v6, {R(OS+4*q,4)} offset:{q*1024}")
    for q in range(6): I(f"ds_write_b128 v6, {R(OX+4*q,4)} offset:{(18+q)*1024}")
    for t in range(3): I(f"ds_write_b32 v9, v{LL+4*t} offset:{24576+256*t}")
    I(f"ds_write_b32 v9, v{LL+24} offset:{24576+768}")
    I("s_waitcnt lgkmcnt(0)"); I("s_barrier")
    RB=VF
    for t in range(3): I(f"ds_read_b32 v{12+t}, v10 offset:{24576+256*t}")
    for q in range(18): I(f"ds_read_b128 {R(RB+4*q,4)}, v7 offset:{q*1024}")
    for r in range(4): I(f"v_mov_b32 v{16+r}, 0")
    for r in range(4): I(f"v_mov_b32 v{20+r}, 0")
    I(f"s_mov_b32 s48, {f32(2.0**-20)}"); I(f"s_mov_b32 s49, {f32(2.0**120)}")
    I("s_mov_b64 s[50:51], 0")
    def chk(reg):
        I(f"v_cmp_nle_f32 vcc, s48, v{reg}"); I("s_or_b64 s[50:51], s[50:51], vcc")
        I(f"v_cmp_nge_f32 vcc, s49, v{reg}"); I("s_or_b64 s[50:51], s[50:51], vcc")
    I("s_waitcnt lgkmcnt(0)")
    for t in range(3):
        I(f"v_add_f32 v{12+t}, v{12+t}, v{LL+12+4*t}")
    for t in range(3): chk(12+t)
    for t in range(3): I(f"v_rcp_f32 v{12+t}, v{12+t}")
    I("s_mov_b32 s47, s42")
    for t in range(3):
        if t: I("s_add_u32 s47, s47, 3072")
        for u in range(3):
            o=OK+24*t+8*u; rb=RB+24*t+8*u; d=24+4*((3*t+u)%2)
            for i in range(8): I(f"v_add_f32 v{o+i}, v{o+i}, v{rb+i}")
            for i in range(8): I(f"v_mul_f32 v{o+i}, v{o+i}, v{12+t}")
            for i in range(4): I(f"v_cvt_pk_bf16_f32 v{rb+i}, v{o+2*i}, v{o+2*i+1}")
            I(f"buffer_store_dwordx4 {R(rb,4)}, v1, s[20:23], s47 offen offset:{64*u}")
            I("s_nop 0")
            I(M16(20,16,rb))
    I("s_cmp_ge_u32 s36, 3"); I("s_cbranch_scc1 K2_nox")
    I("s_lshl_b32 s47, s36, 11"); I("v_add_u32 v9, s47, v3")
    for w in range(4):
        I(f"ds_read_b32 v{12+w}, v8 offset:{w*REG+24576+768}") if w*REG+24576+768<65536 else None
    I(f"v_add_u32 v10, {2*REG}, v8"); I(f"v_add_u32 v11, {2*REG}, v9")
    for w in range(4):
        if w*REG+24576+768>=65536: I(f"ds_read_b32 v{12+w}, v10 offset:{(w-2)*REG+24576+768}")
    for w in range(4):
        for e in range(2):
            I(f"ds_read_b128 {R(OK+8*w+4*e,4)}, v{9 if w<2 else 11} offset:{(w%2)*REG+18432+1024*e}")
    I("s_waitcnt lgkmcnt(0)")
    I("v_add_f32 v12, v12, v13"); I("v_add_f32 v14, v14, v15"); I("v_add_f32 v12, v12, v14")
    chk(12)
    I("v_rcp_f32 v12, v12")
    for i in range(8):
        I(f"v_add_f32 v{OK+i}, v{OK+i}, v{OK+8+i}"); I(f"v_add_f32 v{OK+16+i}, v{OK+16+i}, v{OK+24+i}")
    for i in range(8): I(f"v_add_f32 v{OK+i}, v{OK+i}, v{OK+16+i}")
    for i in range(8): I(f"v_mul_f32 v{OK+i}, v{OK+i}, v12")
    for i in range(4): I(f"v_cvt_pk_bf16_f32 v{OK+32+i}, v{OK+2*i}, v{OK+2*i+1}")
    I("s_lshl_b32 s47, s36, 6"); I("s_add_u32 s47, s47, s43")
    I(f"buffer_store_dwordx4 {R(OK+32,4)}, v2, s[20:23], s47 offen")
    I("s_nop 0")
    I(M16(20,16,OK+32))
    A("K2_nox:")
    I("s_cmp_lg_u32 s30, 0"); I("s_cbranch_scc1 K2_done")
    I("s_nop 7")
    I("v_cmp_u_f32 vcc, v20, v20"); I("s_or_b64 s[50:51], s[50:51], vcc")
    I(f"v_mov_b32 v8, {4*REG}"); I("v_mov_b32 v9, 1")
    I("s_cmp_eq_u64 s[50:51], 0"); I("s_cbranch_scc1 K2_ok")
    I("ds_write_b32 v8, v9")
    A("K2_ok:")
    I("s_waitcnt lgkmcnt(0)"); I("s_barrier")
    I("ds_read_b32 v9, v8"); I("s_waitcnt lgkmcnt(0)")
    I("v_readfirstlane_b32 s47, v9"); I("s_nop 3")
    I("s_cmp_eq_u32 s47, 0"); I("s_cbranch_scc1 K2_done")
    I("s_waitcnt vmcnt(0)")
    for t in range(7): I(f"v_mov_b32 v{MM+4*t}, 0xff800000")
    I("s_mov_b32 s28, s46"); I("s_mov_b32 s29, 16")
    A("K2_fb:")
    for f in range(6): I(kload(0,f))
    I("s_waitcnt vmcnt(0)")
    for t in range(7):
        for k in range(2):
            for j in range(3): I(M16(S0+4*k, KF+4*(3*k+j), XF+12*t+4*j, "0" if j==0 else None))
        I("s_nop 9")
        for i in range(4): I(f"v_max3_f32 v{MM+4*t}, v{S0+2*i}, v{S0+2*i+1}, v{MM+4*t}")
    I("s_add_u32 s28, s28, 12288"); I("s_sub_u32 s29, s29, 1"); I("s_cmp_lg_u32 s29, 0"); I("s_cbranch_scc1 K2_fb")
    I("v_lshrrev_b32 v8, 2, v3"); I("v_add_u32 v9, s44, v8")
    for t in range(7): I(f"ds_write_b32 v9, v{MM+4*t} offset:{256*t}")
    I("v_and_b32 v8, 63, v8"); I("v_add_u32 v9, s44, v8"); I("v_add_u32 v10, s45, v8")
    I("s_waitcnt lgkmcnt(0)"); I("s_barrier")
    for t in range(7):
        tp=(t+3)%6 if t<6 else 6
        for G in range(4):
            I(f"ds_read_b32 v{12+G}, v9 offset:{256*t+64*G}"); I(f"ds_read_b32 v{16+G}, v10 offset:{256*tp+64*G}")
        I("s_waitcnt lgkmcnt(0)")
        I("v_max3_f32 v12, v12, v13, v14"); I("v_max3_f32 v12, v12, v15, v16"); I("v_max3_f32 v12, v12, v17, v18"); I("v_max_f32 v12, v12, v19")
        for i in range(4): I(f"v_sub_f32 v{MM+4*t+i}, 0, v12")
    I("s_barrier")
    I("s_mov_b32 s30, 1")
    I("s_branch K2_pass")
    A("K2_done:")
    I("s_endpgm")

def desc(name,nv,acc,ns):
    A(f".amdhsa_kernel {name}")
    A(f"  .amdhsa_next_free_vgpr {nv}"); A(f"  .amdhsa_next_free_sgpr {ns}"); A(f"  .amdhsa_accum_offset {acc}")
    A("  .amdhsa_group_segment_fixed_size 0"); A("  .amdhsa_kernarg_size 56"); A("  .amdhsa_user_sgpr_count 2")
    A("  .amdhsa_user_sgpr_kernarg_segment_ptr 1"); A("  .amdhsa_system_sgpr_workgroup_id_x 1")
    A(".end_amdhsa_kernel")
k1(); k2()
A('.section .rodata,"a"'); A(".p2align 6")
desc("window_prep_kernel",232,232,64); A(".p2align 6")
desc("standalone__window_attn_twins__vision_kernel",512,256,64)
open(sys.argv[1],'w').write("\n".join(L)+"\n")
```

```python
import re
def regs(tok):
    tok=tok.strip()
    m=re.fullmatch(r'(-|abs\()?([va])(\d+)\)?',tok)
    if m: return {(m.group(2),int(m.group(3)))}
    m=re.fullmatch(r'([va])\[(\d+):(\d+)\]',tok)
    if m: return {(m.group(1),i) for i in range(int(m.group(2)),int(m.group(3))+1)}
    return set()
def sregs(tok):
    tok=tok.strip()
    if tok=='vcc': return {'vcc'}
    if tok=='exec': return {'exec'}
    if tok=='m0': return {'m0'}
    m=re.fullmatch(r's(\d+)',tok)
    if m: return {int(m.group(1))}
    m=re.fullmatch(r's\[(\d+):(\d+)\]',tok)
    if m: return set(range(int(m.group(1)),int(m.group(2))+1))
    return set()
TRANS=('v_exp_f32','v_rcp_f32','v_log_f32','v_rsq_f32','v_sqrt_f32')
def parse(line):
    line=line.split(';')[0].strip()
    if not line or line.endswith(':') or line.startswith('.'): return None
    p=line.split(None,1); mn=p[0]; ops=[]
    if len(p)>1:
        ops=[o.strip() for o in re.split(r',(?![^\[]*\])',p[1])]
        last=ops[-1].split()
        ops[-1]=last[0]; mods=last[1:]
    else: mods=[]
    d=dict(mn=mn,ops=ops,mods=mods,text=line,vd=set(),vu=set(),sd=set(),su=set(),C=set(),kind='other',states=1)
    if mn=='s_nop': d['states']=int(ops[0],0)+1; d['kind']='salu'
    elif mn.startswith('v_smfmac'):
        d['kind']='mfma'; d['vd']=regs(ops[0]); d['AB']=regs(ops[1])|regs(ops[2])|regs(ops[3]); d['C']=regs(ops[0]); d['vu']=d['AB']|d['C']
        d['passes']=4
    elif mn.startswith('v_mfma'):
        d['kind']='mfma'; d['vd']=regs(ops[0]); d['AB']=regs(ops[1])|regs(ops[2]); d['C']=regs(ops[3]); d['vu']=d['AB']|d['C']
        d['passes']=4 if '16x16x32' in mn else 8
    elif mn.startswith('v_cmp'):
        d['kind']='valu'; d['sd']=sregs(ops[0]);
        for o in ops[1:]: d['vu']|=regs(o); d['su']|=sregs(o)
    elif mn in('v_readfirstlane_b32','v_readlane_b32'):
        d['kind']='valu'; d['sd']=sregs(ops[0]); d['vu']=regs(ops[1]); d['rl']=True
    elif mn.startswith('v_permlane'):
        d['kind']='valu'; d['vd']=regs(ops[0])|regs(ops[1]); d['vu']=set(d['vd']); d['perm']=True
    elif mn.startswith('v_'):
        d['kind']='valu'; d['vd']=regs(ops[0])
        for o in ops[1:]: d['vu']|=regs(o); d['su']|=sregs(o)
        if mn.startswith('v_fmac') or mn.startswith('v_dot2c'): d['vu']|=d['vd']
        d['trans']=mn.replace('_e32','').replace('_e64','') in TRANS
        if any('dpp' in x or 'row_' in x or 'quad_perm' in x for x in mods) or mn.endswith('_dpp'): d['dpp']=True
    elif mn.startswith('ds_read'):
        d['kind']='ds'; d['vd']=regs(ops[0]); d['vu']=regs(ops[1])
    elif mn.startswith('ds_write') or mn.startswith('ds_add'):
        d['kind']='ds'
        for o in ops: d['vu']|=regs(o)
    elif mn.startswith('buffer_load'):
        d['kind']='vmem'
        if 'lds' in mods: d['vu']=regs(ops[0]); d['su']=sregs(ops[1])|sregs(ops[2])|{'m0'}; d['lds']=True
        else: d['vd']=regs(ops[0]); d['vu']=regs(ops[1]); d['su']=sregs(ops[2])|sregs(ops[3])
    elif mn.startswith('buffer_store') or mn.startswith('buffer_atomic'):
        d['kind']='vmem'; d['vu']=regs(ops[0])|regs(ops[1]); d['su']=sregs(ops[2])|sregs(ops[3]); d['data']=regs(ops[0])
        d['wide']=('x3' in mn or 'x4' in mn)
    elif mn.startswith('s_'):
        d['kind']='salu'
        if ops and not mn.startswith('s_cmp') and not mn.startswith('s_cbranch') and not mn.startswith('s_waitcnt') and not mn.startswith('s_branch'):
            d['sd']=sregs(ops[0])
            for o in ops[1:]: d['su']|=sregs(o)
    return d
def check(lines, name=''):
    ins=[x for x in (parse(l) for l in lines) if x]
    bad=0
    for j,b in enumerate(ins):
        dist=0
        for i in range(j-1,max(-1,j-24),-1):
            a=ins[i]
            need=0; why=''
            if a['kind']=='mfma':
                P=a['passes']
                if b['kind']=='mfma':
                    if a['vd']&b['AB']: need={4:8,8:12}[P]; why='mfmaD->AB'
                    elif a['vd']&b['C'] and a['vd']!=b['C']: need={4:6,8:10}[P]; why='mfmaD->C partial'
                    elif a['vd']&b['vd'] and a['vd']!=b['C']: need={4:8,8:12}[P]; why='mfmaD->D waw(conservative)' if a['vd']!=b['vd'] else ''; need = need if why else 0
                elif b['kind'] in('valu','ds','vmem'):
                    if a['vd']&(b['vu']|b['vd']): need={4:8,8:12}[P]; why='mfmaD->rw'
                    if b['kind']=='valu' and a['C']&b['vd']: need=max(need,{4:3,8:7}[P]); why+=' C war'
            if a['kind']=='valu':
                if b['kind']=='mfma' and a['vd']&b['vu']: need=2; why='valu->mfma'
                if b['kind']=='valu':
                    if a.get('trans') and not b.get('trans') and a['vd']&b['vu']: need=max(need,1); why='trans'
                    if (b.get('perm') or b.get('dpp')) and a['vd']&b['vu']: need=max(need,2); why='valu->perm/dpp'
                    if b.get('rl') and a['vd']&b['vu']: need=max(need,1); why='valu->readlane'
                    if a['sd']&(b['su']|({'vcc'} if 'vcc' in b['ops'][1:] else set())): need=max(need,2); why='valu sgpr->valu'
                if b['kind']=='vmem' and a['sd']&b['su']: need=5; why='valu sgpr->vmem'
            if a['kind']=='vmem' and a.get('wide') and a['data']&b['vd']: need=max(need,2 if b['kind']=='valu' else 1); why='store data war'
            if a['kind']=='salu' and 'm0' in a['sd'] and (b.get('lds') or 'addtid' in b['mn']): need=1; why='m0->ldsdma'
            if need>dist:
                print(f"HAZARD[{name}] {why}: need {need} have {dist}: '{a['text']}' -> '{b['text']}'"); bad+=1
            dist+=a['states']
            if dist>=13: break
    return bad
```

```python
import sys, struct, math, os
import hz
DIAG=int(os.environ.get('DIAG','0'))
def R(x,n=1):
    if x>=256: return f"a{x-256}" if n==1 else f"a[{x-256}:{x-256+n-1}]"
    return f"v{x}" if n==1 else f"v[{x}:{x+n-1}]"
def M16(d,a,b,c=None):
    c = R(d,4) if c is None else (c if isinstance(c,str) else R(c,4))
    return f"v_mfma_f32_16x16x32_bf16 {R(d,4)}, {R(a,4)}, {R(b,4)}, {c}"
def f32(x): return "0x%08x"%struct.unpack("<I",struct.pack("<f",x))[0]
def base(ct): return 32*(ct//2)+4*(ct%2)
XB=9633792; WSB=0x10000000; OOB=0x40000000
REG=28672; FLAG=4*REG; LDSB=FLAG+64; XS=73728
assert all((q*2341)>>16==q//28 for q in range(208))
assert all((c*5462)>>16==c//12 for c in range(192))
S0=8; P0=32; ONES=44; MM=48; LL=76; OK=104; VF=176; XO=224; T2=232
OS=256; OX=256+72; XF=256+96; KF=256+180; ASP=256+228
XA=1; XL=2; XOUT=231
sX=20; sO=24; sW=28; sA=32; sB=36; sD=40
def SR(d): return f"s[{d}:{d+3}]"
def srd(d, lo, size): return [f"s_mov_b32 s{d}, s{lo}", f"s_mov_b32 s{d+1}, s{lo+1}", f"s_mov_b32 s{d+2}, {size}", f"s_mov_b32 s{d+3}, 0x00020000"]
def Oreg(t): return OS+24*t if t<3 else (OK+24*(t-3) if t<6 else OX)
def RB(t): return VF+24*t if t<2 else T2
def W1(i): return KF+4*i if i<12 else ASP+4*(i-12)
def W2(i): return VF+4*i if i<12 else T2+4*(i-12)
nst=[0]
def stamp(idx):
    if not DIAG: return []
    return ["s_memrealtime s[66:67]","s_memtime s[68:69]","s_waitcnt lgkmcnt(0)",f"s_mov_b32 s{72+2*idx}, s66",f"s_mov_b32 s{73+2*idx}, s68"]
def stampdump():
    if not DIAG: return []
    o=["s_lshl_b32 s66, s2, 2","s_add_u32 s66, s66, s44","s_lshl_b32 s66, s66, 6",f"s_add_u32 s66, s66, {0x100000}","v_mov_b32 v8, 0"]
    for i in range(8):
        o+=[f"v_mov_b32 v10, s{72+2*i}",f"v_mov_b32 v11, s{73+2*i}",f"buffer_store_dwordx2 v[10:11], v8, {SR(sW)}, s66 offen offset:{8*i}","s_nop 1"]
    return o

def kload(stage,f):
    v,o=(3,f*1024) if f<4 else (4,(f-4)*1024)
    return f"buffer_load_dwordx4 {R(KF+24*stage+4*f,4)}, v{v}, {SR(sW)}, s60 offen offset:{o}"
def vload(stage,ct):
    v,o=(4,2048+ct*1024) if ct<2 else (5,(ct-2)*1024)
    return f"buffer_load_dwordx4 {R(VF+24*stage+4*ct,4)}, v{v}, {SR(sW)}, s60 offen offset:{o}"
def slots_of(qg):
    a=[(0,t) for t in range(6)]+([(0,6)] if qg==0 else [])
    b=[(1,t) for t in range(6)]+([(1,6)] if qg==1 else [])
    return a+b
color=lambda n: (n%13)%2 if n%13<12 else 2
def qk(c,st,t):
    S=S0+8*c
    return [M16(S+4*k, KF+24*st+4*(3*k+j), XF+12*t+4*j, MM+4*t if j==0 else None) for k in range(2) for j in range(3)]
def pv(c,st,t):
    P=P0+4*c
    return [M16(Oreg(t)+4*q, VF+24*st+4*q, P) for q in range(6)]+[M16(LL+4*t, ONES, P)]
def expgaps(c):
    S=S0+8*c; P=P0+4*c
    E=lambda j: f"v_exp_f32 v{S+j}, v{S+j}"
    C=lambda j: f"v_cvt_pk_bf16_f32 v{P+j}, v{S+2*j}, v{S+2*j+1}"
    return [[E(0)],[E(1)],[E(2)],[E(3)],[E(4)],[C(0),C(1)],[E(5)],[E(6)],[E(7)],[],[C(2),C(3)],[],[]]
def body(qg):
    sl=slots_of(qg); out=[]
    for n,(st,t) in enumerate(sl):
        idx=[i for i,(s2,_) in enumerate(sl) if s2==st]
        pos=n-idx[0]; last=len(idx)-1
        mm=qk(color(n),st,t)+pv(color(n-2),*sl[(n-2)%13])
        g=expgaps(color(n-1)); fr=(9,11,12)
        if pos==0:
            for i in range(3): g[fr[i]].append(kload(1-st,3+i))
        elif pos==1: g[11].append("s_waitcnt vmcnt(6)")
        elif pos in (2,3):
            for i in range(3): g[fr[i]].append(vload(1-st,3*(pos-2)+i))
        if pos==last-1:
            g[11].append("s_waitcnt vmcnt(6)"); g[12].append("s_add_u32 s60, s60, 12288")
            if st==0: g[9].append("s_sub_u32 s61, s61, 1")
        if pos==last:
            for i in range(3): g[fr[i]].append(kload(st,i))
            if st==0: g[10].append("s_cmp_eq_u32 s61, 0")
        o=[f"; slot {n}: stage {st} tile {t}"]
        for i in range(13): o.append(mm[i]); o+=g[i]
        out.append(o)
    return out
def nA(qg): return 7 if qg==0 else 6
def tail(qg):
    sl=slots_of(qg); na=nA(qg)
    order=[0,1,2,3,4,5] if qg==0 else [6,0,1,2,3,4,5]
    seq=[sl[na-2],sl[na-1]]+[(1,t) for t in order]
    col=[color(na-2),color(na-1)]
    for k in range(len(order)):
        col.append([c for c in range(3) if c not in col[-2:]][0] if False else (set(range(3))-{col[-1],col[-2]}).pop())
    out=[]; pend=[]
    def states_since(i): return sum((int(l.split()[1])+1 if l.startswith('s_nop') else 1) for l in out[i+1:] if not l.startswith(';'))
    def place(n):
        for _ in range(n):
            if pend and states_since(pend[0][0])>=8: out.append(pend.pop(0)[1])
    def wr(t,q):
        if q<6: return f"ds_write_b128 v6, {R(Oreg(t)+4*q,4)} offset:{(6*t+q)*1024 if t<3 else (18+q)*1024}"
        return f"ds_write_b128 v6, {R(LL+4*t,4)} offset:{24576+1024*(t if t<3 else 3)}"
    nb=len(order)
    for k in range(nb+2):
        out.append(f"; tail slot {k}")
        mm=[];
        if k<nb: mm+=[(m,None) for m in qk(col[k+2],*seq[k+2])]
        st,t=seq[k]
        final = (t in (0,1,2,6)) and (st==1 or t==6)
        mm+=[(m,(t,q) if final else None) for q,m in enumerate(pv(col[k],st,t))]
        if k<nb: g=expgaps(col[k+1])
        elif k==nb:
            f=[x for y in expgaps(col[k+1]) for x in y]; g=[f[2*i:2*i+2] for i in range(7)]
        else: g=[[] for _ in range(7)]; out.append("s_nop 0")
        if k==1: g[11].append("s_waitcnt vmcnt(3)")
        for i,(m,w) in enumerate(mm):
            out.append(m)
            if w: pend.append((len(out)-1, wr(*w)))
            out+=g[i]
            if not g[i]: place(1 if k<=nb else 2)
    while pend:
        n=len(out); place(1)
        if len(out)==n: out.append("s_nop 0")
    return out

def common_setup():
    o=["v_and_b32 v8, 15, v0","v_lshrrev_b32 v9, 4, v0","v_lshlrev_b32 v9, 4, v9",
       "v_lshlrev_b32 v3, 4, v0","v_add_u32 v4, 4096, v3","v_add_u32 v5, 8192, v3",
       f"s_mul_i32 s48, s44, {REG}","v_add_u32 v6, s48, v3","s_xor_b32 s48, s44, 2",f"s_mul_i32 s48, s48, {REG}","v_add_u32 v7, s48, v3",
       "s_mul_i32 s48, s45, 96","s_mul_i32 s49, s46, 48","s_add_u32 s50, s48, s49",
       "s_sub_u32 s49, 48, s49","s_add_u32 s49, s48, s49",
       "s_mov_b32 s51, 37632"]
    for t in range(7):
        if t<6: o+=[f"s_add_u32 s48, s{49 if t<3 else 50}, {16*(t%3)}","v_add_u32 v10, s48, v8"]
        else: o+=["v_add_u32 v10, 192, v8"]
        o+=["v_mul_u32_u24 v11, 2341, v10","v_lshrrev_b32 v11, 16, v11","v_mul_u32_u24 v10, 192, v10",
            "v_mad_u32_u24 v10, v11, s51, v10",f"v_add_u32 v{XO+t}, v10, v9"]
    o+=[f"v_mov_b32 v12, {OOB}","v_cmp_gt_u32 vcc, 4, v8","s_nop 1",f"v_cndmask_b32 v{XO+6}, v12, v{XO+6}, vcc"]
    o+=["v_lshrrev_b32 v10, 2, v0","s_mul_i32 s48, s44, 6","v_add_u32 v10, s48, v10","v_and_b32 v11, 3, v0",
        f"v_lshlrev_b32 v{XL}, 4, v11",
        "v_lshrrev_b32 v13, 3, v10","v_lshlrev_b32 v13, 11, v13",
        "v_and_b32 v14, 1, v10","v_lshl_add_u32 v13, v14, 10, v13",
        "v_bfe_u32 v14, v10, 1, 2","v_lshl_add_u32 v13, v14, 8, v13",
        f"v_add_u32 v{XA}, v13, v{XL}",
        "v_mul_u32_u24 v11, 192, v11","v_lshl_add_u32 v11, v10, 3, v11",f"v_add_u32 v11, {6*43008+24*192}, v11",
        "v_cmp_gt_u32 vcc, 24, v0","s_nop 1",f"v_cndmask_b32 v{XOUT}, v12, v11, vcc",
        f"v_and_b32 v{XA}, 0x1fff, v{XA}"]
    return o
def xloads():
    return [f"buffer_load_dwordx4 {R(XF+12*t+4*s,4)}, v{XO+t}, {SR(sX)}, s47 offen offset:{64*s}" for t in range(7) for s in range(3)]
def init_acc():
    return [f"v_accvgpr_write_b32 a{r}, 0" for r in range(96)]+[f"v_mov_b32 v{r}, 0" for r in range(LL,LL+100)]
def init_const():
    return [f"v_mov_b32 v{MM+r}, 0" for r in range(28)]

N="standalone__window_attn_twins__vision_kernel"
entry=["s_cmp_ge_u32 s2, 256","s_cbranch_scc1 L_done",
  "s_load_dwordx8 s[4:11], s[0:1], 0","s_load_dwordx4 s[12:15], s[0:1], 32","s_load_dwordx2 s[16:17], s[0:1], 48",
  "v_lshrrev_b32 v8, 6, v0","v_and_b32 v0, 63, v0","v_and_b32 v16, 15, v0","v_readfirstlane_b32 s44, v8","v_lshrrev_b32 v17, 4, v0",
  "s_lshr_b32 s47, s2, 3","s_and_b32 s48, s2, 7","s_mul_i32 s47, s47, 301056","s_mul_i32 s48, s48, 5376","s_add_u32 s47, s47, s48",
  f"v_mov_b32 v18, {OOB}",
  "s_and_b32 s45, s44, 1","s_lshr_b32 s46, s44, 1","s_mul_i32 s63, s46, 196608","s_mov_b32 s62, 0",
  "s_cmp_ge_u32 s44, 2","s_cbranch_scc1 L_wpath"]
PX=104
pool=["v_mul_u32_u24 v19, 192, v17","v_lshl_add_u32 v19, v16, 4, v19","v_cmp_gt_u32 vcc, 12, v16","s_mul_i32 s48, s44, 2688","s_add_u32 s48, s48, s47",
  "v_cndmask_b32 v19, v18, v19, vcc","v_cmp_gt_u32 vcc, 3, v17","v_add_u32 v20, 768, v19","s_nop 0","v_cndmask_b32 v20, v18, v20, vcc",
  "s_waitcnt lgkmcnt(0)"]+srd(sX,4,XB)+stamp(0)
for r in range(7):
    if r: pool.append("s_add_u32 s48, s48, 43008")
    for w in range(2):
        for h in range(2):
            pool.append(f"buffer_load_dwordx4 {R(PX+16*r+8*w+4*h,4)}, v{19+h}, {SR(sX)}, s48 offen offset:{1344*w}")
pool+=srd(sO,12,XB)+srd(sW,16,WSB)+srd(sD,14,256)
pool+=common_setup()+xloads()
pool+=["v_and_b32 v21, 1, v16","v_lshlrev_b32 v21, 4, v21","v_mov_b32 v22, 0x3f80","v_lshlrev_b32 v21, v21, v22","v_lshrrev_b32 v22, 1, v16"]
for d in range(8): pool+=[f"v_cmp_eq_u32 vcc, {d}, v22","s_nop 1",f"v_cndmask_b32 v{24+d}, 0, v21, vcc"]
pool+=[f"v_mov_b32 v8, {FLAG}","v_mov_b32 v9, 0","ds_write_b32 v8, v9"]
pool+=["v_lshrrev_b32 v21, 1, v17","v_mul_u32_u24 v21, 192, v21","v_lshl_add_u32 v21, v16, 4, v21","v_and_b32 v22, 1, v17","v_lshl_add_u32 v21, v22, 3, v21",
       "s_mul_i32 s48, s44, 384",f"s_add_u32 s48, s48, {XS}","v_add_u32 v21, s48, v21","v_cmp_gt_u32 s[52:53], 12, v16"]
pool+=init_const()+stamp(1)
for j in range(28):
    pool+=[f"s_waitcnt vmcnt({21+27-j})", M16(32, 24+4*((j//2)%2), PX+4*j, "0" if j==0 else None)]
pool+=["s_nop 7"]+[f"v_mul_f32 v{32+i}, {f32(1/49)}, v{32+i}" for i in range(4)]
pool+=["v_cvt_pk_bf16_f32 v32, v32, v33","v_cvt_pk_bf16_f32 v33, v34, v35","s_mov_b64 exec, s[52:53]","ds_write_b64 v21, v[32:33]","s_mov_b64 exec, -1",
       "s_waitcnt lgkmcnt(0)"]+stamp(2)+["s_barrier"]
pool+=init_acc()+["s_barrier","s_branch L_sync"]
wp=["s_sub_u32 s54, s44, 2"]
for j in range(3):
    wp+=[f"v_add_u32 v19, {64*j}, v0","v_mul_u32_u24 v20, 5462, v19","v_lshrrev_b32 v20, 16, v20",
         "v_mul_u32_u24 v21, 12, v20","v_sub_u32 v19, v19, v21","v_mul_u32_u24 v20, 384, v20","v_lshl_add_u32 v20, v19, 4, v20",
         f"v_subrev_u32 v{24+j}, {1024*j}, v20"]
wp+=["v_lshrrev_b32 v22, 2, v16","v_and_b32 v23, 3, v16",
     "v_lshl_add_u32 v27, v22, 3, v23","v_mul_u32_u24 v27, 192, v27","v_lshl_add_u32 v27, v17, 4, v27",
     "v_lshlrev_b32 v28, 4, v0",
     "s_mul_i32 s55, s54, 36864","s_mul_i32 s48, s54, 192","s_mov_b32 s49, s55",
     "s_waitcnt lgkmcnt(0)"]+srd(sA,8,36864)+stamp(0)
for i in range(18):
    if i%3==0:
        if i: wp+=["s_add_u32 s48, s48, 6144","s_add_u32 s49, s49, 3072"]
        wp+=["s_mov_b32 m0, s49","s_nop 0"]
    wp.append(f"buffer_load_dwordx4 v{24+i%3}, {SR(sA)}, s48 offen offset:{1024*(i%3)} lds")
wp+=["s_cmp_eq_u32 s54, 0","s_cbranch_scc0 L_wo"]
wq=srd(sB,6,18432)
for ct in range(6):
    if ct%2==0: wq.append(f"s_mov_b32 s48, {6144*(ct//2)}")
    for u in range(3): wq.append(f"buffer_load_dwordx4 {R(W2(3*ct+u),4)}, v27, {SR(sB)}, s48 offen offset:{768*(ct%2)+64*u}")
wq.append("s_branch L_wj")
wo=srd(sB,10,18432)+["s_mov_b32 s48, 0", f"s_mov_b32 s49, {36864+18432}"]
for i in range(18):
    if i%4==0:
        if i: wo+=["s_add_u32 s48, s48, 4096","s_add_u32 s49, s49, 4096"]
        wo+=["s_mov_b32 m0, s49","s_nop 0"]
    wo.append(f"buffer_load_dwordx4 v28, {SR(sB)}, s48 offen offset:{1024*(i%4)} lds")
wj=srd(sX,4,XB)+srd(sO,12,XB)+srd(sW,16,WSB)+srd(sD,14,256)
wj+=["v_lshl_add_u32 v29, v17, 3, v22","v_mul_u32_u24 v29, 192, v29","v_lshl_add_u32 v29, v23, 4, v29","v_add_u32 v29, s55, v29",
     "v_mul_u32_u24 v30, 192, v23","v_lshl_add_u32 v30, v17, 4, v30",
     "v_cmp_gt_u32 vcc, 4, v16","v_cmp_gt_u32 s[52:53], 16, v0","s_cmp_eq_u32 s54, 0","s_cselect_b64 vcc, vcc, s[52:53]","s_nop 1","v_cndmask_b32 v31, v18, v28, vcc",
     "v_mov_b32 v44, v29",f"v_add_u32 v45, {XS}, v30","v_mov_b32 v46, v31"]
wj+=common_setup()+init_const()+init_acc()
wj+=["s_lshr_b32 s56, s2, 3","s_mul_i32 s56, s56, 12288","s_bfe_u32 s57, s2, 0x10002","s_and_b32 s58, s2, 3"]
wj+=stamp(1)+["s_waitcnt vmcnt(0)"]
for nt in range(6):
    for s in range(3):
        for h in range(2): wj.append(f"ds_read_b64_tr_b16 {R(W1(3*nt+s)+2*h,2)}, v44 offset:{(32*s+4*h)*192+base(nt)*2}")
wj+=["s_cmp_eq_u32 s54, 0","s_cbranch_scc1 L_nowo"]
wtr=[f"ds_read_b64_tr_b16 {R(W2(3*ct+u)+2*h,2)}, v44 offset:{18432+(32*u+4*h)*192+base(ct)*2}" for ct in range(6) for u in range(3) for h in range(2)]
D1=8; XSF=OX; KB=32
w3=xloads()+["s_waitcnt lgkmcnt(0)"]+stamp(2)+["s_barrier"]
w3+=[f"ds_read_b128 {R(XSF+4*s,4)}, v45 offset:{64*s}" for s in range(3)]
for nt in range(6):
    for s in range(3):
        if nt==0: w3.append(f"s_waitcnt lgkmcnt({2-s})")
        w3.append(M16(D1+4*nt, W1(3*nt+s), XSF+4*s, "0" if s==0 else None))
for u in range(3):
    if u==2: w3.append("s_nop 1")
    for e in range(2):
        for z in range(2): w3.append(f"v_cvt_pk_bf16_f32 v{KB+4*u+2*e+z}, v{D1+8*u+4*e+2*z}, v{D1+8*u+4*e+2*z+1}")
w3+=["s_cmp_eq_u32 s54, 0","s_cbranch_scc0 L_vp"]
sc=f32(96**-0.5*math.log2(math.e))
kp=[M16(D1+4*ct, W2(3*ct+u), KB+4*u, "0" if u==0 else None) for ct in range(6) for u in range(3)]
kp+=["s_mul_i32 s57, s57, 3072","s_add_u32 s56, s56, s57","s_lshl_b32 s58, s58, 6","s_add_u32 s56, s56, s58"]
for u in range(3):
    if u==2: kp.append("s_nop 0")
    kp+=[f"v_mul_f32 v{D1+8*u+i}, {sc}, v{D1+8*u+i}" for i in range(8)]
    kp+=[f"v_cvt_pk_bf16_f32 v{KB+4*u+i}, v{D1+8*u+2*i}, v{D1+8*u+2*i+1}" for i in range(4)]
    kp.append(f"buffer_store_dwordx4 {R(KB+4*u,4)}, v46, {SR(sW)}, s56 offen offset:{1024*u} sc1")
kp.append("s_branch L_pj")
vp=[M16(D1+4*ct, KB+4*u, W2(3*ct+u), "0" if u==0 else None) for ct in range(6) for u in range(3)]
vp+=["s_lshl_b32 s57, s57, 3","s_add_u32 s56, s56, s57","s_lshl_b32 s58, s58, 8","s_add_u32 s56, s56, s58","s_add_u32 s56, s56, 6144","s_add_u32 s57, s56, 4096"]
for ct in range(6):
    vp+=[f"v_cvt_pk_bf16_f32 v{D1+4*ct}, v{D1+4*ct}, v{D1+4*ct+1}",f"v_cvt_pk_bf16_f32 v{D1+4*ct+1}, v{D1+4*ct+2}, v{D1+4*ct+3}",
         f"buffer_store_dwordx2 {R(D1+4*ct,2)}, v46, {SR(sW)}, s{56 if ct<4 else 57} offen offset:{1024*(ct%4)} sc1"]
pj=[f"v_accvgpr_write_b32 {R(XSF+r)}, 0" for r in range(12)]+["s_waitcnt vmcnt(0)","s_barrier"]
sync=stamp(3)+[f"v_mov_b32 v{ONES+r}, 0x3f803f80" for r in range(4)]+["s_cmp_lg_u32 s44, 0","s_cbranch_scc1 L_go",
  "s_and_b32 s48, s2, 0xfc","v_mov_b32 v8, 1","v_mov_b32 v9, 0","v_lshlrev_b32 v10, 2, v0","s_mov_b64 exec, 1",
  f"buffer_atomic_add v8, v9, {SR(sD)}, s48 offen sc1","s_mov_b64 exec, -1","s_mov_b32 s49, 0x200000"]
SLEEP=int(os.environ.get('SLEEP','0'))
poll=([f"s_sleep {SLEEP}"] if SLEEP else [])+[f"buffer_load_dword v11, v10, {SR(sD)}, 0 offen sc1","s_sub_u32 s49, s49, 1","s_cbranch_scc1 L_go","s_waitcnt vmcnt(0)",
  "v_cmp_gt_u32 vcc, 4, v11","s_nop 1","s_cbranch_vccnz L_poll"]
go=["s_barrier"]+stamp(4)
pas=["s_mov_b32 s60, s63"]+[kload(0,f) for f in range(6)]+[vload(0,c) for c in range(6)]+["s_add_u32 s60, s60, 12288"]+[kload(1,f) for f in range(6)]
pas+=["s_mov_b32 s61, 8","s_waitcnt vmcnt(15)"]
q0=qk(0,0,0); q1=qk(1,0,1); ev=[x for y in expgaps(0) for x in y]
pas+=q0[:3]+["s_waitcnt vmcnt(12)"]+q0[3:]+q1[:3]+stamp(5)+["s_cmp_eq_u32 s45, 0"]+ev[0:2]+[q1[3]]+ev[2:4]+[q1[4]]+ev[4:6]+[q1[5]]+ev[6:]+["s_waitcnt vmcnt(6)","s_cbranch_scc0 L_s2_1","s_branch L_s2_0"]
def chk(reg): return [f"v_cmp_nle_f32 vcc, s48, v{reg}","s_or_b64 s[64:65], s[64:65], vcc",f"v_cmp_nge_f32 vcc, s49, v{reg}","s_or_b64 s[64:65], s[64:65], vcc"]
LR=32
epi=stamp(6)+[f"v_add_u32 v28, {2*REG}, v{XA}",f"v_add_u32 v29, {2*REG}, v{XL}","s_waitcnt vmcnt(0) lgkmcnt(0)","s_barrier"]
epi+=[f"ds_read_b32 v{LR+2*t}, v7 offset:{24576+1024*t}" for t in range(3)]
epi+=[f"ds_read_b128 {R(RB(0)+4*q,4)}, v7 offset:{q*1024}" for q in range(6)]
epi+=[f"ds_read_b128 {R(RB(1)+4*q,4)}, v7 offset:{(6+q)*1024}" for q in range(6)]
epi+=[f"s_mov_b32 s48, {f32(2.0**-20)}",f"s_mov_b32 s49, {f32(2.0**120)}","s_mov_b64 s[64:65], 0","s_waitcnt lgkmcnt(12)"]
epi+=[f"v_add_f32 v{LR+2*t}, v{LR+2*t}, v{LL+12+4*t}" for t in range(3)]
epi+=[f"ds_read_b128 {R(RB(2)+4*q,4)}, v7 offset:{(12+q)*1024}" for q in range(3)]
for t in range(3): epi+=chk(LR+2*t)
epi+=[f"v_rcp_f32 v{LR+2*t}, v{LR+2*t}" for t in range(3)]
late=[f"ds_read_b128 {R(RB(2)+4*q,4)}, v7 offset:{(12+q)*1024}" for q in range(3,6)]
late+=[f"ds_read_b32 v{24+w}, v{XL if w<2 else 29} offset:{(w%2)*REG+27648}" for w in range(4)]
late+=[f"ds_read_b128 {R(8+4*w,4)}, v{XA if w<2 else 28} offset:{(w%2)*REG+18432}" for w in range(4)]
issued=15; nan=[]
for t in range(3):
    for u in range(3):
        need=6*t+2*u+2
        epi.append(f"s_waitcnt lgkmcnt({min(15,issued-need)})")
        o=OK+24*t+8*u; rb=RB(t)+8*u
        epi+=[f"v_pk_add_f32 {R(o+2*i,2)}, {R(o+2*i,2)}, {R(rb+2*i,2)}" for i in range(4)]
        for _ in range(2):
            if late: epi.append(late.pop(0)); issued+=1
        epi+=[f"v_pk_mul_f32 {R(o+2*i,2)}, {R(o+2*i,2)}, {R(LR+2*t,2)} op_sel_hi:[1,0]" for i in range(4)]
        epi+=[f"v_cvt_pk_bf16_f32 v{o+i}, v{o+2*i}, v{o+2*i+1}" for i in range(4)]
        epi.append(f"buffer_store_dwordx4 {R(o,4)}, v{XO+3+t}, {SR(sO)}, s47 offen offset:{64*u}")
        nan.append(o)
assert not late
epi+=["s_waitcnt lgkmcnt(0)","v_add_f32 v24, v24, v25","v_add_f32 v26, v26, v27","v_pk_add_f32 v[8:9], v[8:9], v[12:13]","v_add_f32 v24, v24, v26",
      "v_pk_add_f32 v[10:11], v[10:11], v[14:15]","v_rcp_f32 v26, v24","v_pk_add_f32 v[16:17], v[16:17], v[20:21]","v_pk_add_f32 v[18:19], v[18:19], v[22:23]",
      "v_pk_add_f32 v[8:9], v[8:9], v[16:17]","v_pk_add_f32 v[10:11], v[10:11], v[18:19]",
      "v_pk_mul_f32 v[8:9], v[8:9], v[26:27] op_sel_hi:[1,0]","v_pk_mul_f32 v[10:11], v[10:11], v[26:27] op_sel_hi:[1,0]",
      "v_cvt_pk_bf16_f32 v8, v8, v9","v_cvt_pk_bf16_f32 v9, v10, v11",
      f"buffer_store_dwordx2 v[8:9], v{XOUT}, {SR(sO)}, s47 offen"]
epi+=stamp(7)+stampdump()
epi+=["s_cmp_lg_u32 s62, 0","s_cbranch_scc1 L_done"]
epi+=["v_cmp_gt_u32 s[52:53], 24, v0"]+[f"v_mov_b32 v{12+r}, 0" for r in range(4)]+["v_mov_b32 v10, 0","v_mov_b32 v11, 0"]
epi+=["v_cndmask_b32 v8, 0, v8, s[52:53]","v_cndmask_b32 v9, 0, v9, s[52:53]"]
epi+=[M16(16,12,nan[0],"0")]+[M16(16,12,o) for o in nan[1:]]+[M16(16,12,8)]
epi+=chk(24)
epi+=[f"v_mov_b32 v20, {FLAG}","v_mov_b32 v21, 1","s_nop 2","v_cmp_u_f32 vcc, v16, v16","s_or_b64 s[64:65], s[64:65], vcc",
      "s_cmp_eq_u64 s[64:65], 0","s_cbranch_scc1 L_ok","ds_write_b32 v20, v21"]
ok=["s_waitcnt lgkmcnt(0)","s_barrier","ds_read_b32 v21, v20","s_waitcnt lgkmcnt(0)","v_readfirstlane_b32 s48, v21","s_nop 3",
    "s_cmp_eq_u32 s48, 0","s_cbranch_scc1 L_done"]
fb=["s_waitcnt vmcnt(0)"]+[f"v_mov_b32 v{MM+4*t}, 0xff800000" for t in range(7)]+["s_mov_b32 s60, s63","s_mov_b32 s61, 16"]
fbl=[kload(0,f) for f in range(6)]+["s_waitcnt vmcnt(0)"]
for t in range(7):
    fbl+=[M16(S0+4*k, KF+4*(3*k+j), XF+12*t+4*j, "0" if j==0 else None) for k in range(2) for j in range(3)]
    fbl+=["s_nop 7"]+[f"v_max3_f32 v{MM+4*t}, v{S0+2*i}, v{S0+2*i+1}, v{MM+4*t}" for i in range(4)]
fbl+=["s_add_u32 s60, s60, 12288","s_sub_u32 s61, s61, 1","s_cmp_lg_u32 s61, 0","s_cbranch_scc1 L_fb"]
fb2=[f"ds_write_b32 v6, v{MM+4*t} offset:{1024*t}" for t in range(7)]
fb2+=["v_and_b32 v8, 0x300, v3","v_sub_u32 v9, v6, v8","v_sub_u32 v10, v7, v8","s_waitcnt lgkmcnt(0)","s_barrier"]
for t in range(7):
    tp=(t+3)%6 if t<6 else 6
    for G in range(4): fb2+=[f"ds_read_b32 v{12+G}, v9 offset:{1024*t+256*G}",f"ds_read_b32 v{16+G}, v10 offset:{1024*tp+256*G}"]
    fb2+=["s_waitcnt lgkmcnt(0)","v_max3_f32 v12, v12, v13, v14","v_max3_f32 v12, v12, v15, v16","v_max3_f32 v12, v12, v17, v18","v_max_f32 v12, v12, v19"]
    fb2+=[f"v_sub_f32 v{MM+4*t+i}, 0, v12" for i in range(4)]
fb2+=init_acc()+["s_barrier","s_mov_b32 s62, 1","s_branch L_pass"]

flat=lambda x: [l for y in x for l in y]
B=[body(0),body(1)]; T=[tail(0),tail(1)]
out=[]
HDR=open('standalone__window_attn_twins__vision.s.ref').read().split('\n')
out+=HDR[:10]
out.append(f"; @launch grid=(256,1,1) block=(256,1,1) lds={LDSB}")
out+=['.amdgcn_target "amdgcn-amd-amdhsa--gfx950"',".text",f".globl {N}",".p2align 8",f".type {N},@function",f"{N}:"]
def E(lines,label=None,align=False):
    if align: out.append(".p2align 6")
    if label: out.append(label+":")
    out.extend("    "+l for l in lines)
E(entry); E(pool); E(wp,"L_wpath"); E(wq); E(wo,"L_wo"); E(wj,"L_wj"); E(wtr); E(w3,"L_nowo"); E(kp); E(vp,"L_vp"); E(pj,"L_pj")
E(sync,"L_sync"); E(poll,"L_poll"); E(go,"L_go"); E(pas,"L_pass")
for q in range(2):
    na=nA(q)
    E(flat(B[q][:2]),f"L_loop{q}",True); E(flat(B[q][2:na]),f"L_s2_{q}"); E([f"s_cbranch_scc1 L_tail{q}"]); E(flat(B[q][na:])); E([f"s_branch L_loop{q}"])
E(T[0],"L_tail0"); E(["s_branch L_epi"]); E(T[1],"L_tail1"); E(epi,"L_epi"); E(ok,"L_ok"); E(fb); E(fbl,"L_fb"); E(fb2); E(["s_endpgm"],"L_done")
out+=['.section .rodata,"a"',".p2align 6",f".amdhsa_kernel {N}","  .amdhsa_next_free_vgpr 512","  .amdhsa_next_free_sgpr 96","  .amdhsa_accum_offset 256",
 "  .amdhsa_group_segment_fixed_size 0","  .amdhsa_kernarg_size 56","  .amdhsa_user_sgpr_count 2","  .amdhsa_user_sgpr_kernarg_segment_ptr 1",
 "  .amdhsa_system_sgpr_workgroup_id_x 1",".end_amdhsa_kernel"]
open(sys.argv[1],'w').write("\n".join(out)+"\n")
bad=0
bad+=hz.check(entry+pool+sync+poll+go+pas,'pool')
bad+=hz.check(entry+wp+wq+wj+w3+kp+pj+sync+go+pas,'kpath')
bad+=hz.check(entry+wp+wo+wj+wtr+w3+vp+pj,'vpath')
for q in range(2):
    na=nA(q)
    bad+=hz.check(pas+flat(B[q][2:na])+["s_cbranch x"]+flat(B[q][na:])+["s_branch x"]+flat(B[q][:na])+["s_cbranch x"]+T[q]+epi+ok+fb+fbl+fbl+fb2+pas,f'main{q}')
print("hazards:",bad)
```

```python
import sys, struct, math, os
import hz
DIAG=int(os.environ.get('DIAG','0'))
OUTMOD=os.environ.get('OUTMOD','')
PMOD=os.environ.get('PMOD','nt')
KVMOD=os.environ.get('KVMOD','sc1')
XMOD=os.environ.get('XMOD','')
OUTSZ=int(os.environ.get('OUTSZ','9633792'))
def R(x,n=1):
    if x>=256: return f"a{x-256}" if n==1 else f"a[{x-256}:{x-256+n-1}]"
    return f"v{x}" if n==1 else f"v[{x}:{x+n-1}]"
def M16(d,a,b,c=None):
    c = R(d,4) if c is None else (c if isinstance(c,str) else R(c,4))
    return f"v_mfma_f32_16x16x32_bf16 {R(d,4)}, {R(a,4)}, {R(b,4)}, {c}"
def f32(x): return "0x%08x"%struct.unpack("<I",struct.pack("<f",x))[0]
def base(ct): return 32*(ct//2)+4*(ct%2)
XB=9633792; WSB=0x10000000; OOB=0x40000000
FLG=0x80000
REG=28672; XI=73728; XS=116736; FLAG=XS+768; LDSB=FLAG+64
assert all((q*2341)>>16==q//28 for q in range(208))
assert all((c*5462)>>16==c//12 for c in range(192))
S0=8; P0=32; ONES=44; MM=48; LL=76; OK=104; VF=176; XO=224; T2=232
OS=256; OX=256+72; XF=256+96; KF=256+180; ASP=256+228
XA=1; XL=2; XOUT=231; LRCV=MM
sX=20; sO=24; sW=28; sA=32; sB=36; sD=40
def SR(d): return f"s[{d}:{d+3}]"
def srd(d, lo, size): return [f"s_mov_b32 s{d}, s{lo}", f"s_mov_b32 s{d+1}, s{lo+1}", f"s_mov_b32 s{d+2}, {size}", f"s_mov_b32 s{d+3}, 0x00020000"]
def Oreg(t): return OS+24*t if t<3 else (OK+24*(t-3) if t<6 else OX)
def RB(t): return [T2,VF,VF+24][t]
def W1(i): return KF+4*i if i<12 else ASP+4*(i-12)
def W2(i): return VF+4*i if i<12 else T2+4*(i-12)
nst=[0]
def stamp(idx):
    if not DIAG: return []
    return ["s_memrealtime s[66:67]","s_memtime s[68:69]","s_waitcnt lgkmcnt(0)",f"s_mov_b32 s{72+2*idx}, s66",f"s_mov_b32 s{73+2*idx}, s68"]
def stampdump():
    if not DIAG: return []
    o=["s_lshl_b32 s66, s2, 2","s_add_u32 s66, s66, s44","s_lshl_b32 s66, s66, 6",f"s_add_u32 s66, s66, {0x100000}","v_mov_b32 v8, 0"]
    for i in range(8):
        o+=[f"v_mov_b32 v10, s{72+2*i}",f"v_mov_b32 v11, s{73+2*i}",f"buffer_store_dwordx2 v[10:11], v8, {SR(sW)}, s66 offen offset:{8*i}","s_nop 1"]
    return o

def kload(stage,f):
    v,o=(3,f*1024) if f<4 else (4,(f-4)*1024)
    return f"buffer_load_dwordx4 {R(KF+24*stage+4*f,4)}, v{v}, {SR(sW)}, s60 offen offset:{o}"
def vload(stage,ct):
    v,o=(4,2048+ct*1024) if ct<2 else (5,(ct-2)*1024)
    return f"buffer_load_dwordx4 {R(VF+24*stage+4*ct,4)}, v{v}, {SR(sW)}, s60 offen offset:{o}"
def slots_of(qg):
    a=[(0,t) for t in range(6)]+([(0,6)] if qg==0 else [])
    b=[(1,t) for t in range(6)]+([(1,6)] if qg==1 else [])
    return a+b
color=lambda n: (n%13)%2 if n%13<12 else 2
def qk(c,st,t):
    S=S0+8*c
    return [M16(S+4*k, KF+24*st+4*(3*k+j), XF+12*t+4*j, MM+4*t if j==0 else None) for k in range(2) for j in range(3)]
def pv(c,st,t):
    P=P0+4*c
    return [M16(Oreg(t)+4*q, VF+24*st+4*q, P) for q in range(6)]+[M16(LL+4*t, ONES, P)]
def expgaps(c):
    S=S0+8*c; P=P0+4*c
    E=lambda j: f"v_exp_f32 v{S+j}, v{S+j}"
    C=lambda j: f"v_cvt_pk_bf16_f32 v{P+j}, v{S+2*j}, v{S+2*j+1}"
    return [[E(0)],[E(1)],[E(2)],[E(3)],[E(4)],[C(0),C(1)],[E(5)],[E(6)],[E(7)],[],[C(2),C(3)],[],[]]
def body(qg):
    sl=slots_of(qg); out=[]
    for n,(st,t) in enumerate(sl):
        idx=[i for i,(s2,_) in enumerate(sl) if s2==st]
        pos=n-idx[0]; last=len(idx)-1
        mm=qk(color(n),st,t)+pv(color(n-2),*sl[(n-2)%13])
        g=expgaps(color(n-1)); fr=(9,11,12)
        if pos==0:
            for i in range(3): g[fr[i]].append(kload(1-st,3+i))
        elif pos==1: g[11].append("s_waitcnt vmcnt(6)")
        elif pos in (2,3):
            for i in range(3): g[fr[i]].append(vload(1-st,3*(pos-2)+i))
        if pos==last-1:
            g[11].append("s_waitcnt vmcnt(6)"); g[12].append(f"s_add_u32 s60, s60, {36864 if st==0 else 12288}")
            if st==1: g[9].append("s_sub_u32 s61, s61, 1")
        if pos==last:
            for i in range(3): g[fr[i]].append(kload(st,i))
            if st==1: g[10].append("s_cmp_lg_u32 s61, 0")
        if os.environ.get('NOLD'): g=[[x for x in y if not x.startswith('buffer_load')] for y in g]
        o=[f"; slot {n}: stage {st} tile {t}"]
        for i in range(13): o.append(mm[i]); o+=g[i]
        out.append(o)
    return out
def nA(qg): return 7 if qg==0 else 6
LR=OK-0
def tail(qg):
    sl=slots_of(qg)
    order=[(0,0),(0,1),(0,2),(qg,6),(1,0),(1,1),(1,2),(0,3),(0,4),(0,5),(1,3),(1,4),(1,5)]
    seq=[sl[11],sl[12]]+order
    col=[color(11),color(12)]+[color(n) for n in range(13)]
    out=[]; pend=[]
    def states_since(i): return sum((int(l.split()[1])+1 if l.startswith('s_nop') else 1) for l in out[i+1:] if not l.startswith(';'))
    def place(n):
        c=0
        for _ in range(n):
            if pend and states_since(pend[0][0])>=8:
                x=pend.pop(0)[1]; out.append(x); c+=1
                if pend and 'b32' in pend[0][1] and states_since(pend[0][0])>=8: out.append(pend.pop(0)[1])
        return c
    def wr(t,q):
        if q<6: return f"ds_write_b128 v6, {R(Oreg(t)+4*q,4)} offset:{(6*t+q)*1024 if t<3 else (18+q)*1024}"
        return f"ds_write_b32 v6, v{LL+4*t} offset:{24576+1024*(t if t<3 else 3)}"
    rd0=[f"ds_read_b32 v{LRCV+2*t}, v7 offset:{24576+1024*t}" for t in range(3)]+[f"ds_read_b128 {R(RB(0)+4*q,4)}, v7 offset:{q*1024}" for q in range(6)]
    rd1=[f"ds_read_b128 {R(RB(1)+4*q,4)}, v7 offset:{(6+q)*1024}" for q in range(6)]
    rds=[]
    nb=13
    for k in range(nb+2):
        out.append(f"; tail slot {k}")
        mm=[]
        if k<nb: mm+=[(m,None) for m in qk(col[k+2],*seq[k+2])]
        st,t=seq[k]
        final = k>=2 and (t==6 or (t<3 and st==1))
        mm+=[(m,(t,q) if final else None) for q,m in enumerate(pv(col[k],st,t))]
        if k<nb: g=expgaps(col[k+1])
        elif k==nb:
            f=[x for y in expgaps(col[k+1]) for x in y]; g=[f[2*i:2*i+2] for i in range(7)]
        else: g=[[] for _ in range(7)]
        fr=(9,11,12)
        if k==0:
            for i in range(3): g[fr[i]].append(kload(1,3+i))
        if k==1: g[11].append("s_waitcnt vmcnt(6)")
        if k in (2,3):
            for i in range(3): g[fr[i]].append(vload(1,3*(k-2)+i))
        if k==2 and qg==1: g[12].append("s_waitcnt vmcnt(3)")
        if k==3 and qg==0: g[12].append("s_waitcnt vmcnt(6)")
        if k==4: g[11].append("s_waitcnt vmcnt(0)")
        if k==12: g[4]+=["s_waitcnt lgkmcnt(0)","s_barrier"]
        for i,(m,w) in enumerate(mm):
            out.append(m)
            if w: pend.append((len(out)-1, wr(*w)))
            out+=g[i]
            if k==12 and i==4: assert not pend; rds=rd0+rd1
            WG=os.environ.get('WGAPS')
            if WG and k<12:
                if i in eval(WG): place(1)
            elif not g[i]:
                if k<12: place(2 if i==12 else 1)
                else:
                    for _ in range(2 if k<14 else 3):
                        if rds: out.append(rds.pop(0))
    assert not pend and not rds, (pend,rds)
    return out

XR=MM
def common_setup():
    o=["v_and_b32 v8, 15, v0","v_lshrrev_b32 v9, 4, v0","v_lshlrev_b32 v9, 4, v9",
       "v_lshlrev_b32 v3, 4, v0","v_add_u32 v4, 4096, v3","v_add_u32 v5, 8192, v3",
       f"s_mul_i32 s48, s44, {REG}","v_add_u32 v6, s48, v3","s_xor_b32 s48, s44, 2",f"s_mul_i32 s48, s48, {REG}","v_add_u32 v7, s48, v3",
       "s_mul_i32 s48, s45, 96","s_mul_i32 s49, s46, 48","s_add_u32 s50, s48, s49",
       "s_sub_u32 s49, 48, s49","s_add_u32 s49, s48, s49",
       "s_mov_b32 s51, 37632",f"s_mov_b32 s52, {-2304}",f"s_mov_b32 s53, {21504-2688}",f"v_add_u32 v13, {XI}, v9"]
    for t in range(7):
        if t<6: o+=[f"s_add_u32 s48, s{49 if t<3 else 50}, {16*(t%3)}","v_add_u32 v10, s48, v8"]
        else: o+=["v_add_u32 v10, 192, v8"]
        o+=["v_mul_u32_u24 v11, 4682, v10","v_mul_u32_u24 v10, 192, v10","v_lshrrev_b32 v12, 17, v11","v_bfe_u32 v11, v11, 16, 1"]
        if 3<=t<6: o+=[f"v_mad_u32_u24 v14, v12, s51, v10",f"v_add_u32 v{XO+t-3}, v14, v9"]
        o+=["v_mad_i32_i24 v10, v12, s52, v10","v_mad_u32_u24 v10, v11, s53, v10",f"v_add_u32 v{XR+t}, v10, v13"]
    o+=[f"v_add_u32 v12, 2688, v13","v_cmp_gt_u32 vcc, 4, v8","s_nop 1",f"v_cndmask_b32 v{XR+6}, v12, v{XR+6}, vcc"]
    o+=["v_lshrrev_b32 v10, 2, v0","s_mul_i32 s48, s44, 6","v_add_u32 v10, s48, v10","v_and_b32 v11, 3, v0",
        f"v_lshlrev_b32 v{XL}, 4, v11",
        "v_lshrrev_b32 v13, 3, v10","v_lshlrev_b32 v13, 11, v13",
        "v_and_b32 v14, 1, v10","v_lshl_add_u32 v13, v14, 10, v13",
        "v_bfe_u32 v14, v10, 1, 2","v_lshl_add_u32 v13, v14, 8, v13",
        f"v_add_u32 v{XA}, v13, v{XL}",f"v_mov_b32 v12, {OOB}",
        "v_mul_u32_u24 v11, 192, v11","v_lshl_add_u32 v11, v10, 3, v11",f"v_add_u32 v11, {6*43008+24*192}, v11",
        "v_cmp_gt_u32 vcc, 24, v0",f"v_and_b32 v{XA}, 0x1fff, v{XA}","s_nop 0",f"v_cndmask_b32 v{XOUT}, v12, v11, vcc"]
    return o
assert all((q*4682)>>16==q//14 and (q*4682)>>17==q//28 for q in range(208))
assert all((c*5462)>>16==c//12 for c in range(192))
def xreads(): return [f"ds_read_b128 {R(XF+12*t+4*s,4)}, v{XR+t} offset:{64*s}" for t in range(7) for s in range(3)]
def init_acc():
    return [f"v_accvgpr_write_b32 a{r}, 0" for r in range(96)]+[f"v_mov_b32 v{r}, 0" for r in range(LL,LL+100)]
def init_const():
    return [f"v_mov_b32 v{MM+r}, 0" for r in range(28)]
def dma_loop(label, vs, srdreg, step, mod=""):
    return [label+":","s_mov_b32 m0, s49","s_add_u32 s49, s49, 3072"]+\
           [f"buffer_load_dwordx4 v{vs[j]}, {SR(srdreg)}, s48 offen offset:{1024*j} {mod} lds" for j in range(3)]+\
           [f"s_add_u32 s48, s48, {step}","s_cmp_lt_u32 s49, s50",f"s_cbranch_scc1 {label}"]

N="standalone__window_attn_twins__vision_kernel"
PF="buffer_load_dwordx4 a[252:255], v9, s[88:91], 0 offen" if int(os.environ.get("PF","1")) else "s_nop 0"
entry=["s_cmp_ge_u32 s2, 256","s_cbranch_scc1 L_done",
  "s_load_dwordx8 s[4:11], s[0:1], 0","s_load_dwordx4 s[12:15], s[0:1], 32","s_load_dwordx2 s[16:17], s[0:1], 48",
  "s_getpc_b64 s[88:89]","L_pc:","s_lshr_b32 s47, s2, 3","s_lshl_b32 s48, s47, 12","v_lshl_add_u32 v9, v0, 4, s48","s_mov_b32 s90, L_end-L_pc","s_mov_b32 s91, 0x00020000",
  "v_and_b32 v9, 0x7fff, v9","v_lshrrev_b32 v8, 6, v0","v_and_b32 v0, 63, v0",
  PF,"v_lshlrev_b32 v20, 4, v0","v_readfirstlane_b32 s44, v8",f"v_mov_b32 v18, {OOB}",
  "s_and_b32 s48, s2, 7","s_mul_i32 s47, s47, 301056","s_mul_i32 s48, s48, 5376","s_add_u32 s47, s47, s48",
  f"s_mov_b32 s{sA+3}, 0x00020000",
  "s_cmp_ge_u32 s44, 2","s_cbranch_scc1 L_wpath"]
ids=["s_and_b32 s45, s44, 1","s_lshr_b32 s46, s44, 1","s_mul_i32 s63, s46, 24576","s_mov_b32 s62, 0","v_and_b32 v16, 15, v0","v_lshrrev_b32 v17, 4, v0"]
pool0=["v_cmp_gt_u32 vcc, 40, v0","s_mul_i32 s48, s44, 2688","s_add_u32 s48, s48, s47","s_mul_i32 s49, s44, 21504",f"s_add_u32 s49, s49, {XI}","s_add_u32 s50, s49, 21504",
  "v_cndmask_b32 v21, v18, v20, vcc",f"s_mov_b32 s{sA+2}, {XB}","s_waitcnt lgkmcnt(0)",f"s_mov_b32 s{sA}, s4",f"s_mov_b32 s{sA+1}, s5"]+stamp(0)
pool0+=dma_loop("L_xdma",[20,20,21],sA,43008,PMOD)+["s_branch L_pool"]
PX=VF
pool=ids+srd(sO,12,OUTSZ)+srd(sW,16,WSB)+srd(sD,14,256)
pool+=["v_and_b32 v21, 1, v16","v_lshlrev_b32 v21, 4, v21","v_mov_b32 v22, 0x3f80","v_lshlrev_b32 v21, v21, v22","v_lshrrev_b32 v22, 1, v16"]
for d in range(8): pool+=[f"v_cmp_eq_u32 vcc, {d}, v22","s_nop 1",f"v_cndmask_b32 v{24+d}, 0, v21, vcc"]
pool+=[f"v_mov_b32 v8, {FLAG}","v_mov_b32 v9, 0","ds_write_b32 v8, v9"]
pool+=["v_lshrrev_b32 v21, 1, v17","v_mul_u32_u24 v21, 192, v21","v_lshl_add_u32 v21, v16, 4, v21","v_and_b32 v22, 1, v17","v_lshl_add_u32 v21, v22, 3, v21",
       "s_mul_i32 s48, s44, 384",f"s_add_u32 s48, s48, {XS}","v_add_u32 v21, s48, v21","v_cmp_gt_u32 s[54:55], 12, v16",
       "s_sub_u32 s50, s50, 21504","v_lshl_add_u32 v39, v16, 4, s50","v_mul_u32_u24 v36, 192, v17","v_add_u32 v36, v36, v39","v_cmp_gt_u32 vcc, 3, v17",
       "v_add_u32 v39, 2688, v39","v_add_u32 v37, 768, v36",f"v_add_u32 v38, {768+1344}, v36","v_cndmask_b32 v37, v39, v37, vcc","v_cndmask_b32 v38, v39, v38, vcc"]
pool+=init_acc()+stamp(1)
def prd(r):
    b=PX+16*(r%2)
    return [f"ds_read_b128 {R(b,4)}, v36 offset:{3072*r}",f"ds_read_b128 {R(b+4,4)}, v37 offset:{3072*r}",
            f"ds_read_b128 {R(b+8,4)}, v36 offset:{3072*r+1344}",f"ds_read_b128 {R(b+12,4)}, v38 offset:{3072*r}"]
def pmm(r): return [M16(32, 24+4*(j//2), PX+16*(r%2)+4*j, "0" if (r,j)==(0,0) else None) for j in range(4)]
for r in range(7):
    pool+=[f"s_waitcnt vmcnt({3*(6-r)})"]+prd(r)
    if r: pool+=["s_waitcnt lgkmcnt(4)"]+pmm(r-1)
m=pmm(6)
for j in range(4): pool+=[f"s_waitcnt lgkmcnt({3-j})",m[j]]
pool+=["s_nop 7"]+[f"v_mul_f32 v{32+i}, {f32(1/49)}, v{32+i}" for i in range(4)]
pool+=["v_cvt_pk_bf16_f32 v32, v32, v33","v_cvt_pk_bf16_f32 v33, v34, v35","s_mov_b64 exec, s[54:55]","ds_write_b64 v21, v[32:33]","s_mov_b64 exec, -1",
       "s_waitcnt lgkmcnt(0)"]+stamp(2)+["s_barrier"]
pool+=common_setup()+xreads()+init_const()
pool+=["s_cmp_lg_u32 s44, 0","s_cbranch_scc1 L_rdy","v_mov_b32 v9, 0","s_mov_b32 s49, 0x200000"]
rpoll=[f"buffer_load_dword v11, v9, {SR(sD)}, 0 offen sc1","s_sub_u32 s49, s49, 1","s_cbranch_scc1 L_rdy","s_waitcnt vmcnt(0)",
  "v_cmp_eq_u32 vcc, 0, v11","s_nop 1","s_cbranch_vccnz L_rpoll"]
rdy=["s_barrier","s_branch L_sync"]
wp0=["s_sub_u32 s54, s44, 2"]
for j in range(3):
    wp0+=[f"v_add_u32 v19, {64*j}, v0","v_mul_u32_u24 v24, 5462, v19","v_lshlrev_b32 v19, 4, v19","v_lshrrev_b32 v24, 16, v24",
          "v_mul_u32_u24 v24, 192, v24",f"v_add3_u32 v{21+j}, v24, v19, s{[92,93,94][j]}"]
wp0=[f"s_mov_b32 s92, 0","s_mov_b32 s93, -1024","s_mov_b32 s94, -2048"]+wp0
wp0+=["s_mul_i32 s48, s54, 192","s_mul_i32 s49, s54, 36864","s_add_u32 s50, s49, 18432",f"s_mov_b32 s{sA+2}, 36864",
     "s_lshl_b32 s59, s2, 2","s_add_u32 s59, s59, s44","s_cmp_lg_u32 s59, 3",
     "s_waitcnt lgkmcnt(0)",f"s_mov_b32 s{sA}, s8",f"s_mov_b32 s{sA+1}, s9"]+srd(sW,16,WSB)+["s_cbranch_scc1 L_nz"]
wz=["v_lshlrev_b32 v29, 7, v0"]+[f"v_mov_b32 v{32+i}, 0" for i in range(4)]+[f"s_mov_b32 s51, {FLG}",f"buffer_store_dwordx4 v[32:35], v29, {SR(sW)}, s51 offen sc1"]
wp=stamp(0)+dma_loop("L_w1dma",[21,22,23],sA,6144)
wp+=["s_cmp_eq_u32 s54, 0",f"s_cselect_b32 s{sB}, s6, s10",f"s_cselect_b32 s{sB+1}, s7, s11",f"s_mov_b32 s{sB+2}, 18432",f"s_mov_b32 s{sB+3}, 0x00020000",
     "s_mov_b32 s48, 0","s_add_u32 s50, s50, 18432"]+dma_loop("L_w2dma",[20,20,20],sB,3072)
wp+=srd(sD,14,256)+["s_cmp_lg_u32 s59, 3","s_cbranch_scc1 L_wj","v_mov_b32 v32, 1","v_mov_b32 v33, 0","s_waitcnt vmcnt(36)","s_mov_b64 exec, 1",
     f"buffer_store_dword v32, v33, {SR(sD)}, 0 offen sc1","s_mov_b64 exec, -1"]
wj=ids
wj+=["s_mul_i32 s55, s54, 36864","v_lshrrev_b32 v22, 2, v16","v_and_b32 v23, 3, v16",
     "v_lshl_add_u32 v44, v17, 3, v22","v_mul_u32_u24 v44, 192, v44","v_lshl_add_u32 v44, v23, 4, v44","v_add_u32 v44, s55, v44",
     "v_lshl_add_u32 v47, v22, 3, v23","v_mul_u32_u24 v47, 192, v47","v_lshl_add_u32 v47, v17, 4, v47",
     "v_mul_u32_u24 v45, 192, v23","v_lshl_add_u32 v45, v17, 4, v45",f"v_add_u32 v45, {XS}, v45",
     "v_cmp_gt_u32 vcc, 4, v16","v_cmp_gt_u32 s[52:53], 16, v0","s_cmp_eq_u32 s54, 0","s_cselect_b64 vcc, vcc, s[52:53]","s_nop 1","v_cndmask_b32 v46, v18, v20, vcc",
     "s_lshr_b32 s56, s2, 3","s_mul_i32 s56, s56, 12288","s_bfe_u32 s57, s2, 0x10002","s_and_b32 s58, s2, 3"]
wj+=stamp(1)+["s_waitcnt vmcnt(18)"]
for nt in range(6):
    for s_ in range(3):
        for h in range(2): wj.append(f"ds_read_b64_tr_b16 {R(W1(3*nt+s_)+2*h,2)}, v44 offset:{(32*s_+4*h)*192+base(nt)*2}")
D1=8; XSF=OX; KB=32
wj+=["s_waitcnt lgkmcnt(0)"]+stamp(2)+["s_cmp_eq_u32 s54, 0","s_cbranch_scc0 L_vp"]
def step1(rd):
    o=["s_barrier"]+[f"ds_read_b128 {R(XSF+4*s_,4)}, v45 offset:{64*s_}" for s_ in range(3)]+["s_waitcnt vmcnt(0)","s_waitcnt lgkmcnt(0)"]
    per=len(rd)//18
    for nt in range(6):
        for s_ in range(3):
            o.append(M16(D1+4*nt, W1(3*nt+s_), XSF+4*s_, "0" if s_==0 else None))
            o+=rd[per*(3*nt+s_):per*(3*nt+s_+1)]
    for u in range(3):
        if u==2: o.append("s_nop 1")
        for e in range(2):
            for z in range(2): o.append(f"v_cvt_pk_bf16_f32 v{KB+4*u+2*e+z}, v{D1+8*u+4*e+2*z}, v{D1+8*u+4*e+2*z+1}")
    return o+["s_waitcnt lgkmcnt(0)","s_nop 0"]
wq=[f"ds_read_b128 {R(W2(3*ct+u),4)}, v47 offset:{18432+base(ct)*192+64*u}" for ct in range(6) for u in range(3)]
wtr=[f"ds_read_b64_tr_b16 {R(W2(3*ct+u)+2*h,2)}, v44 offset:{18432+(32*u+4*h)*192+base(ct)*2}" for ct in range(6) for u in range(3) for h in range(2)]
sc=f32(96**-0.5*math.log2(math.e))
kp=step1(wq)+[M16(D1+4*ct, W2(3*ct+u), KB+4*u, "0" if u==0 else None) for ct in range(6) for u in range(3)]
kp+=[f"s_mov_b32 s50, {sc}",f"s_mov_b32 s51, {sc}","s_mul_i32 s57, s57, 3072","s_add_u32 s56, s56, s57","s_lshl_b32 s58, s58, 6","s_add_u32 s56, s56, s58"]
for u in range(3):
    if u==2: kp.append("s_nop 1")
    kp+=[f"v_pk_mul_f32 {R(D1+8*u+2*i,2)}, {R(D1+8*u+2*i,2)}, s[50:51]" for i in range(4)]
    kp+=[f"v_cvt_pk_bf16_f32 v{KB+4*u+i}, v{D1+8*u+2*i}, v{D1+8*u+2*i+1}" for i in range(4)]
    kp.append(f"buffer_store_dwordx4 {R(KB+4*u,4)}, v46, {SR(sW)}, s56 offen offset:{1024*u} {KVMOD}")
kp.append("s_branch L_pj")
vp=step1(wtr)+[M16(D1+4*ct, KB+4*u, W2(3*ct+u), "0" if u==0 else None) for ct in range(6) for u in range(3)]
vp+=["s_lshl_b32 s57, s57, 3","s_add_u32 s56, s56, s57","s_lshl_b32 s58, s58, 8","s_add_u32 s56, s56, s58","s_add_u32 s56, s56, 6144","s_add_u32 s57, s56, 4096"]
for ct in range(6):
    vp+=[f"v_cvt_pk_bf16_f32 v{D1+4*ct}, v{D1+4*ct}, v{D1+4*ct+1}",f"v_cvt_pk_bf16_f32 v{D1+4*ct+1}, v{D1+4*ct+2}, v{D1+4*ct+3}",
         f"buffer_store_dwordx2 {R(D1+4*ct,2)}, v46, {SR(sW)}, s{56 if ct<4 else 57} offen offset:{1024*(ct%4)} {KVMOD}"]
pj=(stamp(5) if os.environ.get('P1') else [])+["s_waitcnt vmcnt(0)"]+(stamp(6) if os.environ.get('P1') else [])+["s_barrier"]+srd(sO,12,OUTSZ)+common_setup()+xreads()+init_const()+init_acc()
sync=(stamp(3) if not os.environ.get('P2') else [])+["s_cmp_lg_u32 s44, 0","s_cbranch_scc1 L_go",
  "s_lshr_b32 s48, s2, 4","s_lshl_b32 s48, s48, 7",f"s_add_u32 s48, s48, {FLG}",
  "v_mov_b32 v8, 1","v_mov_b32 v9, 0","v_and_b32 v10, 15, v0","v_lshlrev_b32 v10, 7, v10","v_mov_b32 v11, 1","s_mov_b64 exec, 1",
  f"buffer_atomic_add v8, v9, {SR(sW)}, s48 offen sc0 sc1","s_mov_b32 s49, 0x200000",f"s_mov_b32 s50, {FLG+4096}","s_waitcnt vmcnt(0)",
  "v_cmp_eq_u32 vcc, 15, v8","s_and_b64 exec, exec, vcc","s_cbranch_execz L_nl","s_add_u32 s48, s48, 4096",
  f"buffer_store_dword v11, v9, {SR(sW)}, s48 offen sc1","L_nl:","s_mov_b64 exec, -1"]
SLEEP=int(os.environ.get('SLEEP','0'))
poll=([f"s_sleep {SLEEP}"] if SLEEP else [])+[f"buffer_load_dword v12, v10, {SR(sW)}, s50 offen sc1","s_sub_u32 s49, s49, 1","s_cbranch_scc1 L_go","s_waitcnt vmcnt(0)",
  "v_cmp_ne_u32 vcc, 1, v12","s_nop 1","s_cbranch_vccnz L_poll"]
go=[f"v_mov_b32 v{ONES+r}, 0x3f803f80" for r in range(4)]+["s_waitcnt lgkmcnt(0)","s_barrier"]+stamp(4)
pas=["s_mov_b32 s60, s63"]+[kload(0,f) for f in range(6)]+[vload(0,c) for c in range(6)]+["s_add_u32 s60, s60, 12288"]+[kload(1,f) for f in range(6)]
pas+=["s_mov_b32 s61, 7","s_waitcnt vmcnt(15)"]
q0=qk(0,0,0); q1=qk(1,0,1); ev=[x for y in expgaps(0) for x in y]
pas+=q0[:3]+["s_waitcnt vmcnt(12)"]+q0[3:]+q1[:3]+(stamp(5) if not os.environ.get('P1') else ['s_nop 4'])+["s_cmp_eq_u32 s45, 0"]+ev[0:2]+[q1[3]]+ev[2:4]+[q1[4]]+ev[4:6]+[q1[5]]+ev[6:]+["s_waitcnt vmcnt(6)","s_cbranch_scc0 L_s2_1","s_branch L_s2_0"]
def chk(reg): return [f"v_cmp_nle_f32 vcc, s48, v{reg}","s_or_b64 s[64:65], s[64:65], vcc",f"v_cmp_nge_f32 vcc, s49, v{reg}","s_or_b64 s[64:65], s[64:65], vcc"]
LR=LRCV
epi=(stamp(6) if not os.environ.get('P1') else [])+[f"v_add_u32 v28, {2*REG}, v{XA}",f"v_add_u32 v29, {2*REG}, v{XL}"]
epi+=[f"s_mov_b32 s48, {f32(2.0**-20)}",f"s_mov_b32 s49, {f32(2.0**120)}","s_mov_b64 s[64:65], 0","s_waitcnt lgkmcnt(6)"]
late=[f"ds_read_b128 {R(RB(2)+4*q,4)}, v7 offset:{(12+q)*1024}" for q in range(6)]
late+=[f"ds_read_b32 v{24+w}, v{XL if w<2 else 29} offset:{(w%2)*REG+27648}" for w in range(4)]
late+=[f"ds_read_b128 {R(8+4*w,4)}, v{XA if w<2 else 28} offset:{(w%2)*REG+18432}" for w in range(4)]
epi+=[f"v_add_f32 v{LR+2*t}, v{LR+2*t}, v{LL+12+4*t}" for t in range(2)]
epi+=[f"v_rcp_f32 v{LR+1+2*t}, v{LR+2*t}" for t in range(2)]
issued=12; nan=[]
for t in range(3):
    for u in range(3):
        need=6*t+2*u+2
        if t>0: epi.append(f"s_waitcnt lgkmcnt({min(15,issued-need)})")
        o=OK+24*t+8*u; rb=RB(t)+8*u
        epi+=[f"v_pk_add_f32 {R(o+2*i,2)}, {R(o+2*i,2)}, {R(rb+2*i,2)}" for i in range(4)]
        for _ in range(3):
            if late: epi.append(late.pop(0)); issued+=1
        if (t,u)==(0,1): epi+=[f"v_add_f32 v{LR+4}, v{LR+4}, v{LL+20}",f"v_rcp_f32 v{LR+5}, v{LR+4}"]
        epi+=[f"v_pk_mul_f32 {R(o+2*i,2)}, {R(o+2*i,2)}, {R(LR+2*t,2)} op_sel:[0,1] op_sel_hi:[1,1]" for i in range(4)]
        epi+=[f"v_cvt_pk_bf16_f32 v{o+i}, v{o+2*i}, v{o+2*i+1}" for i in range(4)]
        epi.append(f"buffer_store_dwordx4 {R(o,4)}, v{XO+t}, {SR(sO)}, s47 offen offset:{64*u} {OUTMOD}")
        if os.environ.get('NOST'): epi.pop()
        nan.append(o)
assert not late
epi+=["s_waitcnt lgkmcnt(0)","v_add_f32 v24, v24, v25","v_add_f32 v26, v26, v27","v_pk_add_f32 v[8:9], v[8:9], v[12:13]","v_add_f32 v24, v24, v26",
      "v_pk_add_f32 v[10:11], v[10:11], v[14:15]","v_rcp_f32 v26, v24","v_pk_add_f32 v[16:17], v[16:17], v[20:21]","v_pk_add_f32 v[18:19], v[18:19], v[22:23]",
      "v_pk_add_f32 v[8:9], v[8:9], v[16:17]","v_pk_add_f32 v[10:11], v[10:11], v[18:19]",
      "v_pk_mul_f32 v[8:9], v[8:9], v[26:27] op_sel_hi:[1,0]","v_pk_mul_f32 v[10:11], v[10:11], v[26:27] op_sel_hi:[1,0]",
      "v_cvt_pk_bf16_f32 v8, v8, v9","v_cvt_pk_bf16_f32 v9, v10, v11",
      f"buffer_store_dwordx2 v[8:9], v{XOUT}, {SR(sO)}, s47 offen"]
epi+=stamp(7)+stampdump()
epi+=["s_cmp_lg_u32 s62, 0","s_cbranch_scc1 L_done"]
epi+=["v_cmp_gt_u32 s[52:53], 24, v0"]+[f"v_mov_b32 v{12+r}, 0" for r in range(4)]+["v_mov_b32 v10, 0","v_mov_b32 v11, 0"]
epi+=["v_cndmask_b32 v8, 0, v8, s[52:53]","v_cndmask_b32 v9, 0, v9, s[52:53]"]
epi+=[M16(16,12,nan[0],"0")]+[M16(16,12,o) for o in nan[1:]]+[M16(16,12,8)]
epi+=chk(24)+chk(LR)+chk(LR+2)+chk(LR+4)
epi+=[f"v_mov_b32 v20, {FLAG}","v_mov_b32 v21, 1","s_nop 2","v_cmp_u_f32 vcc, v16, v16","s_or_b64 s[64:65], s[64:65], vcc",
      "s_cmp_eq_u64 s[64:65], 0","s_cbranch_scc1 L_ok","ds_write_b32 v20, v21"]
ok=["s_waitcnt lgkmcnt(0)","s_barrier","ds_read_b32 v21, v20","s_waitcnt lgkmcnt(0)","v_readfirstlane_b32 s48, v21","s_nop 3",
    "s_cmp_eq_u32 s48, 0","s_cbranch_scc1 L_done"]
fb=["s_waitcnt vmcnt(0)"]+[f"v_mov_b32 v{MM+4*t}, 0xff800000" for t in range(7)]+["s_mov_b32 s60, s63","s_mov_b32 s61, 16"]
fbl=[kload(0,f) for f in range(6)]+["s_waitcnt vmcnt(0)"]
for t in range(7):
    fbl+=[M16(S0+4*k, KF+4*(3*k+j), XF+12*t+4*j, "0" if j==0 else None) for k in range(2) for j in range(3)]
    fbl+=["s_nop 7"]+[f"v_max3_f32 v{MM+4*t}, v{S0+2*i}, v{S0+2*i+1}, v{MM+4*t}" for i in range(4)]
fbl+=["s_bitcmp1_b32 s61, 0","s_cselect_b32 s48, 24576, 0","s_add_u32 s60, s60, s48","s_add_u32 s60, s60, 12288","s_sub_u32 s61, s61, 1","s_cmp_lg_u32 s61, 0","s_cbranch_scc1 L_fb"]
fb2=[f"ds_write_b32 v6, v{MM+4*t} offset:{1024*t}" for t in range(7)]
fb2+=["v_and_b32 v8, 0x300, v3","v_sub_u32 v9, v6, v8","v_sub_u32 v10, v7, v8","s_waitcnt lgkmcnt(0)","s_barrier"]
for t in range(7):
    tp=(t+3)%6 if t<6 else 6
    for G in range(4): fb2+=[f"ds_read_b32 v{12+G}, v9 offset:{1024*t+256*G}",f"ds_read_b32 v{16+G}, v10 offset:{1024*tp+256*G}"]
    fb2+=["s_waitcnt lgkmcnt(0)","v_max3_f32 v12, v12, v13, v14","v_max3_f32 v12, v12, v15, v16","v_max3_f32 v12, v12, v17, v18","v_max_f32 v12, v12, v19"]
    fb2+=[f"v_sub_f32 v{MM+4*t+i}, 0, v12" for i in range(4)]
fb2+=init_acc()+["s_barrier","s_mov_b32 s62, 1","s_branch L_pass"]

flat=lambda x: [l for y in x for l in y]
B=[body(0),body(1)]; T=[tail(0),tail(1)]
out=[]
HDR=open('standalone__window_attn_twins__vision.s.ref').read().split('\n')
out+=HDR[:10]
out.append(f"; @launch grid=(256,1,1) block=(256,1,1) lds={LDSB}")
out+=['.amdgcn_target "amdgcn-amd-amdhsa--gfx950"',".text",f".globl {N}",".p2align 8",f".type {N},@function",f"{N}:"]
def E(lines,label=None,align=False):
    if align: out.append(".p2align 6")
    if label: out.append(label+":")
    out.extend(l if l.endswith(':') else "    "+l for l in lines)
E(entry); E(pool0); E(wp0,"L_wpath"); E(wz); E(wp,"L_nz"); E(wj,"L_wj"); E(kp); E(vp,"L_vp"); E(pj,"L_pj"); E(["s_branch L_sync"])
E(pool,"L_pool"); E(rpoll,"L_rpoll"); E(["s_barrier"],"L_rdy")
E(sync,"L_sync"); E(poll,"L_poll"); E(go,"L_go"); E(pas,"L_pass")
for q in range(2):
    E(flat(B[q][:2]),f"L_loop{q}",True); E(flat(B[q][2:]),f"L_s2_{q}"); E([f"s_cbranch_scc1 L_loop{q}"]); E(stamp(3) if os.environ.get('P2') else []); E(T[q])
    if q==0: E(["s_branch L_epi"])
E(epi,"L_epi"); E(ok,"L_ok"); E(fb); E(fbl,"L_fb"); E(fb2); E(["s_endpgm","L_end:"],"L_done")
out+=['.section .rodata,"a"',".p2align 6",f".amdhsa_kernel {N}","  .amdhsa_next_free_vgpr 512","  .amdhsa_next_free_sgpr 96","  .amdhsa_accum_offset 256",
 "  .amdhsa_group_segment_fixed_size 0","  .amdhsa_kernarg_size 56","  .amdhsa_user_sgpr_count 2","  .amdhsa_user_sgpr_kernarg_segment_ptr 1",
 "  .amdhsa_system_sgpr_workgroup_id_x 1",".end_amdhsa_kernel"]
open(sys.argv[1],'w').write("\n".join(out)+"\n")
bad=0
bad+=hz.check(entry+pool0+pool+rpoll+rdy+sync+poll+go+pas,'pool')
bad+=hz.check(entry+wp0+wp+wj+kp+pj+sync+go+pas,'kpath')
bad+=hz.check(entry+wp0+wz+wp+wj+vp+pj,'vpath')
for q in range(2):
    bad+=hz.check(pas+flat(B[q][2:])+["s_cbranch x"]+flat(B[q])+["s_cbranch x"]+T[q]+epi+ok+fb+fbl+fbl+fb2+pas,f'main{q}')
print("hazards:",bad)
```

```python
import sys, struct, math, os
import hz
DIAG=int(os.environ.get('DIAG','0'))
OUTMOD=os.environ.get('OUTMOD','')
PMOD=os.environ.get('PMOD','nt')
KVMOD=os.environ.get('KVMOD','sc1')
XMOD=os.environ.get('XMOD','')
OUTSZ=int(os.environ.get('OUTSZ','9633792'))
def R(x,n=1):
    if x>=256: return f"a{x-256}" if n==1 else f"a[{x-256}:{x-256+n-1}]"
    return f"v{x}" if n==1 else f"v[{x}:{x+n-1}]"
def M16(d,a,b,c=None):
    c = R(d,4) if c is None else (c if isinstance(c,str) else R(c,4))
    return f"v_mfma_f32_16x16x32_bf16 {R(d,4)}, {R(a,4)}, {R(b,4)}, {c}"
def f32(x): return "0x%08x"%struct.unpack("<I",struct.pack("<f",x))[0]
def base(ct): return 32*(ct//2)+4*(ct%2)
XB=9633792; WSB=0x10000000; OOB=0x40000000
FLG=0x80000
REG=28672; XI=73728; XS=116736; FLAG=XS+768; LDSB=FLAG+64
assert all((q*2341)>>16==q//28 for q in range(208))
assert all((c*5462)>>16==c//12 for c in range(192))
S0=8; P0=32; P6=80; ONES=84; IDX=88; MM=92; OK=120; VF=192; XO=240; T2=56; LL=256+228
OS=256; OX=256+72; XF=256+96; KF=256+180; ASP=256+228
XA=1; XL=2; XOUT=243; LRCV=MM
sX=20; sO=24; sW=28; sA=32; sB=36; sD=40
def SR(d): return f"s[{d}:{d+3}]"
def srd(d, lo, size): return [f"s_mov_b32 s{d}, s{lo}", f"s_mov_b32 s{d+1}, s{lo+1}", f"s_mov_b32 s{d+2}, {size}", f"s_mov_b32 s{d+3}, 0x00020000"]
def Oreg(t): return OS+24*t if t<3 else (OK+24*(t-3) if t<6 else OX)
def RB(t): return [P0,VF,VF+24][t]
def Preg(st,t): return P0+8*t+4*st if t<6 else P6
def W1(i): return KF+4*i if i<12 else ASP+4*(i-12)
def W2(i): return VF+4*i if i<12 else T2+4*(i-12)
nst=[0]
def stamp(idx):
    if not DIAG: return []
    return ["s_memrealtime s[66:67]","s_memtime s[68:69]","s_waitcnt lgkmcnt(0)",f"s_mov_b32 s{72+2*idx}, s66",f"s_mov_b32 s{73+2*idx}, s68"]
def stampdump():
    if not DIAG: return []
    o=["s_lshl_b32 s66, s2, 2","s_add_u32 s66, s66, s44","s_lshl_b32 s66, s66, 6",f"s_add_u32 s66, s66, {0x100000}","v_mov_b32 v8, 0"]
    for i in range(8):
        o+=[f"v_mov_b32 v10, s{72+2*i}",f"v_mov_b32 v11, s{73+2*i}",f"buffer_store_dwordx2 v[10:11], v8, {SR(sW)}, s66 offen offset:{8*i}","s_nop 1"]
    return o

def kload(stage,f):
    v,o=(3,f*1024) if f<4 else (4,(f-4)*1024)
    return f"buffer_load_dwordx4 {R(KF+24*stage+4*f,4)}, v{v}, {SR(sW)}, s60 offen offset:{o}"
def vload(stage,ct):
    v,o=(4,2048+ct*1024) if ct<2 else (5,(ct-2)*1024)
    return f"buffer_load_dwordx4 {R(VF+24*stage+4*ct,4)}, v{v}, {SR(sW)}, s60 offen offset:{o}"
def slots_of(qg):
    a=[(0,t) for t in range(6)]+([(0,6)] if qg==0 else [])
    b=[(1,t) for t in range(6)]+([(1,6)] if qg==1 else [])
    return a+b
color=lambda n: (n%13)%2 if n%13<12 else 2
def qk(c,st,t):
    S=S0+8*c
    return [M16(S+4*k, KF+24*st+4*(3*k+j), XF+12*t+4*j, MM+4*t if j==0 else None) for k in range(2) for j in range(3)]
def pv(st,t):
    P=Preg(st,t)
    o=[M16(Oreg(t)+4*q, VF+24*st+4*q, P) for q in range(6)]
    if t==6: o.append(M16(LL+4*t, ONES, P))
    elif st==1: o.append(f"v_smfmac_f32_16x16x64_bf16 {R(LL+4*t,4)}, {R(ONES,4)}, {R(P0+8*t,8)}, v{IDX}")
    return o
def expgaps(c,st,t,n=13):
    S=S0+8*c; P=Preg(st,t)
    E=lambda j: f"v_exp_f32 v{S+j}, v{S+j}"
    C=lambda j: f"v_cvt_pk_bf16_f32 v{P+j}, v{S+2*j}, v{S+2*j+1}"
    return [[E(0)],[E(1)],[E(2)],[E(3)],[E(4)],[C(0),C(1)],[E(5)],[E(6)],[E(7)],[],[C(2),C(3)],[],[]][:n]
def body(qg):
    sl=slots_of(qg); out=[]
    for n,(st,t) in enumerate(sl):
        idx=[i for i,(s2,_) in enumerate(sl) if s2==st]
        pos=n-idx[0]; last=len(idx)-1
        mm=qk(color(n),st,t)+pv(*sl[(n-2)%13])
        g=expgaps(color(n-1),*sl[(n-1)%13],n=len(mm)); fr=(9,11); e=len(mm)-1
        if pos in (0,1):
            for i in range(2): g[fr[i]].append(kload(1-st,2+2*pos+i))
        if pos==1: g[e].append("s_waitcnt vmcnt(6)")
        if pos in (2,3,4):
            for i in range(2): g[fr[i]].append(vload(1-st,2*(pos-2)+i))
        if pos==last-1:
            g[e if last==5 else 9].append(f"s_add_u32 s60, s60, {36864 if st==0 else 12288}")
        if pos==2 and st==1: g[e].append("s_sub_u32 s61, s61, 1")
        if pos==last:
            for i in range(2): g[fr[i]].append(kload(st,i))
            g[e].append("s_waitcnt vmcnt(8)")
        if pos==last and st==1: g[10].append("s_cmp_lg_u32 s61, 0")
        if os.environ.get('NOLD'): g=[[x for x in y if not x.startswith('buffer_load')] for y in g]
        o=[f"; slot {n}: stage {st} tile {t}"]
        for i in range(len(mm)): o.append(mm[i]); o+=g[i]
        out.append(o)
    return out
def tail(qg):
    sl=slots_of(qg)
    order=[(0,0),(0,1),(0,2),(0,3),(1,0),(1,1),(1,2),(qg,6),(0,4),(0,5),(1,3),(1,4),(1,5)]
    seq=[sl[11],sl[12]]+order
    col=[color(11),color(12)]+[color(n) for n in range(13)]
    out=[]; pend=[]
    def states_since(i): return sum((int(l.split()[1])+1 if l.startswith('s_nop') else 1) for l in out[i+1:] if not l.startswith(';'))
    def place(n):
        for _ in range(n):
            if pend and states_since(pend[0][0])>=8:
                out.append(pend.pop(0)[1])
                if pend and 'b128' not in pend[0][1] and states_since(pend[0][0])>=8: out.append(pend.pop(0)[1])
    def wr(t,q):
        if q<6: return f"ds_write_b128 v6, {R(Oreg(t)+4*q,4)} offset:{(6*t+q)*1024 if t<3 else (18+q)*1024}"
        if t==6: return f"ds_write_b32 v6, {R(LL+4*t)} offset:{24576+3072}"
        return f"ds_write_b64 v6, {R(LL+4*t,2)} offset:{24576+1024*t}"
    rd0=[f"ds_read_b64 {R(LRCV+4*t,2)}, v7 offset:{24576+1024*t}" for t in range(3)]+[f"ds_read_b128 {R(RB(0)+4*q,4)}, v7 offset:{q*1024}" for q in range(6)]
    rd1=[f"ds_read_b128 {R(RB(1)+4*q,4)}, v7 offset:{(6+q)*1024}" for q in range(6)]
    rds=[]
    nb=13
    for k in range(nb+2):
        out.append(f"; tail slot {k}")
        mm=[]
        if k<nb: mm+=[(m,None) for m in qk(col[k+2],*seq[k+2])]
        st,t=seq[k]
        final = k>=2 and (t==6 or (t<3 and st==1))
        mm+=[(m,(t,q) if final else None) for q,m in enumerate(pv(st,t))]
        if k<nb: g=expgaps(col[k+1],*seq[k+1],n=len(mm))
        elif k==nb:
            f=[x for y in expgaps(col[k+1],*seq[k+1]) for x in y]; g=[f[2*i:2*i+2] for i in range(7)]
        else: g=[[] for _ in range(7)]
        fr=(9,11); e=len(mm)-1
        if k in (0,1):
            for i in range(2): g[fr[i]].append(kload(1,2+2*k+i))
        if k==1: g[e].append("s_waitcnt vmcnt(6)")
        if k in (2,3):
            for i in range(3): g[(7,9,11)[i]].append(vload(1,3*(k-2)+i))
        if k==3: g[e].append("s_waitcnt vmcnt(6)")
        if k==6: g[5].append("s_waitcnt vmcnt(0)")
        BS,BG=12,8
        if k==BS: g[BG]+=["s_waitcnt lgkmcnt(0)","s_barrier"]
        for i,(m,w) in enumerate(mm):
            out.append(m)
            if w: pend.append((len(out)-1, wr(*w)))
            out+=g[i]
            if k==BS and i==BG: assert not pend; rds=rd0+rd1
            if k<BS or (k==BS and i<4):
                if i in ((2,5,9,11,12) if k<BS else (0,1,2,3)): place(1)
            elif not g[i]:
                for _ in range(3):
                    if rds: out.append(rds.pop(0))
    assert not pend and not rds, (pend,rds)
    return out

XR=MM
def common_setup():
    o=["v_and_b32 v8, 15, v0","v_lshrrev_b32 v9, 4, v0","v_lshlrev_b32 v9, 4, v9",
       "v_lshlrev_b32 v3, 4, v0","v_add_u32 v4, 4096, v3","v_add_u32 v5, 8192, v3",
       f"s_mul_i32 s48, s44, {REG}","v_add_u32 v6, s48, v3","s_xor_b32 s48, s44, 2",f"s_mul_i32 s48, s48, {REG}","v_add_u32 v7, s48, v3",
       "s_mul_i32 s48, s45, 96","s_mul_i32 s49, s46, 48","s_add_u32 s50, s48, s49",
       "s_sub_u32 s49, 48, s49","s_add_u32 s49, s48, s49",
       "s_mov_b32 s51, 37632",f"s_mov_b32 s52, {-2304}",f"s_mov_b32 s53, {21504-2688}",f"v_add_u32 v13, {XI}, v9"]
    for t in range(7):
        if t<6: o+=[f"s_add_u32 s48, s{49 if t<3 else 50}, {16*(t%3)}","v_add_u32 v10, s48, v8"]
        else: o+=["v_add_u32 v10, 192, v8"]
        o+=["v_mul_u32_u24 v11, 4682, v10","v_mul_u32_u24 v10, 192, v10","v_lshrrev_b32 v12, 17, v11","v_bfe_u32 v11, v11, 16, 1"]
        if 3<=t<6: o+=[f"v_mad_u32_u24 v14, v12, s51, v10",f"v_add_u32 v{XO+t-3}, v14, v9"]
        o+=["v_mad_i32_i24 v10, v12, s52, v10","v_mad_u32_u24 v10, v11, s53, v10",f"v_add_u32 v{XR+t}, v10, v13"]
    o+=[f"v_add_u32 v12, 2688, v13","v_cmp_gt_u32 vcc, 4, v8","s_nop 1",f"v_cndmask_b32 v{XR+6}, v12, v{XR+6}, vcc"]
    o+=["v_lshrrev_b32 v10, 2, v0","s_mul_i32 s48, s44, 6","v_add_u32 v10, s48, v10","v_and_b32 v11, 3, v0",
        f"v_lshlrev_b32 v{XL}, 4, v11",
        "v_lshrrev_b32 v13, 3, v10","v_lshlrev_b32 v13, 11, v13",
        "v_and_b32 v14, 1, v10","v_lshl_add_u32 v13, v14, 10, v13",
        "v_bfe_u32 v14, v10, 1, 2","v_lshl_add_u32 v13, v14, 8, v13",
        f"v_add_u32 v{XA}, v13, v{XL}",f"v_mov_b32 v12, {OOB}",
        "v_mul_u32_u24 v11, 192, v11","v_lshl_add_u32 v11, v10, 3, v11",f"v_add_u32 v11, {6*43008+24*192}, v11",
        "v_cmp_gt_u32 vcc, 24, v0",f"v_and_b32 v{XA}, 0x1fff, v{XA}","s_nop 0",f"v_cndmask_b32 v{XOUT}, v12, v11, vcc"]
    return o
assert all((q*4682)>>16==q//14 and (q*4682)>>17==q//28 for q in range(208))
assert all((c*5462)>>16==c//12 for c in range(192))
def xreads(): return [f"ds_read_b128 {R(XF+12*t+4*s,4)}, v{XR+t} offset:{64*s}" for t in range(7) for s in range(3)]
def init_acc():
    return [f"v_accvgpr_write_b32 a{r}, 0" for r in range(96)]+[f"v_accvgpr_write_b32 {R(LL+r)}, 0" for r in range(28)]+[f"v_mov_b32 v{r}, 0" for r in range(OK,OK+72)]
def init_const():
    return [f"v_mov_b32 v{MM+r}, 0" for r in range(28)]
def dma_loop(label, vs, srdreg, step, mod=""):
    return [label+":","s_mov_b32 m0, s49","s_add_u32 s49, s49, 3072"]+\
           [f"buffer_load_dwordx4 v{vs[j]}, {SR(srdreg)}, s48 offen offset:{1024*j} {mod} lds" for j in range(3)]+\
           [f"s_add_u32 s48, s48, {step}","s_cmp_lt_u32 s49, s50",f"s_cbranch_scc1 {label}"]

N="standalone__window_attn_twins__vision_kernel"
PF="buffer_load_dwordx4 a[252:255], v9, s[88:91], 0 offen" if int(os.environ.get("PF","1")) else "s_nop 0"
entry=["s_cmp_ge_u32 s2, 256","s_cbranch_scc1 L_done",
  "s_load_dwordx8 s[4:11], s[0:1], 0","s_load_dwordx4 s[12:15], s[0:1], 32","s_load_dwordx2 s[16:17], s[0:1], 48",
  "s_getpc_b64 s[88:89]","L_pc:","s_lshr_b32 s47, s2, 3","s_lshl_b32 s48, s47, 12","v_lshl_add_u32 v9, v0, 4, s48","s_mov_b32 s90, L_end-L_pc","s_mov_b32 s91, 0x00020000",
  "v_and_b32 v9, 0x7fff, v9","v_lshrrev_b32 v8, 6, v0","v_and_b32 v0, 63, v0",
  PF,"v_lshlrev_b32 v20, 4, v0","v_readfirstlane_b32 s44, v8",f"v_mov_b32 v18, {OOB}",
  "s_and_b32 s48, s2, 7","s_mul_i32 s47, s47, 301056","s_mul_i32 s48, s48, 5376","s_add_u32 s47, s47, s48",
  f"s_mov_b32 s{sA+3}, 0x00020000",
  "s_cmp_ge_u32 s44, 2","s_cbranch_scc1 L_wpath"]
ids=["s_and_b32 s45, s44, 1","s_lshr_b32 s46, s44, 1","s_mul_i32 s63, s46, 24576","s_mov_b32 s62, 0","v_and_b32 v16, 15, v0","v_lshrrev_b32 v17, 4, v0"]
pool0=["v_cmp_gt_u32 vcc, 40, v0","s_mul_i32 s48, s44, 2688","s_add_u32 s48, s48, s47","s_mul_i32 s49, s44, 21504",f"s_add_u32 s49, s49, {XI}","s_add_u32 s50, s49, 21504",
  "v_cndmask_b32 v21, v18, v20, vcc",f"s_mov_b32 s{sA+2}, {XB}","s_waitcnt lgkmcnt(0)",f"s_mov_b32 s{sA}, s4",f"s_mov_b32 s{sA+1}, s5"]+stamp(0)
pool0+=([f"s_sleep {os.environ['PDELAY']}"] if os.environ.get('PDELAY') else [])+([f"s_setprio {os.environ.get('PRIO','1')}"])+srd(sW,16,WSB)+["s_lshl_b32 s59, s2, 2","s_add_u32 s59, s59, s44","s_cmp_lg_u32 s59, 1","s_cbranch_scc1 L_xdma"]
pz=["v_lshlrev_b32 v29, 7, v0"]+[f"v_mov_b32 v{32+i}, 0" for i in range(4)]+[f"s_mov_b32 s51, {FLG}",f"buffer_store_dwordx4 v[32:35], v29, {SR(sW)}, s51 offen sc1"]
pool1=dma_loop("L_xdma",[20,20,21],sA,43008,PMOD)+(stamp(5) if os.environ.get('P3') else [])+["s_branch L_pool"]
PX=VF
pool=["s_setprio 0"]+srd(sD,14,256)+["s_cmp_lg_u32 s59, 1","s_cbranch_scc1 L_nrd","v_mov_b32 v32, 1","v_mov_b32 v33, 0","s_waitcnt vmcnt(21)","s_mov_b64 exec, 1",
     f"buffer_store_dword v32, v33, {SR(sD)}, 0 offen sc1","s_mov_b64 exec, -1","L_nrd:"]+ids+srd(sO,12,OUTSZ)
pool+=["v_and_b32 v21, 1, v16","v_lshlrev_b32 v21, 4, v21","v_mov_b32 v22, 0x3f80","v_lshlrev_b32 v21, v21, v22","v_lshrrev_b32 v22, 1, v16"]
for d in range(8): pool+=[f"v_cmp_eq_u32 vcc, {d}, v22","s_nop 1",f"v_cndmask_b32 v{24+d}, 0, v21, vcc"]
pool+=[f"v_mov_b32 v8, {FLAG}","v_mov_b32 v9, 0","ds_write_b32 v8, v9"]
pool+=["v_lshrrev_b32 v21, 1, v17","v_mul_u32_u24 v21, 192, v21","v_lshl_add_u32 v21, v16, 4, v21","v_and_b32 v22, 1, v17","v_lshl_add_u32 v21, v22, 3, v21",
       "s_mul_i32 s48, s44, 384",f"s_add_u32 s48, s48, {XS}","v_add_u32 v21, s48, v21","v_cmp_gt_u32 s[54:55], 12, v16",
       "s_sub_u32 s50, s50, 21504","v_lshl_add_u32 v39, v16, 4, s50","v_mul_u32_u24 v36, 192, v17","v_add_u32 v36, v36, v39","v_cmp_gt_u32 vcc, 3, v17",
       "v_add_u32 v39, 2688, v39","v_add_u32 v37, 768, v36",f"v_add_u32 v38, {768+1344}, v36","v_cndmask_b32 v37, v39, v37, vcc","v_cndmask_b32 v38, v39, v38, vcc"]
pool+=stamp(1)
PX=OK
def prd(r):
    b=PX+16*r
    return [f"ds_read_b128 {R(b,4)}, v36 offset:{3072*r}",f"ds_read_b128 {R(b+4,4)}, v37 offset:{3072*r}",
            f"ds_read_b128 {R(b+8,4)}, v36 offset:{3072*r+1344}",f"ds_read_b128 {R(b+12,4)}, v38 offset:{3072*r}"]
def pmm(r): return [M16(32, 24+4*(j//2), PX+16*r+4*j, "0" if (r,j)==(0,0) else None) for j in range(4)]
for r in range(7):
    pool+=[f"s_waitcnt vmcnt({3*(6-r)})"]+prd(r)
    if r>=2: pool+=["s_waitcnt lgkmcnt(8)"]+pmm(r-2)
pool+=["s_waitcnt lgkmcnt(4)"]+pmm(5)
m=pmm(6)
for j in range(4): pool+=[f"s_waitcnt lgkmcnt({3-j})",m[j]]
pool+=["s_nop 7"]+[f"v_mul_f32 v{32+i}, {f32(1/49)}, v{32+i}" for i in range(4)]
pool+=["v_cvt_pk_bf16_f32 v32, v32, v33","v_cvt_pk_bf16_f32 v33, v34, v35","s_mov_b64 exec, s[54:55]","ds_write_b64 v21, v[32:33]","s_mov_b64 exec, -1",
       "s_waitcnt lgkmcnt(0)"]+stamp(2)+["s_barrier"]
pool+=common_setup()+xreads()+init_const()+init_acc()
pool+=(stamp(3) if not os.environ.get('P2') else [])+["s_cmp_lg_u32 s44, 0","s_cbranch_scc1 L_go","v_mov_b32 v9, 0","s_mov_b32 s49, 0x200000"]
rpoll=[f"buffer_load_dword v11, v9, {SR(sD)}, 0 offen sc1","s_sub_u32 s49, s49, 1","s_cbranch_scc1 L_sync","s_waitcnt vmcnt(0)",
  "v_cmp_eq_u32 vcc, 0, v11","s_nop 1","s_cbranch_vccnz L_rpoll"]
rdy=["s_barrier","s_branch L_sync"]
wp0=["s_sub_u32 s54, s44, 2"]
for j in range(3):
    wp0+=[f"v_add_u32 v19, {64*j}, v0","v_mul_u32_u24 v24, 5462, v19","v_lshlrev_b32 v19, 4, v19","v_lshrrev_b32 v24, 16, v24",
          "v_mul_u32_u24 v24, 192, v24",f"v_add3_u32 v{21+j}, v24, v19, s{[92,93,94][j]}"]
wp0=[f"s_mov_b32 s92, 0","s_mov_b32 s93, -1024","s_mov_b32 s94, -2048"]+wp0
wp0+=["s_mul_i32 s48, s54, 192","s_mul_i32 s49, s54, 36864","s_add_u32 s50, s49, 18432",f"s_mov_b32 s{sA+2}, 36864",
     "s_waitcnt lgkmcnt(0)",f"s_mov_b32 s{sA}, s8",f"s_mov_b32 s{sA+1}, s9"]
wp=stamp(0)+([f"s_sleep {os.environ['WDELAY']}"] if os.environ.get('WDELAY') else [])+[f"s_setprio {os.environ.get('WPRIO','3')}"]+dma_loop("L_w1dma",[21,22,23],sA,6144)+["s_setprio 0"]
wp+=["s_cmp_eq_u32 s54, 0",f"s_cselect_b32 s{sB}, s6, s10",f"s_cselect_b32 s{sB+1}, s7, s11",f"s_mov_b32 s{sB+2}, 18432",f"s_mov_b32 s{sB+3}, 0x00020000",
     "s_mov_b32 s48, 0","s_add_u32 s50, s50, 18432"]+dma_loop("L_w2dma",[20,20,20],sB,3072)
wj=ids+srd(sW,16,WSB)+srd(sD,14,256)
wj+=["s_mul_i32 s55, s54, 36864","v_lshrrev_b32 v22, 2, v16","v_and_b32 v23, 3, v16",
     "v_lshl_add_u32 v44, v17, 3, v22","v_mul_u32_u24 v44, 192, v44","v_lshl_add_u32 v44, v23, 4, v44","v_add_u32 v44, s55, v44",
     "v_lshl_add_u32 v47, v22, 3, v23","v_mul_u32_u24 v47, 192, v47","v_lshl_add_u32 v47, v17, 4, v47",
     "v_mul_u32_u24 v45, 192, v23","v_lshl_add_u32 v45, v17, 4, v45",f"v_add_u32 v45, {XS}, v45",
     "v_cmp_gt_u32 vcc, 4, v16","v_cmp_gt_u32 s[52:53], 16, v0","s_cmp_eq_u32 s54, 0","s_cselect_b64 vcc, vcc, s[52:53]","s_nop 1","v_cndmask_b32 v46, v18, v20, vcc",
     "s_lshr_b32 s56, s2, 3","s_mul_i32 s56, s56, 12288","s_bfe_u32 s57, s2, 0x10002","s_and_b32 s58, s2, 3"]
wj+=stamp(1)+["s_waitcnt vmcnt(18)"]
for nt in range(6):
    for s_ in range(3):
        for h in range(2): wj.append(f"ds_read_b64_tr_b16 {R(W1(3*nt+s_)+2*h,2)}, v44 offset:{(32*s_+4*h)*192+base(nt)*2}")
D1=8; XSF=OX; KB=32
wj+=["s_waitcnt lgkmcnt(0)"]+stamp(2)+["s_cmp_eq_u32 s54, 0","s_cbranch_scc0 L_vp"]
def step1(rd):
    o=["s_barrier"]+[f"ds_read_b128 {R(XSF+4*s_,4)}, v45 offset:{64*s_}" for s_ in range(3)]+["s_waitcnt vmcnt(0)","s_waitcnt lgkmcnt(0)"]
    per=len(rd)//18
    for nt in range(6):
        for s_ in range(3):
            o.append(M16(D1+4*nt, W1(3*nt+s_), XSF+4*s_, "0" if s_==0 else None))
            o+=rd[per*(3*nt+s_):per*(3*nt+s_+1)]
    for u in range(3):
        if u==2: o.append("s_nop 1")
        for e in range(2):
            for z in range(2): o.append(f"v_cvt_pk_bf16_f32 v{KB+4*u+2*e+z}, v{D1+8*u+4*e+2*z}, v{D1+8*u+4*e+2*z+1}")
    return o+["s_waitcnt lgkmcnt(0)","v_mov_b32 v47, 0",f"buffer_load_dword v45, v47, {SR(sD)}, 0 offen sc1"]
wq=[f"ds_read_b128 {R(W2(3*ct+u),4)}, v47 offset:{18432+base(ct)*192+64*u}" for ct in range(6) for u in range(3)]
wtr=[f"ds_read_b64_tr_b16 {R(W2(3*ct+u)+2*h,2)}, v44 offset:{18432+(32*u+4*h)*192+base(ct)*2}" for ct in range(6) for u in range(3) for h in range(2)]
sc=f32(96**-0.5*math.log2(math.e))
kp=step1(wq)+[M16(D1+4*ct, W2(3*ct+u), KB+4*u, "0" if u==0 else None) for ct in range(6) for u in range(3)]
kp+=[f"s_mov_b32 s50, {sc}",f"s_mov_b32 s51, {sc}","s_mul_i32 s57, s57, 3072","s_add_u32 s56, s56, s57","s_lshl_b32 s58, s58, 6","s_add_u32 s56, s56, s58"]
for u in range(3):
    if u==2: kp.append("s_nop 1")
    kp+=[f"v_pk_mul_f32 {R(D1+8*u+2*i,2)}, {R(D1+8*u+2*i,2)}, s[50:51]" for i in range(4)]
    kp+=[f"v_cvt_pk_bf16_f32 v{KB+4*u+i}, v{D1+8*u+2*i}, v{D1+8*u+2*i+1}" for i in range(4)]
    kp.append(f"buffer_store_dwordx4 {R(KB+4*u,4)}, v46, {SR(sW)}, s56 offen offset:{1024*u} {KVMOD}")
kp.append("s_branch L_pj")
vp=step1(wtr)+[M16(D1+4*ct, KB+4*u, W2(3*ct+u), "0" if u==0 else None) for ct in range(6) for u in range(3)]
vp+=["s_lshl_b32 s57, s57, 3","s_add_u32 s56, s56, s57","s_lshl_b32 s58, s58, 8","s_add_u32 s56, s56, s58","s_add_u32 s56, s56, 6144","s_add_u32 s57, s56, 4096"]
for ct in range(6):
    vp+=[f"v_cvt_pk_bf16_f32 v{D1+4*ct}, v{D1+4*ct}, v{D1+4*ct+1}",f"v_cvt_pk_bf16_f32 v{D1+4*ct+1}, v{D1+4*ct+2}, v{D1+4*ct+3}",
         f"buffer_store_dwordx2 {R(D1+4*ct,2)}, v46, {SR(sW)}, s{56 if ct<4 else 57} offen offset:{1024*(ct%4)} {KVMOD}"]
if os.environ.get('MOCK'):
    keep=lambda L: [x for x in L if not (x.startswith('v_mfma') or x.startswith('ds_read_b64_tr') or (x.startswith('ds_read_b128') and 'v47' in x) or x=="s_waitcnt vmcnt(0)" or x.startswith('v_pk_mul') or x.startswith('v_cvt'))]
    kp=keep(kp); vp=keep(vp); wj=[x for x in keep(wj) if x!="s_waitcnt vmcnt(18)"]
    wp=stamp(0)
PRE=srd(sO,12,OUTSZ)+common_setup()+xreads()
EARLY=int(os.environ.get('EARLY','1'))
pj=(stamp(5) if os.environ.get('P1') else [])+(PRE if EARLY else [])+["s_lshr_b32 s48, s2, 4","s_lshl_b32 s48, s48, 7",f"s_add_u32 s48, s48, {FLG}","v_mov_b32 v44, 1","s_mov_b32 s49, 0x200000",
    "s_mov_b64 exec, 1","s_waitcnt vmcnt(0)"]+(stamp(6) if os.environ.get('P1') else [])
wr_=["v_cmp_ne_u32 vcc, 0, v45","s_sub_u32 s49, s49, 1","s_cbranch_scc1 L_arr","s_cbranch_vccnz L_arr",f"buffer_load_dword v45, v47, {SR(sD)}, 0 offen sc1","s_waitcnt vmcnt(0)","s_branch L_wr"]
NSH=int(os.environ.get('NSH','0'))
arr=[f"buffer_atomic_add v44, v47, {SR(sW)}, s48 offen sc0 sc1","s_mov_b64 exec, -1","v_mov_b32 v45, 1","s_add_u32 s58, s48, 4096"]+(init_acc()[:NSH] if EARLY else (PRE+init_acc())[:NSH])+["s_mov_b64 exec, 1","s_waitcnt vmcnt(0)",
  "v_cmp_eq_u32 vcc, 31, v44","s_and_b64 exec, exec, vcc","s_cbranch_execz L_nl",
  f"buffer_store_dword v45, v47, {SR(sW)}, s58 offen sc1","L_nl:","s_mov_b64 exec, -1"]+(stamp(3) if not os.environ.get('P2') else [])
arr+=(init_acc()[NSH:] if EARLY else (PRE+init_acc())[NSH:])+init_const()+["s_branch L_go"]
sync=["v_and_b32 v10, 15, v0","v_lshlrev_b32 v10, 7, v10","s_mov_b32 s49, 0x200000",f"s_mov_b32 s50, {FLG+4096}"]
SLEEP=int(os.environ.get('SLEEP','0'))
poll=([f"s_sleep {SLEEP}"] if SLEEP else [])+[f"buffer_load_dword v12, v10, {SR(sW)}, s50 offen sc1","s_sub_u32 s49, s49, 1","s_cbranch_scc1 L_go","s_waitcnt vmcnt(0)",
  "v_cmp_ne_u32 vcc, 1, v12","s_nop 1","s_cbranch_vccnz L_poll"]
go=["v_and_b32 v8, 1, v0","v_mul_u32_u24 v8, 0xaaaa, v8",f"v_add_u32 v{IDX}, 0x4444, v8"]+[f"v_mov_b32 v{ONES+r}, 0x3f803f80" for r in range(4)]+["s_waitcnt lgkmcnt(0)","s_barrier"]+stamp(4)
pas=["s_mov_b32 s60, s63"]+[kload(0,f) for f in range(6)]+[vload(0,c) for c in range(6)]+["s_add_u32 s60, s60, 12288"]+[kload(1,f) for f in range(6)]
pas+=["s_mov_b32 s61, 7","s_waitcnt vmcnt(15)"]
q0=qk(0,0,0); q1=qk(1,0,1); ev=[x for y in expgaps(0,0,0) for x in y]
pas+=q0[:3]+["s_waitcnt vmcnt(12)"]+q0[3:]+q1[:3]+(stamp(5) if not (os.environ.get('P1') or os.environ.get('P3')) else ['s_nop 4'])+["s_cmp_eq_u32 s45, 0"]+ev[0:2]+[q1[3]]+ev[2:4]+[q1[4]]+ev[4:6]+[q1[5]]+ev[6:]+["s_waitcnt vmcnt(6)","s_cbranch_scc0 L_s2_1","s_branch L_s2_0"]
def chk(reg): return [f"v_cmp_nle_f32 vcc, s48, v{reg}","s_or_b64 s[64:65], s[64:65], vcc",f"v_cmp_nge_f32 vcc, s49, v{reg}","s_or_b64 s[64:65], s[64:65], vcc"]
LR=LRCV
epi=(stamp(6) if not os.environ.get('P1') else [])+[f"v_add_u32 v28, {2*REG}, v{XA}",f"v_add_u32 v29, {2*REG}, v{XL}"]
epi+=[f"s_mov_b32 s48, {f32(2.0**-20)}",f"s_mov_b32 s49, {f32(2.0**120)}","s_mov_b64 s[64:65], 0","s_waitcnt lgkmcnt(6)"]
late=[f"ds_read_b128 {R(RB(2)+4*q,4)}, v7 offset:{(12+q)*1024}" for q in range(6)]
late+=[f"ds_read_b32 v{24+w}, v{XL if w<2 else 29} offset:{(w%2)*REG+27648}" for w in range(4)]
late+=[f"ds_read_b128 {R(8+4*w,4)}, v{XA if w<2 else 28} offset:{(w%2)*REG+18432}" for w in range(4)]
def lsum(t):
    r=LR+4*t
    return [f"v_accvgpr_read_b32 v{r+2}, {R(LL+12+4*t)}",f"v_accvgpr_read_b32 v{r+3}, {R(LL+13+4*t)}",f"v_add_f32 v{r}, v{r}, v{r+1}",f"v_add_f32 v{r+2}, v{r+2}, v{r+3}",
            f"v_add_f32 v{r+2}, v{r+2}, v{r}",f"v_rcp_f32 v{r+3}, v{r+2}"]+(["s_nop 0",f"v_mul_f32 v{r+3}, {f32(float(os.environ['EPS']))}, v{r+3}"] if os.environ.get('EPS') else [])
epi+=lsum(0)
issued=12; nan=[]
for t in range(3):
    for u in range(3):
        need=6*t+2*u+2
        if t>0: epi.append(f"s_waitcnt lgkmcnt({min(15,issued-need)})")
        o=OK+24*t+8*u; rb=RB(t)+8*u
        epi+=[f"v_pk_add_f32 {R(o+2*i,2)}, {R(o+2*i,2)}, {R(rb+2*i,2)}" for i in range(4)]
        for _ in range(3):
            if late: epi.append(late.pop(0)); issued+=1
        if t<2 and u==1: epi+=lsum(t+1)
        epi+=[f"v_pk_mul_f32 {R(o+2*i,2)}, {R(o+2*i,2)}, {R(LR+4*t+2,2)} op_sel:[0,1] op_sel_hi:[1,1]" for i in range(4)]
        epi+=[f"v_cvt_pk_bf16_f32 v{o+i}, v{o+2*i}, v{o+2*i+1}" for i in range(4)]
        epi.append(f"buffer_store_dwordx4 {R(o,4)}, v{XO+t}, {SR(sO)}, s47 offen offset:{64*u} {OUTMOD}")
        if os.environ.get('NOST'): epi.pop()
        nan.append(o)
assert not late
epi+=["s_waitcnt lgkmcnt(0)","v_add_f32 v24, v24, v25","v_add_f32 v26, v26, v27","v_pk_add_f32 v[8:9], v[8:9], v[12:13]","v_add_f32 v24, v24, v26",
      "v_pk_add_f32 v[10:11], v[10:11], v[14:15]","v_rcp_f32 v26, v24","v_pk_add_f32 v[16:17], v[16:17], v[20:21]","v_pk_add_f32 v[18:19], v[18:19], v[22:23]",
      "v_pk_add_f32 v[8:9], v[8:9], v[16:17]","v_pk_add_f32 v[10:11], v[10:11], v[18:19]",
      "v_pk_mul_f32 v[8:9], v[8:9], v[26:27] op_sel_hi:[1,0]","v_pk_mul_f32 v[10:11], v[10:11], v[26:27] op_sel_hi:[1,0]",
      "v_cvt_pk_bf16_f32 v8, v8, v9","v_cvt_pk_bf16_f32 v9, v10, v11",
      f"buffer_store_dwordx2 v[8:9], v{XOUT}, {SR(sO)}, s47 offen"]
epi+=stamp(7)+stampdump()
epi+=["s_cmp_lg_u32 s62, 0","s_cbranch_scc1 L_done"]
epi+=["v_cmp_gt_u32 s[52:53], 24, v0"]+[f"v_mov_b32 v{12+r}, 0" for r in range(4)]+["v_mov_b32 v10, 0","v_mov_b32 v11, 0"]
epi+=["v_cndmask_b32 v8, 0, v8, s[52:53]","v_cndmask_b32 v9, 0, v9, s[52:53]"]
epi+=[M16(16,12,nan[0],"0")]+[M16(16,12,o) for o in nan[1:]]+[M16(16,12,8)]
epi+=chk(24)+chk(LR+2)+chk(LR+6)+chk(LR+10)
epi+=[f"v_mov_b32 v20, {FLAG}","v_mov_b32 v21, 1","s_nop 2","v_cmp_u_f32 vcc, v16, v16","s_or_b64 s[64:65], s[64:65], vcc",
      "s_cmp_eq_u64 s[64:65], 0","s_cbranch_scc1 L_ok","ds_write_b32 v20, v21"]
ok=["s_waitcnt lgkmcnt(0)","s_barrier","ds_read_b32 v21, v20","s_waitcnt lgkmcnt(0)","v_readfirstlane_b32 s48, v21","s_nop 3",
    "s_cmp_eq_u32 s48, 0","s_cbranch_scc1 L_done"]
fb=["s_waitcnt vmcnt(0)"]+[f"v_mov_b32 v{MM+4*t}, 0xff800000" for t in range(7)]+["s_mov_b32 s60, s63","s_mov_b32 s61, 16"]
fbl=[kload(0,f) for f in range(6)]+["s_waitcnt vmcnt(0)"]
for t in range(7):
    fbl+=[M16(S0+4*k, KF+4*(3*k+j), XF+12*t+4*j, "0" if j==0 else None) for k in range(2) for j in range(3)]
    fbl+=["s_nop 7"]+[f"v_max3_f32 v{MM+4*t}, v{S0+2*i}, v{S0+2*i+1}, v{MM+4*t}" for i in range(4)]
fbl+=["s_bitcmp1_b32 s61, 0","s_cselect_b32 s48, 24576, 0","s_add_u32 s60, s60, s48","s_add_u32 s60, s60, 12288","s_sub_u32 s61, s61, 1","s_cmp_lg_u32 s61, 0","s_cbranch_scc1 L_fb"]
fb2=[f"ds_write_b32 v6, v{MM+4*t} offset:{1024*t}" for t in range(7)]
fb2+=["v_and_b32 v8, 0x300, v3","v_sub_u32 v9, v6, v8","v_sub_u32 v10, v7, v8","s_waitcnt lgkmcnt(0)","s_barrier"]
for t in range(7):
    tp=(t+3)%6 if t<6 else 6
    for G in range(4): fb2+=[f"ds_read_b32 v{12+G}, v9 offset:{1024*t+256*G}",f"ds_read_b32 v{16+G}, v10 offset:{1024*tp+256*G}"]
    fb2+=["s_waitcnt lgkmcnt(0)","v_max3_f32 v12, v12, v13, v14","v_max3_f32 v12, v12, v15, v16","v_max3_f32 v12, v12, v17, v18","v_max_f32 v12, v12, v19"]
    fb2+=[f"v_sub_f32 v{MM+4*t+i}, 0, v12" for i in range(4)]
fb2+=init_acc()+["s_barrier","s_mov_b32 s62, 1","s_branch L_pass"]

flat=lambda x: [l for y in x for l in y]
B=[body(0),body(1)]; T=[tail(0),tail(1)]
out=[]
HDR=open('standalone__window_attn_twins__vision.s.ref').read().split('\n')
out+=HDR[:10]
out.append(f"; @launch grid=(256,1,1) block=(256,1,1) lds={LDSB}")
out+=['.amdgcn_target "amdgcn-amd-amdhsa--gfx950"',".text",f".globl {N}",".p2align 8",f".type {N},@function",f"{N}:"]
def E(lines,label=None,align=False):
    if align: out.append(".p2align 6")
    if label: out.append(label+":")
    out.extend(l if l.endswith(':') else "    "+l for l in lines)
E(entry); E(pool0); E(pz); E(pool1); E(wp0,"L_wpath"); E(wp); E(wj); E(kp); E(vp,"L_vp"); E(pj,"L_pj"); E(wr_,"L_wr"); E(arr,"L_arr")
E(pool,"L_pool"); E(rpoll,"L_rpoll")
E(sync,"L_sync"); E(poll,"L_poll"); E(go,"L_go"); E(pas,"L_pass")
for q in range(2):
    E(flat(B[q][:2]),f"L_loop{q}",True); E(flat(B[q][2:]),f"L_s2_{q}"); E([f"s_cbranch_scc1 L_loop{q}"]); E(stamp(3) if os.environ.get('P2') else []); E(T[q])
    if q==0: E(["s_branch L_epi"])
E(epi,"L_epi"); E(ok,"L_ok"); E(fb); E(fbl,"L_fb"); E(fb2); E(["s_endpgm","L_end:"],"L_done")
out+=['.section .rodata,"a"',".p2align 6",f".amdhsa_kernel {N}","  .amdhsa_next_free_vgpr 512","  .amdhsa_next_free_sgpr 96","  .amdhsa_accum_offset 256",
 "  .amdhsa_group_segment_fixed_size 0","  .amdhsa_kernarg_size 56","  .amdhsa_user_sgpr_count 2","  .amdhsa_user_sgpr_kernarg_segment_ptr 1",
 "  .amdhsa_system_sgpr_workgroup_id_x 1",".end_amdhsa_kernel"]
open(sys.argv[1],'w').write("\n".join(out)+"\n")
bad=0
bad+=hz.check(entry+pool0+pz+pool1+pool+rpoll+sync+poll+go+pas,'pool')
bad+=hz.check(entry+wp0+wp+wj+kp+pj+wr_+arr+go+pas,'kpath')
bad+=hz.check(entry+wp0+wp+wj+vp+pj+wr_+arr,'vpath')
for q in range(2):
    bad+=hz.check(pas+flat(B[q][2:])+["s_cbranch x"]+flat(B[q])+["s_cbranch x"]+T[q]+epi+ok+fb+fbl+fbl+fb2+pas,f'main{q}')
print("hazards:",bad)
```

```python
import sys, struct, math, os
import hz
DIAG=int(os.environ.get('DIAG','0'))
OUTMOD=os.environ.get('OUTMOD','')
PMOD=os.environ.get('PMOD','nt')
KVMOD=os.environ.get('KVMOD','sc1')
XMOD=os.environ.get('XMOD','')
OUTSZ=int(os.environ.get('OUTSZ','9633792'))
def R(x,n=1):
    if x>=256: return f"a{x-256}" if n==1 else f"a[{x-256}:{x-256+n-1}]"
    return f"v{x}" if n==1 else f"v[{x}:{x+n-1}]"
def M16(d,a,b,c=None):
    c = R(d,4) if c is None else (c if isinstance(c,str) else R(c,4))
    return f"v_mfma_f32_16x16x32_bf16 {R(d,4)}, {R(a,4)}, {R(b,4)}, {c}"
def f32(x): return "0x%08x"%struct.unpack("<I",struct.pack("<f",x))[0]
def base(ct): return 32*(ct//2)+4*(ct%2)
XB=9633792; WSB=0x10000000; OOB=0x40000000
FLG=0x80000
REG=28672; XI=73728; XS=116736; FLAG=XS+768; LDSB=FLAG+64
assert all((q*2341)>>16==q//28 for q in range(208))
assert all((c*5462)>>16==c//12 for c in range(192))
S0=8; P0=32; P6=80; ONES=84; IDX=88; MM=92; OK=120; VF=192; XO=240; T2=56; LL=256+228
OS=256; OX=256+72; XF=256+96; KF=256+180; ASP=256+228
XA=1; XL=2; XOUT=243; LRCV=MM
sX=20; sO=24; sW=28; sA=32; sB=36; sD=40
def SR(d): return f"s[{d}:{d+3}]"
def srd(d, lo, size): return [f"s_mov_b32 s{d}, s{lo}", f"s_mov_b32 s{d+1}, s{lo+1}", f"s_mov_b32 s{d+2}, {size}", f"s_mov_b32 s{d+3}, 0x00020000"]
def Oreg(t): return OS+24*t if t<3 else (OK+24*(t-3) if t<6 else OX)
def RB(t): return [P0,VF,VF+24][t]
def Preg(st,t): return P0+8*t+4*st if t<6 else P6
def W1(i): return KF+4*i if i<12 else ASP+4*(i-12)
def W2(i): return VF+4*i if i<12 else T2+4*(i-12)
nst=[0]
def stamp(idx):
    if not DIAG: return []
    return ["s_memrealtime s[66:67]","s_memtime s[68:69]","s_waitcnt lgkmcnt(0)",f"s_mov_b32 s{72+2*idx}, s66",f"s_mov_b32 s{73+2*idx}, s68"]
def stampdump():
    if not DIAG: return []
    o=["s_lshl_b32 s66, s2, 2","s_add_u32 s66, s66, s44","s_lshl_b32 s66, s66, 6",f"s_add_u32 s66, s66, {0x100000}","v_mov_b32 v20, 0"]
    for i in range(8):
        o+=[f"v_mov_b32 v22, s{72+2*i}",f"v_mov_b32 v23, s{73+2*i}",f"buffer_store_dwordx2 v[22:23], v20, {SR(sW)}, s66 offen offset:{8*i}","s_nop 1"]
    return o

def kload(stage,f):
    v,o=(3,f*1024) if f<4 else (4,(f-4)*1024)
    return f"buffer_load_dwordx4 {R(KF+24*stage+4*f,4)}, v{v}, {SR(sW)}, s60 offen offset:{o}"
def vload(stage,ct):
    v,o=(4,2048+ct*1024) if ct<2 else (5,(ct-2)*1024)
    return f"buffer_load_dwordx4 {R(VF+24*stage+4*ct,4)}, v{v}, {SR(sW)}, s60 offen offset:{o}"
def slots_of(qg):
    a=[(0,t) for t in range(6)]+([(0,6)] if qg==0 else [])
    b=[(1,t) for t in range(6)]+([(1,6)] if qg==1 else [])
    return a+b
def colorf(N): return (lambda n: (n%13)%2 if n%13<12 else 2) if N==13 else (lambda n: n%2)
def qk(c,st,t):
    S=S0+8*c
    return [M16(S+4*k, KF+24*st+4*(3*k+j), XF+12*t+4*j, MM+4*t if j==0 else None) for k in range(2) for j in range(3)]
def pv(st,t):
    P=Preg(st,t)
    o=[M16(Oreg(t)+4*q, VF+24*st+4*q, P) for q in range(6)]
    if t==6: o.append(M16(LL+4*t, ONES, P))
    elif st==1: o.append(f"v_smfmac_f32_16x16x64_bf16 {R(LL+4*t,4)}, {R(ONES,4)}, {R(P0+8*t,8)}, v{IDX}")
    return o
def expgaps(c,st,t,n=13):
    S=S0+8*c; P=Preg(st,t)
    E=lambda j: f"v_exp_f32 v{S+j}, v{S+j}"
    C=lambda j: f"v_cvt_pk_bf16_f32 v{P+j}, v{S+2*j}, v{S+2*j+1}"
    return [[E(0)],[E(1)],[E(2)],[E(3)],[E(4)],[C(0),C(1)],[E(5)],[E(6)],[E(7)],[],[C(2),C(3)],[],[]][:n]
def body(qg):
    sl=slots_of(qg); out=[]; NS=len(sl); color=colorf(NS)
    for n,(st,t) in enumerate(sl):
        idx=[i for i,(s2,_) in enumerate(sl) if s2==st]
        pos=n-idx[0]; last=len(idx)-1
        mm=qk(color(n),st,t)+pv(*sl[(n-2)%NS])
        g=expgaps(color(n-1),*sl[(n-1)%NS],n=len(mm)); fr=(9,11); e=len(mm)-1
        if pos in (0,1):
            for i in range(2): g[fr[i]].append(kload(1-st,2+2*pos+i))
        if pos==1: g[e].append("s_waitcnt vmcnt(6)")
        if pos in (2,3,4):
            for i in range(2): g[fr[i]].append(vload(1-st,2*(pos-2)+i))
        if pos==last-1:
            g[e if last==5 else 9].append(f"s_add_u32 s60, s60, {36864 if st==0 else 12288}")
        if pos==2 and st==1: g[e].append("s_sub_u32 s61, s61, 1")
        if pos==last:
            for i in range(2): g[fr[i]].append(kload(st,i))
            g[e].append("s_waitcnt vmcnt(8)")
        if pos==last and st==1: g[10].append("s_cmp_lg_u32 s61, 0")
        if os.environ.get('NOLD'): g=[[x for x in y if not x.startswith('buffer_load')] for y in g]
        o=[f"; slot {n}: stage {st} tile {t}"]
        for i in range(len(mm)): o.append(mm[i]); o+=g[i]
        out.append(o)
    return out
def tail(qg):
    sl=slots_of(qg)
    order=[(0,0),(0,1),(0,2),(0,3),(1,0),(1,1),(1,2)]+([(qg,6)] if qg is not None else [])+[(0,4),(0,5),(1,3),(1,4),(1,5)]
    NS=len(sl); color=colorf(NS)
    seq=[sl[-2],sl[-1]]+order
    col=[color(NS-2),color(NS-1)]+[color(n) for n in range(NS)]
    out=[]; pend=[]
    def states_since(i): return sum((int(l.split()[1])+1 if l.startswith('s_nop') else 1) for l in out[i+1:] if not l.startswith(';'))
    def place(n):
        for _ in range(n):
            if pend and states_since(pend[0][0])>=8:
                out.append(pend.pop(0)[1])
                if pend and 'b128' not in pend[0][1] and states_since(pend[0][0])>=8: out.append(pend.pop(0)[1])
    def wr(t,q):
        if q<6: return f"ds_write_b128 v6, {R(Oreg(t)+4*q,4)} offset:{(6*t+q)*1024 if t<3 else (18+q)*1024}"
        if t==6: return f"ds_write_b32 v6, {R(LL+4*t)} offset:{24576+3072}"
        return f"ds_write_b64 v6, {R(LL+4*t,2)} offset:{24576+1024*t}"
    rd0=[f"ds_read_b64 {R(LRCV+4*t,2)}, v7 offset:{24576+1024*t}" for t in range(3)]+[f"ds_read_b128 {R(RB(0)+4*q,4)}, v7 offset:{q*1024}" for q in range(6)]
    rd1=[f"ds_read_b128 {R(RB(1)+4*q,4)}, v7 offset:{(6+q)*1024}" for q in range(6)]
    rds=[]
    nb=NS
    for k in range(nb+2):
        out.append(f"; tail slot {k}")
        mm=[]
        if k<nb: mm+=[(m,None) for m in qk(col[k+2],*seq[k+2])]
        st,t=seq[k]
        final = k>=2 and (t==6 or (t<3 and st==1))
        mm+=[(m,(t,q) if final else None) for q,m in enumerate(pv(st,t))]
        if k<nb: g=expgaps(col[k+1],*seq[k+1],n=len(mm))
        elif k==nb:
            f=[x for y in expgaps(col[k+1],*seq[k+1]) for x in y]; g=[f[2*i:2*i+2] for i in range(7)]
        else: g=[[] for _ in range(7)]
        fr=(9,11); e=len(mm)-1
        if k in (0,1):
            for i in range(2): g[fr[i]].append(kload(1,2+2*k+i))
        if k==1: g[e].append("s_waitcnt vmcnt(6)")
        if k in (2,3):
            for i in range(3): g[(7,9,11)[i]].append(vload(1,3*(k-2)+i))
        if k==3: g[e].append("s_waitcnt vmcnt(6)")
        if k==6: g[5].append("s_waitcnt vmcnt(0)")
        BS,BG=NS-1,8
        if k==BS: g[BG]+=["s_waitcnt lgkmcnt(0)","s_barrier"]
        for i,(m,w) in enumerate(mm):
            out.append(m)
            if w: pend.append((len(out)-1, wr(*w)))
            out+=g[i]
            if k==BS and i==BG: assert not pend; rds=rd0+rd1
            if k<BS or (k==BS and i<4):
                if i in ((2,5,9,11,12) if k<BS else (0,1,2,3)): place(1)
            elif not g[i]:
                for _ in range(3):
                    if rds: out.append(rds.pop(0))
    assert not pend and not rds, (pend,rds)
    return out

XR=MM
def common_setup():
    o=["v_and_b32 v8, 15, v0","v_lshrrev_b32 v9, 4, v0","v_lshlrev_b32 v9, 4, v9",
       "v_lshlrev_b32 v3, 4, v0","v_add_u32 v4, 4096, v3","v_add_u32 v5, 8192, v3",
       f"s_mul_i32 s48, s44, {REG}","v_add_u32 v6, s48, v3","s_xor_b32 s48, s44, 2",f"s_mul_i32 s48, s48, {REG}","v_add_u32 v7, s48, v3",
       "s_mul_i32 s48, s45, 96","s_mul_i32 s49, s46, 48","s_add_u32 s50, s48, s49",
       "s_sub_u32 s49, 48, s49","s_add_u32 s49, s48, s49",
       "s_mov_b32 s51, 37632",f"s_mov_b32 s52, {-2304}",f"s_mov_b32 s53, {21504-2688}",f"v_add_u32 v13, {XI}, v9"]
    for t in range(6):
        o+=[f"s_add_u32 s48, s{49 if t<3 else 50}, {16*(t%3)}","v_add_u32 v10, s48, v8"]
        o+=["v_mul_u32_u24 v11, 4682, v10","v_mul_u32_u24 v10, 192, v10","v_lshrrev_b32 v12, 17, v11","v_bfe_u32 v11, v11, 16, 1"]
        if 3<=t<6: o+=[f"v_mad_u32_u24 v14, v12, s51, v10",f"v_add_u32 v{XO+t-3}, v14, v9"]
        o+=["v_mad_i32_i24 v10, v12, s52, v10","v_mad_u32_u24 v10, v11, s53, v10",f"v_add_u32 v{XR+t}, v10, v13"]
    o+=["v_lshrrev_b32 v10, 2, v8","v_and_b32 v11, 3, v8","v_mul_u32_u24 v10, 5376, v10","v_mul_u32_u24 v11, 192, v11","v_add3_u32 v10, v10, v11, v9",
        f"v_add_u32 v{XOUT}, {6*43008+24*192}, v10","s_min_u32 s48, s44, 2","s_lshl_b32 s48, s48, 11",f"v_add_u32 v{XA}, s48, v3"]
    return o
assert all((q*4682)>>16==q//14 and (q*4682)>>17==q//28 for q in range(208))
assert all((c*5462)>>16==c//12 for c in range(192))
def xreads(): return [f"ds_read_b128 {R(XF+12*t+4*s,4)}, v{XR+t} offset:{64*s}" for t in range(6) for s in range(3)]
def xshared(): return srd(sX,4,XB)+[f"buffer_load_dwordx4 {R(XF+72+4*s,4)}, v{XOUT}, {SR(sX)}, s47 offen offset:{64*s}" for s in range(3)]
def init_acc():
    return [f"v_accvgpr_write_b32 a{r}, 0" for r in range(96)]+[f"v_accvgpr_write_b32 {R(LL+r)}, 0" for r in range(28)]+[f"v_mov_b32 v{r}, 0" for r in range(OK,OK+72)]
def init_const():
    return [f"v_mov_b32 v{MM+r}, 0" for r in range(28)]
def dma_loop(label, vs, srdreg, step, mod=""):
    return [label+":","s_mov_b32 m0, s49","s_add_u32 s49, s49, 3072"]+\
           [f"buffer_load_dwordx4 v{vs[j]}, {SR(srdreg)}, s48 offen offset:{1024*j} {mod} lds" for j in range(3)]+\
           [f"s_add_u32 s48, s48, {step}","s_cmp_lt_u32 s49, s50",f"s_cbranch_scc1 {label}"]

N="standalone__window_attn_twins__vision_kernel"
PF="buffer_load_dwordx4 a[252:255], v9, s[88:91], 0 offen" if int(os.environ.get("PF","1")) else "s_nop 0"
entry=(["s_memrealtime s[96:97]"] if os.environ.get('P4') else [])+["s_cmp_ge_u32 s2, 256","s_cbranch_scc1 L_done",
  "s_load_dwordx8 s[4:11], s[0:1], 0","s_load_dwordx4 s[12:15], s[0:1], 32","s_load_dwordx2 s[16:17], s[0:1], 48",
  "s_getpc_b64 s[88:89]","L_pc:","s_lshr_b32 s47, s2, 3","s_lshl_b32 s48, s47, 12","v_lshl_add_u32 v9, v0, 4, s48","s_mov_b32 s90, L_end-L_pc","s_mov_b32 s91, 0x00020000",
  "v_and_b32 v9, 0x7fff, v9","v_lshrrev_b32 v8, 6, v0","v_and_b32 v0, 63, v0",
  PF,"v_lshlrev_b32 v20, 4, v0","v_readfirstlane_b32 s44, v8",f"v_mov_b32 v18, {OOB}",
  "s_and_b32 s48, s2, 7","s_mul_i32 s47, s47, 301056","s_mul_i32 s48, s48, 5376","s_add_u32 s47, s47, s48",
  f"s_mov_b32 s{sA+3}, 0x00020000",
  "s_cmp_ge_u32 s44, 2","s_cbranch_scc1 L_wpath"]
ids=["s_and_b32 s45, s44, 1","s_lshr_b32 s46, s44, 1","s_mul_i32 s63, s46, 24576","s_mov_b32 s62, 0","v_and_b32 v16, 15, v0","v_lshrrev_b32 v17, 4, v0"]
pool0=["v_cmp_gt_u32 vcc, 40, v0","s_mul_i32 s48, s44, 2688","s_add_u32 s48, s48, s47","s_mul_i32 s49, s44, 21504",f"s_add_u32 s49, s49, {XI}","s_add_u32 s50, s49, 21504",
  "v_cndmask_b32 v21, v18, v20, vcc",f"s_mov_b32 s{sA+2}, {XB}","s_waitcnt lgkmcnt(0)",f"s_mov_b32 s{sA}, s4",f"s_mov_b32 s{sA+1}, s5"]+stamp(0)
pool0+=([f"s_sleep {os.environ['PDELAY']}"] if os.environ.get('PDELAY') else [])+([f"s_setprio {os.environ.get('PRIO','1')}"])+srd(sW,16,WSB)+["s_lshl_b32 s59, s2, 2","s_add_u32 s59, s59, s44","s_cmp_lg_u32 s59, 1","s_cbranch_scc1 L_xdma"]
pz=["v_lshlrev_b32 v29, 7, v0"]+[f"v_mov_b32 v{32+i}, 0" for i in range(4)]+[f"s_mov_b32 s51, {FLG}",f"buffer_store_dwordx4 v[32:35], v29, {SR(sW)}, s51 offen sc1"]
pool1=dma_loop("L_xdma",[20,20,21],sA,43008,PMOD)+(stamp(5) if os.environ.get('P3') else [])+["s_branch L_pool"]
PX=VF
pool=["s_setprio 0"]+srd(sD,14,256)+["s_cmp_lg_u32 s59, 1","s_cbranch_scc1 L_nrd","v_mov_b32 v32, 1","v_mov_b32 v33, 0","s_waitcnt vmcnt(21)","s_mov_b64 exec, 1",
     f"buffer_store_dword v32, v33, {SR(sD)}, 0 offen sc1","s_mov_b64 exec, -1","L_nrd:"]+ids+srd(sO,12,OUTSZ)
pool+=["v_and_b32 v21, 1, v16","v_lshlrev_b32 v21, 4, v21","v_mov_b32 v22, 0x3f80","v_lshlrev_b32 v21, v21, v22","v_lshrrev_b32 v22, 1, v16"]
for d in range(8): pool+=[f"v_cmp_eq_u32 vcc, {d}, v22","s_nop 1",f"v_cndmask_b32 v{24+d}, 0, v21, vcc"]
pool+=[f"v_mov_b32 v8, {FLAG}","v_mov_b32 v9, 0","ds_write_b32 v8, v9"]
pool+=["v_lshrrev_b32 v21, 1, v17","v_mul_u32_u24 v21, 192, v21","v_lshl_add_u32 v21, v16, 4, v21","v_and_b32 v22, 1, v17","v_lshl_add_u32 v21, v22, 3, v21",
       "s_mul_i32 s48, s44, 384",f"s_add_u32 s48, s48, {XS}","v_add_u32 v21, s48, v21","v_cmp_gt_u32 s[54:55], 12, v16",
       "s_sub_u32 s50, s50, 21504","v_lshl_add_u32 v39, v16, 4, s50","v_mul_u32_u24 v36, 192, v17","v_add_u32 v36, v36, v39","v_cmp_gt_u32 vcc, 3, v17",
       "v_add_u32 v39, 2688, v39","v_add_u32 v37, 768, v36",f"v_add_u32 v38, {768+1344}, v36","v_cndmask_b32 v37, v39, v37, vcc","v_cndmask_b32 v38, v39, v38, vcc"]
pool+=stamp(1)
PX=OK
def prd(r):
    b=PX+16*r
    return [f"ds_read_b128 {R(b,4)}, v36 offset:{3072*r}",f"ds_read_b128 {R(b+4,4)}, v37 offset:{3072*r}",
            f"ds_read_b128 {R(b+8,4)}, v36 offset:{3072*r+1344}",f"ds_read_b128 {R(b+12,4)}, v38 offset:{3072*r}"]
def pmm(r): return [M16(32, 24+4*(j//2), PX+16*r+4*j, "0" if (r,j)==(0,0) else None) for j in range(4)]
for r in range(7):
    pool+=[f"s_waitcnt vmcnt({3*(6-r)})"]+prd(r)
    if r>=2: pool+=["s_waitcnt lgkmcnt(8)"]+pmm(r-2)
pool+=["s_waitcnt lgkmcnt(4)"]+pmm(5)
m=pmm(6)
for j in range(4): pool+=[f"s_waitcnt lgkmcnt({3-j})",m[j]]
pool+=["s_nop 7"]+[f"v_mul_f32 v{32+i}, {f32(1/49)}, v{32+i}" for i in range(4)]
pool+=["v_cvt_pk_bf16_f32 v32, v32, v33","v_cvt_pk_bf16_f32 v33, v34, v35","s_mov_b64 exec, s[54:55]","ds_write_b64 v21, v[32:33]","s_mov_b64 exec, -1",
       "s_waitcnt lgkmcnt(0)"]+stamp(2)+["s_barrier"]
pool+=common_setup()+xshared()+xreads()+init_const()+init_acc()
pool+=(stamp(3) if not os.environ.get('P2') else [])+["s_cmp_lg_u32 s44, 0","s_cbranch_scc1 L_go","v_mov_b32 v9, 0","s_mov_b32 s49, 0x200000"]
rpoll=[f"buffer_load_dword v11, v9, {SR(sD)}, 0 offen sc1","s_sub_u32 s49, s49, 1","s_cbranch_scc1 L_sync","s_waitcnt vmcnt(0)",
  "v_cmp_eq_u32 vcc, 0, v11","s_nop 1","s_cbranch_vccnz L_rpoll"]
rdy=["s_barrier","s_branch L_sync"]
wp0=["s_sub_u32 s54, s44, 2"]
for j in range(3):
    wp0+=[f"v_add_u32 v19, {64*j}, v0","v_mul_u32_u24 v24, 5462, v19","v_lshlrev_b32 v19, 4, v19","v_lshrrev_b32 v24, 16, v24",
          "v_mul_u32_u24 v24, 192, v24",f"v_add3_u32 v{21+j}, v24, v19, s{[92,93,94][j]}"]
wp0=[f"s_mov_b32 s92, 0","s_mov_b32 s93, -1024","s_mov_b32 s94, -2048"]+wp0
wp0+=["s_mul_i32 s48, s54, 192","s_mul_i32 s49, s54, 36864","s_add_u32 s50, s49, 18432",f"s_mov_b32 s{sA+2}, 36864",
     "s_waitcnt lgkmcnt(0)",f"s_mov_b32 s{sA}, s8",f"s_mov_b32 s{sA+1}, s9"]
wp=stamp(0)+([f"s_sleep {os.environ['WDELAY']}"] if os.environ.get('WDELAY') else [])+[f"s_setprio {os.environ.get('WPRIO','3')}"]+dma_loop("L_w1dma",[21,22,23],sA,6144)+["s_setprio 0"]
wp+=["s_cmp_eq_u32 s54, 0",f"s_cselect_b32 s{sB}, s6, s10",f"s_cselect_b32 s{sB+1}, s7, s11",f"s_mov_b32 s{sB+2}, 18432",f"s_mov_b32 s{sB+3}, 0x00020000",
     "s_mov_b32 s48, 0","s_add_u32 s50, s50, 18432"]+dma_loop("L_w2dma",[20,20,20],sB,3072)
wj=ids+srd(sW,16,WSB)+srd(sD,14,256)
wj+=["s_mul_i32 s55, s54, 36864","v_lshrrev_b32 v22, 2, v16","v_and_b32 v23, 3, v16",
     "v_lshl_add_u32 v44, v17, 3, v22","v_mul_u32_u24 v44, 192, v44","v_lshl_add_u32 v44, v23, 4, v44","v_add_u32 v44, s55, v44",
     "v_lshl_add_u32 v47, v22, 3, v23","v_mul_u32_u24 v47, 192, v47","v_lshl_add_u32 v47, v17, 4, v47",
     "v_mul_u32_u24 v45, 192, v23","v_lshl_add_u32 v45, v17, 4, v45",f"v_add_u32 v45, {XS}, v45",
     "v_cmp_gt_u32 vcc, 4, v16","v_cmp_gt_u32 s[52:53], 16, v0","s_cmp_eq_u32 s54, 0","s_cselect_b64 vcc, vcc, s[52:53]","s_nop 1","v_cndmask_b32 v46, v18, v20, vcc",
     "s_lshr_b32 s56, s2, 3","s_mul_i32 s56, s56, 12288","s_bfe_u32 s57, s2, 0x10002","s_and_b32 s58, s2, 3"]
wj+=stamp(1)+["s_waitcnt vmcnt(18)"]
for nt in range(6):
    for s_ in range(3):
        for h in range(2): wj.append(f"ds_read_b64_tr_b16 {R(W1(3*nt+s_)+2*h,2)}, v44 offset:{(32*s_+4*h)*192+base(nt)*2}")
D1=8; XSF=OX; KB=32
wj+=["s_waitcnt lgkmcnt(0)"]+stamp(2)+["s_cmp_eq_u32 s54, 0","s_cbranch_scc0 L_vp"]
def step1(rd):
    o=["s_barrier"]+[f"ds_read_b128 {R(XSF+4*s_,4)}, v45 offset:{64*s_}" for s_ in range(3)]+["s_waitcnt vmcnt(0)","s_waitcnt lgkmcnt(0)"]
    per=len(rd)//18
    for nt in range(6):
        for s_ in range(3):
            o.append(M16(D1+4*nt, W1(3*nt+s_), XSF+4*s_, "0" if s_==0 else None))
            o+=rd[per*(3*nt+s_):per*(3*nt+s_+1)]
    for u in range(3):
        if u==2: o.append("s_nop 1")
        for e in range(2):
            for z in range(2): o.append(f"v_cvt_pk_bf16_f32 v{KB+4*u+2*e+z}, v{D1+8*u+4*e+2*z}, v{D1+8*u+4*e+2*z+1}")
    return o+["s_waitcnt lgkmcnt(0)","v_mov_b32 v47, 0",f"buffer_load_dword v45, v47, {SR(sD)}, 0 offen sc1"]
wq=[f"ds_read_b128 {R(W2(3*ct+u),4)}, v47 offset:{18432+base(ct)*192+64*u}" for ct in range(6) for u in range(3)]
wtr=[f"ds_read_b64_tr_b16 {R(W2(3*ct+u)+2*h,2)}, v44 offset:{18432+(32*u+4*h)*192+base(ct)*2}" for ct in range(6) for u in range(3) for h in range(2)]
sc=f32(96**-0.5*math.log2(math.e))
kp=step1(wq)+[M16(D1+4*ct, W2(3*ct+u), KB+4*u, "0" if u==0 else None) for ct in range(6) for u in range(3)]
kp+=[f"s_mov_b32 s50, {sc}",f"s_mov_b32 s51, {sc}","s_mul_i32 s57, s57, 3072","s_add_u32 s56, s56, s57","s_lshl_b32 s58, s58, 6","s_add_u32 s56, s56, s58"]
for u in range(3):
    if u==2: kp.append("s_nop 1")
    kp+=[f"v_pk_mul_f32 {R(D1+8*u+2*i,2)}, {R(D1+8*u+2*i,2)}, s[50:51]" for i in range(4)]
    kp+=[f"v_cvt_pk_bf16_f32 v{KB+4*u+i}, v{D1+8*u+2*i}, v{D1+8*u+2*i+1}" for i in range(4)]
    kp.append(f"buffer_store_dwordx4 {R(KB+4*u,4)}, v46, {SR(sW)}, s56 offen offset:{1024*u} {KVMOD}")
kp.append("s_branch L_pj")
vp=step1(wtr)+[M16(D1+4*ct, KB+4*u, W2(3*ct+u), "0" if u==0 else None) for ct in range(6) for u in range(3)]
vp+=["s_lshl_b32 s57, s57, 3","s_add_u32 s56, s56, s57","s_lshl_b32 s58, s58, 8","s_add_u32 s56, s56, s58","s_add_u32 s56, s56, 6144","s_add_u32 s57, s56, 4096"]
for ct in range(6):
    vp+=[f"v_cvt_pk_bf16_f32 v{D1+4*ct}, v{D1+4*ct}, v{D1+4*ct+1}",f"v_cvt_pk_bf16_f32 v{D1+4*ct+1}, v{D1+4*ct+2}, v{D1+4*ct+3}",
         f"buffer_store_dwordx2 {R(D1+4*ct,2)}, v46, {SR(sW)}, s{56 if ct<4 else 57} offen offset:{1024*(ct%4)} {KVMOD}"]
if os.environ.get('MOCK'):
    keep=lambda L: [x for x in L if not (x.startswith('v_mfma') or x.startswith('ds_read_b64_tr') or (x.startswith('ds_read_b128') and 'v47' in x) or x=="s_waitcnt vmcnt(0)" or x.startswith('v_pk_mul') or x.startswith('v_cvt'))]
    kp=keep(kp); vp=keep(vp); wj=[x for x in keep(wj) if x!="s_waitcnt vmcnt(18)"]
    wp=stamp(0)
PRE=srd(sO,12,OUTSZ)+common_setup()+xreads()
EARLY=int(os.environ.get('EARLY','1'))
pj=(stamp(5) if os.environ.get('P1') else [])+(PRE if EARLY else [])+["s_lshr_b32 s48, s2, 4","s_lshl_b32 s48, s48, 7",f"s_add_u32 s48, s48, {FLG}","v_mov_b32 v44, 1","s_mov_b32 s49, 0x200000",
    "s_mov_b64 exec, 1","s_waitcnt vmcnt(0)"]+(stamp(6) if os.environ.get('P1') else [])
wr_=["v_cmp_ne_u32 vcc, 0, v45","s_sub_u32 s49, s49, 1","s_cbranch_scc1 L_arr","s_cbranch_vccnz L_arr",f"buffer_load_dword v45, v47, {SR(sD)}, 0 offen sc1","s_waitcnt vmcnt(0)","s_branch L_wr"]
NSH=int(os.environ.get('NSH','0'))
arr=[f"buffer_atomic_add v44, v47, {SR(sW)}, s48 offen sc0 sc1","s_mov_b64 exec, -1","v_mov_b32 v45, 1","s_add_u32 s58, s48, 4096"]+xshared()+["s_mov_b64 exec, 1","s_waitcnt vmcnt(3)",
  "v_cmp_eq_u32 vcc, 31, v44","s_and_b64 exec, exec, vcc","s_cbranch_execz L_nl",
  f"buffer_store_dword v45, v47, {SR(sW)}, s58 offen sc1","L_nl:","s_mov_b64 exec, -1"]+(stamp(3) if not os.environ.get('P2') else [])
arr+=(init_acc()[NSH:] if EARLY else (PRE+init_acc())[NSH:])+init_const()+["s_branch L_go"]
sync=["v_and_b32 v10, 15, v0","v_lshlrev_b32 v10, 7, v10","s_mov_b32 s49, 0x200000",f"s_mov_b32 s50, {FLG+4096}"]
SLEEP=int(os.environ.get('SLEEP','0'))
poll=([f"s_sleep {SLEEP}"] if SLEEP else [])+[f"buffer_load_dword v12, v10, {SR(sW)}, s50 offen sc1","s_sub_u32 s49, s49, 1","s_cbranch_scc1 L_go","s_waitcnt vmcnt(0)",
  "v_cmp_ne_u32 vcc, 1, v12","s_nop 1","s_cbranch_vccnz L_poll"]
go=["v_and_b32 v8, 1, v0","v_mul_u32_u24 v8, 0xaaaa, v8",f"v_add_u32 v{IDX}, 0x4444, v8"]+[f"v_mov_b32 v{ONES+r}, 0x3f803f80" for r in range(4)]+["s_waitcnt lgkmcnt(0)","s_barrier"]+stamp(4)
pas=["s_mov_b32 s60, s63"]+[kload(0,f) for f in range(6)]+[vload(0,c) for c in range(6)]+["s_add_u32 s60, s60, 12288"]+[kload(1,f) for f in range(6)]
pas+=["s_mov_b32 s61, 7","s_waitcnt vmcnt(15)"]
q0=qk(0,0,0); q1=qk(1,0,1); ev=[x for y in expgaps(0,0,0) for x in y]
pas+=q0[:3]+["s_waitcnt vmcnt(12)"]+q0[3:]+q1[:3]+(stamp(5) if not (os.environ.get('P1') or os.environ.get('P3')) else ['s_nop 4'])+["s_and_b32 s48, s2, 3"]+ev[0:2]+[q1[3]]+ev[2:4]+[q1[4]]+ev[4:6]+[q1[5]]+ev[6:]+["s_waitcnt vmcnt(6)","s_cbranch_scc1 L_s2_2","s_cmp_eq_u32 s45, 0","s_cbranch_scc0 L_s2_1","s_branch L_s2_0"]
def chk(reg): return [f"v_cmp_nle_f32 vcc, s48, v{reg}","s_or_b64 s[64:65], s[64:65], vcc",f"v_cmp_nge_f32 vcc, s49, v{reg}","s_or_b64 s[64:65], s[64:65], vcc"]
LR=LRCV
epi=(stamp(6) if not os.environ.get('P1') else [])+[f"s_mov_b32 s48, {f32(2.0**-20)}",f"s_mov_b32 s49, {f32(2.0**120)}","s_mov_b64 s[64:65], 0","s_waitcnt lgkmcnt(6)"]
XP=P0
epi+=[f"v_add_u32 v28, {2*REG}, v{XA}",f"v_add_u32 v29, {2*REG}, v3"]
late=[f"ds_read_b128 {R(RB(2)+4*q,4)}, v7 offset:{(12+q)*1024}" for q in range(6)]+[None]*3
late+=[f"ds_read_b32 v{24+w}, v{3 if w<2 else 29} offset:{(w%2)*REG+27648}" for w in range(4)]
late+=[f"ds_read_b128 {R(XP+8*w+4*e,4)}, v{XA if w<2 else 28} offset:{(w%2)*REG+18432+1024*e}" for w in range(4) for e in range(2)]
def lsum(t):
    r=LR+4*t
    return [f"v_accvgpr_read_b32 v{r+2}, {R(LL+12+4*t)}",f"v_accvgpr_read_b32 v{r+3}, {R(LL+13+4*t)}",f"v_add_f32 v{r}, v{r}, v{r+1}",f"v_add_f32 v{r+2}, v{r+2}, v{r+3}",
            f"v_add_f32 v{r+2}, v{r+2}, v{r}",f"v_rcp_f32 v{r+3}, v{r+2}"]+(["s_nop 0",f"v_mul_f32 v{r+3}, {f32(float(os.environ['EPS']))}, v{r+3}"] if os.environ.get('EPS') else [])
epi+=lsum(0)
issued=12; nan=[]
for t in range(3):
    for u in range(3):
        need=6*t+2*u+2
        if t>0: epi.append(f"s_waitcnt lgkmcnt({min(15,issued-need)})")
        o=OK+24*t+8*u; rb=RB(t)+8*u
        epi+=[f"v_pk_add_f32 {R(o+2*i,2)}, {R(o+2*i,2)}, {R(rb+2*i,2)}" for i in range(4)]
        for _ in range(3):
            if late:
                x=late.pop(0)
                if x: epi.append(x); issued+=1
        if t<2 and u==1: epi+=lsum(t+1)
        epi+=[f"v_pk_mul_f32 {R(o+2*i,2)}, {R(o+2*i,2)}, {R(LR+4*t+2,2)} op_sel:[0,1] op_sel_hi:[1,1]" for i in range(4)]
        epi+=[f"v_cvt_pk_bf16_f32 v{o+i}, v{o+2*i}, v{o+2*i+1}" for i in range(4)]
        epi.append(f"buffer_store_dwordx4 {R(o,4)}, v{XO+t}, {SR(sO)}, s47 offen offset:{64*u} {OUTMOD}")
        if os.environ.get('NOST'): epi.pop()
        nan.append(o)
assert not late
epi+=[f"v_mov_b32 v{8+i}, 0" for i in range(4)]+["s_and_b32 s50, s2, 3","s_lshr_b32 s51, s44, 1","s_and_b32 s51, s51, s44","s_waitcnt lgkmcnt(0)","s_or_b32 s50, s50, s51","s_cbranch_scc0 L_x",
      "v_mov_b32 v24, 1.0","s_branch L_nx","L_x:"]
xe=["s_lshl_b32 s50, s44, 6","s_add_u32 s50, s50, s47","v_add_f32 v24, v24, v25","v_add_f32 v26, v26, v27","v_add_f32 v24, v24, v26","v_rcp_f32 v26, v24"]
xe+=[f"v_pk_add_f32 {R(XP+2*i,2)}, {R(XP+2*i,2)}, {R(XP+8+2*i,2)}" for i in range(4)]
xe+=[f"v_pk_add_f32 {R(XP+16+2*i,2)}, {R(XP+16+2*i,2)}, {R(XP+24+2*i,2)}" for i in range(4)]
xe+=[f"v_pk_add_f32 {R(XP+2*i,2)}, {R(XP+2*i,2)}, {R(XP+16+2*i,2)}" for i in range(4)]
xe+=[f"v_pk_mul_f32 {R(XP+2*i,2)}, {R(XP+2*i,2)}, v[26:27] op_sel_hi:[1,0]" for i in range(4)]
xe+=[f"v_cvt_pk_bf16_f32 v{8+i}, v{XP+2*i}, v{XP+2*i+1}" for i in range(4)]+[f"buffer_store_dwordx4 v[8:11], v{XOUT}, {SR(sO)}, s50 offen","L_nx:"]
epi+=xe
epi+=stamp(7)+(["s_mov_b32 s82, s96"] if os.environ.get('P4') else [])+(["s_getreg_b32 s75, hwreg(HW_REG_XCC_ID)"] if DIAG else [])+stampdump()
epi+=["s_cmp_lg_u32 s62, 0","s_cbranch_scc1 L_done"]
epi+=[f"v_mov_b32 v{12+r}, 0" for r in range(4)]+["s_nop 1"]
epi+=[M16(16,12,nan[0],"0")]+[M16(16,12,o) for o in nan[1:]]+[M16(16,12,8)]
epi+=chk(24)+chk(LR+2)+chk(LR+6)+chk(LR+10)
epi+=[f"v_mov_b32 v20, {FLAG}","v_mov_b32 v21, 1","s_nop 2","v_cmp_u_f32 vcc, v16, v16","s_or_b64 s[64:65], s[64:65], vcc",
      "s_cmp_eq_u64 s[64:65], 0","s_cbranch_scc1 L_ok","ds_write_b32 v20, v21"]
ok=["s_waitcnt lgkmcnt(0)","s_barrier","ds_read_b32 v21, v20","s_waitcnt lgkmcnt(0)","v_readfirstlane_b32 s48, v21","s_nop 3",
    "s_cmp_eq_u32 s48, 0","s_cbranch_scc1 L_done"]
fb=["s_waitcnt vmcnt(0)"]+[f"v_mov_b32 v{MM+4*t}, 0xff800000" for t in range(7)]+["s_mov_b32 s60, s63","s_mov_b32 s61, 16"]
fbl=[kload(0,f) for f in range(6)]+["s_waitcnt vmcnt(0)"]
for t in range(7):
    fbl+=[M16(S0+4*k, KF+4*(3*k+j), XF+12*t+4*j, "0" if j==0 else None) for k in range(2) for j in range(3)]
    fbl+=["s_nop 7"]+[f"v_max3_f32 v{MM+4*t}, v{S0+2*i}, v{S0+2*i+1}, v{MM+4*t}" for i in range(4)]
fbl+=["s_bitcmp1_b32 s61, 0","s_cselect_b32 s48, 24576, 0","s_add_u32 s60, s60, s48","s_add_u32 s60, s60, 12288","s_sub_u32 s61, s61, 1","s_cmp_lg_u32 s61, 0","s_cbranch_scc1 L_fb"]
fb2=[f"ds_write_b32 v6, v{MM+4*t} offset:{1024*t}" for t in range(7)]
fb2+=["v_and_b32 v8, 0x300, v3","v_sub_u32 v9, v6, v8","v_sub_u32 v10, v7, v8","s_waitcnt lgkmcnt(0)","s_barrier"]
for t in range(7):
    tp=(t+3)%6 if t<6 else 6
    for G in range(4): fb2+=[f"ds_read_b32 v{12+G}, v9 offset:{1024*t+256*G}",f"ds_read_b32 v{16+G}, v10 offset:{1024*tp+256*G}"]
    fb2+=["s_waitcnt lgkmcnt(0)","v_max3_f32 v12, v12, v13, v14","v_max3_f32 v12, v12, v15, v16","v_max3_f32 v12, v12, v17, v18","v_max_f32 v12, v12, v19"]
    fb2+=[f"v_sub_f32 v{MM+4*t+i}, 0, v12" for i in range(4)]
fb2+=init_acc()+["s_barrier","s_mov_b32 s62, 1","s_branch L_pass"]

flat=lambda x: [l for y in x for l in y]
B=[body(0),body(1),body(None)]; T=[tail(0),tail(1),tail(None)]
out=[]
HDR=open('standalone__window_attn_twins__vision.s.ref').read().split('\n')
out+=HDR[:10]
out.append(f"; @launch grid=(256,1,1) block=(256,1,1) lds={LDSB}")
out+=['.amdgcn_target "amdgcn-amd-amdhsa--gfx950"',".text",f".globl {N}",".p2align 8",f".type {N},@function",f"{N}:"]
def E(lines,label=None,align=False):
    if align: out.append(".p2align 6")
    if label: out.append(label+":")
    out.extend(l if l.endswith(':') else "    "+l for l in lines)
E(entry); E(pool0); E(pz); E(pool1); E(wp0,"L_wpath"); E(wp); E(wj); E(kp); E(vp,"L_vp"); E(pj,"L_pj"); E(wr_,"L_wr"); E(arr,"L_arr")
E(pool,"L_pool"); E(rpoll,"L_rpoll")
E(sync,"L_sync"); E(poll,"L_poll"); E(go,"L_go"); E(pas,"L_pass")
for q in range(3):
    E(flat(B[q][:2]),f"L_loop{q}",True); E(flat(B[q][2:]),f"L_s2_{q}"); E([f"s_cbranch_scc1 L_loop{q}"]); E(stamp(3) if os.environ.get('P2') else []); E(T[q])
    if q<2: E(["s_branch L_epi"])
E(epi,"L_epi"); E(ok,"L_ok"); E(fb); E(fbl,"L_fb"); E(fb2); E(["s_endpgm","L_end:"],"L_done")
out+=['.section .rodata,"a"',".p2align 6",f".amdhsa_kernel {N}","  .amdhsa_next_free_vgpr 512","  .amdhsa_next_free_sgpr 100","  .amdhsa_accum_offset 256",
 "  .amdhsa_group_segment_fixed_size 0","  .amdhsa_kernarg_size 56","  .amdhsa_user_sgpr_count 2","  .amdhsa_user_sgpr_kernarg_segment_ptr 1",
 "  .amdhsa_system_sgpr_workgroup_id_x 1",".end_amdhsa_kernel"]
open(sys.argv[1],'w').write("\n".join(out)+"\n")
bad=0
bad+=hz.check(entry+pool0+pz+pool1+pool+rpoll+sync+poll+go+pas,'pool')
bad+=hz.check(entry+wp0+wp+wj+kp+pj+wr_+arr+go+pas,'kpath')
bad+=hz.check(entry+wp0+wp+wj+vp+pj+wr_+arr,'vpath')
for q in range(3):
    bad+=hz.check(pas+flat(B[q][2:])+["s_cbranch x"]+flat(B[q])+["s_cbranch x"]+T[q]+epi+ok+fb+fbl+fbl+fb2+pas,f'main{q}')
print("hazards:",bad)
```

```python
import sys, struct, math, os
import hz
DIAG=int(os.environ.get('DIAG','0'))
OUTMOD=os.environ.get('OUTMOD','')
PMOD=os.environ.get('PMOD','nt')
KVMOD=os.environ.get('KVMOD','sc1')
XMOD=os.environ.get('XMOD','')
OUTSZ=int(os.environ.get('OUTSZ','9633792'))
def R(x,n=1):
    if x>=256: return f"a{x-256}" if n==1 else f"a[{x-256}:{x-256+n-1}]"
    return f"v{x}" if n==1 else f"v[{x}:{x+n-1}]"
def M16(d,a,b,c=None):
    c = R(d,4) if c is None else (c if isinstance(c,str) else R(c,4))
    return f"v_mfma_f32_16x16x32_bf16 {R(d,4)}, {R(a,4)}, {R(b,4)}, {c}"
def f32(x): return "0x%08x"%struct.unpack("<I",struct.pack("<f",x))[0]
def base(ct): return 32*(ct//2)+4*(ct%2)
XB=9633792; WSB=0x10000000; OOB=0x40000000
FLG=0x80000
REG=28672; XI=73728; XS=116736; FLAG=XS+768; LDSB=FLAG+64
assert all((q*2341)>>16==q//28 for q in range(208))
assert all((c*5462)>>16==c//12 for c in range(192))
S0=8; P0=32; P6=80; ONES=84; IDX=88; MM=92; OK=120; VF=192; XO=240; T2=56; LL=256+228
OS=256; OX=256+72; XF=256+96; KF=256+180; ASP=256+228
FV=89; FA=90
XA=1; XL=2; XOUT=243; LRCV=MM
sX=20; sO=24; sW=28; sA=32; sB=36; sD=40
def SR(d): return f"s[{d}:{d+3}]"
def srd(d, lo, size): return [f"s_mov_b32 s{d}, s{lo}", f"s_mov_b32 s{d+1}, s{lo+1}", f"s_mov_b32 s{d+2}, {size}", f"s_mov_b32 s{d+3}, 0x00020000"]
def Oreg(t): return OS+24*t if t<3 else (OK+24*(t-3) if t<6 else OX)
def RB(t): return [P0,VF,VF+24][t]
def Preg(st,t): return P0+8*t+4*st if t<6 else P6
def W1(i): return KF+4*i if i<12 else ASP+4*(i-12)
def W2(i): return VF+4*i if i<12 else T2+4*(i-12)
nst=[0]
def stamp(idx):
    if not DIAG: return []
    return ["s_memrealtime s[66:67]","s_memtime s[68:69]","s_waitcnt lgkmcnt(0)",f"s_mov_b32 s{72+2*idx}, s66",f"s_mov_b32 s{73+2*idx}, s68"]
def stampdump():
    if not DIAG: return []
    o=["s_lshl_b32 s66, s2, 2","s_add_u32 s66, s66, s44","s_lshl_b32 s66, s66, 6",f"s_add_u32 s66, s66, {0x100000}","v_mov_b32 v20, 0"]
    for i in range(8):
        o+=[f"v_mov_b32 v22, s{72+2*i}",f"v_mov_b32 v23, s{73+2*i}",f"buffer_store_dwordx2 v[22:23], v20, {SR(sW)}, s66 offen offset:{8*i}","s_nop 1"]
    return o

def kload(stage,f):
    v,o=(3,f*1024) if f<4 else (4,(f-4)*1024)
    return f"buffer_load_dwordx4 {R(KF+24*stage+4*f,4)}, v{v}, {SR(sW)}, s60 offen offset:{o}"
def vload(stage,ct):
    v,o=(4,2048+ct*1024) if ct<2 else (5,(ct-2)*1024)
    return f"buffer_load_dwordx4 {R(VF+24*stage+4*ct,4)}, v{v}, {SR(sW)}, s60 offen offset:{o}"
def slots_of(qg):
    a=[(0,t) for t in range(6)]+([(0,6)] if qg==0 else [])
    b=[(1,t) for t in range(6)]+([(1,6)] if qg==1 else [])
    return a+b
def colorf(N): return (lambda n: (n%13)%2 if n%13<12 else 2) if N==13 else (lambda n: n%2)
def qk(c,st,t):
    S=S0+8*c
    return [M16(S+4*k, KF+24*st+4*(3*k+j), XF+12*t+4*j, MM+4*t if j==0 else None) for k in range(2) for j in range(3)]
def pv(st,t):
    P=Preg(st,t)
    o=[M16(Oreg(t)+4*q, VF+24*st+4*q, P) for q in range(6)]
    if t==6: o.append(M16(LL+4*t, ONES, P))
    elif st==1: o.append(f"v_smfmac_f32_16x16x64_bf16 {R(LL+4*t,4)}, {R(ONES,4)}, {R(P0+8*t,8)}, v{IDX}")
    return o
def expgaps(c,st,t,n=13):
    S=S0+8*c; P=Preg(st,t)
    E=lambda j: f"v_exp_f32 v{S+j}, v{S+j}"
    C=lambda j: f"v_cvt_pk_bf16_f32 v{P+j}, v{S+2*j}, v{S+2*j+1}"
    return [[E(0)],[E(1)],[E(2)],[E(3)],[E(4)],[C(0),C(1)],[E(5)],[E(6)],[E(7)],[],[C(2),C(3)],[],[]][:n]
def body(qg):
    sl=slots_of(qg); out=[]; NS=len(sl); color=colorf(NS)
    for n,(st,t) in enumerate(sl):
        idx=[i for i,(s2,_) in enumerate(sl) if s2==st]
        pos=n-idx[0]; last=len(idx)-1
        mm=qk(color(n),st,t)+pv(*sl[(n-2)%NS])
        g=expgaps(color(n-1),*sl[(n-1)%NS],n=len(mm)); fr=(9,11); e=len(mm)-1
        if pos in (0,1):
            for i in range(2): g[fr[i]].append(kload(1-st,2+2*pos+i))
        if pos==1: g[e].append("s_waitcnt vmcnt(6)")
        if pos in (2,3,4):
            for i in range(2): g[fr[i]].append(vload(1-st,2*(pos-2)+i))
        if pos==last-1:
            g[e if last==5 else 9].append(f"s_add_u32 s60, s60, {36864 if st==0 else 12288}")
            g[e].append("s_waitcnt vmcnt(6)")
        if pos==last and st==0:
            g[5].append(f"v_cmp_ne_u32 vcc, 1, v{FV}"); g[7]+=[f"s_cbranch_vccnz L_slow{qg}",f"L_back{qg}:"]
        if pos==2 and st==1: g[e].append("s_sub_u32 s61, s61, 1")
        if pos==last:
            for i in range(2): g[fr[i]].append(kload(st,i))
        if pos==last and st==1: g[10].append("s_cmp_lg_u32 s61, 0")
        if os.environ.get('NOLD'): g=[[x for x in y if not x.startswith('buffer_load')] for y in g]
        o=[f"; slot {n}: stage {st} tile {t}"]
        for i in range(len(mm)): o.append(mm[i]); o+=g[i]
        out.append(o)
    return out
def tail(qg):
    sl=slots_of(qg)
    order=[(0,0),(0,1),(0,2),(0,3),(1,0),(1,1),(1,2)]+([(qg,6)] if qg is not None else [])+[(0,4),(0,5),(1,3),(1,4),(1,5)]
    NS=len(sl); color=colorf(NS)
    seq=[sl[-2],sl[-1]]+order
    col=[color(NS-2),color(NS-1)]+[color(n) for n in range(NS)]
    out=[]; pend=[]
    def states_since(i): return sum((int(l.split()[1])+1 if l.startswith('s_nop') else 1) for l in out[i+1:] if not l.startswith(';'))
    def place(n):
        for _ in range(n):
            if pend and states_since(pend[0][0])>=8:
                out.append(pend.pop(0)[1])
                if pend and 'b128' not in pend[0][1] and states_since(pend[0][0])>=8: out.append(pend.pop(0)[1])
    def wr(t,q):
        if q<6: return f"ds_write_b128 v6, {R(Oreg(t)+4*q,4)} offset:{(6*t+q)*1024 if t<3 else (18+q)*1024}"
        if t==6: return f"ds_write_b32 v6, {R(LL+4*t)} offset:{24576+3072}"
        return f"ds_write_b64 v6, {R(LL+4*t,2)} offset:{24576+1024*t}"
    rd0=[f"ds_read_b64 {R(LRCV+4*t,2)}, v7 offset:{24576+1024*t}" for t in range(3)]+[f"ds_read_b128 {R(RB(0)+4*q,4)}, v7 offset:{q*1024}" for q in range(6)]
    rd1=[f"ds_read_b128 {R(RB(1)+4*q,4)}, v7 offset:{(6+q)*1024}" for q in range(6)]
    rds=[]
    nb=NS
    for k in range(nb+2):
        out.append(f"; tail slot {k}")
        mm=[]
        if k<nb: mm+=[(m,None) for m in qk(col[k+2],*seq[k+2])]
        st,t=seq[k]
        final = k>=2 and (t==6 or (t<3 and st==1))
        mm+=[(m,(t,q) if final else None) for q,m in enumerate(pv(st,t))]
        if k<nb: g=expgaps(col[k+1],*seq[k+1],n=len(mm))
        elif k==nb:
            f=[x for y in expgaps(col[k+1],*seq[k+1]) for x in y]; g=[f[2*i:2*i+2] for i in range(7)]
        else: g=[[] for _ in range(7)]
        fr=(9,11); e=len(mm)-1
        if k in (0,1):
            for i in range(2): g[fr[i]].append(kload(1,2+2*k+i))
        if k==1: g[e].append("s_waitcnt vmcnt(6)")
        if k in (2,3):
            for i in range(3): g[(7,9,11)[i]].append(vload(1,3*(k-2)+i))
        if k==3: g[e].append("s_waitcnt vmcnt(6)")
        if k==6: g[5].append("s_waitcnt vmcnt(0)")
        BS,BG=NS-1,8
        if k==BS: g[BG]+=["s_waitcnt lgkmcnt(0)","s_barrier"]
        for i,(m,w) in enumerate(mm):
            out.append(m)
            if w: pend.append((len(out)-1, wr(*w)))
            out+=g[i]
            if k==BS and i==BG: assert not pend; rds=rd0+rd1
            if k<BS or (k==BS and i<4):
                if i in ((2,5,9,11,12) if k<BS else (0,1,2,3)): place(1)
            elif not g[i]:
                for _ in range(3):
                    if rds: out.append(rds.pop(0))
    assert not pend and not rds, (pend,rds)
    return out

XR=MM
def common_setup():
    o=["v_and_b32 v8, 15, v0","v_lshrrev_b32 v9, 4, v0","v_lshlrev_b32 v9, 4, v9",
       f"v_lshlrev_b32 v{FA}, 7, v8",f"v_add_u32 v{FA}, {FLG+4096}, v{FA}",
       "v_lshlrev_b32 v3, 4, v0","v_add_u32 v4, 4096, v3","v_add_u32 v5, 8192, v3",
       f"s_mul_i32 s48, s44, {REG}","v_add_u32 v6, s48, v3","s_xor_b32 s48, s44, 2",f"s_mul_i32 s48, s48, {REG}","v_add_u32 v7, s48, v3",
       "s_mul_i32 s48, s45, 96","s_mul_i32 s49, s46, 48","s_add_u32 s50, s48, s49",
       "s_sub_u32 s49, 48, s49","s_add_u32 s49, s48, s49",
       "s_mov_b32 s51, 37632",f"s_mov_b32 s52, {-2304}",f"s_mov_b32 s53, {21504-2688}",f"v_add_u32 v13, {XI}, v9"]
    for t in range(6):
        o+=[f"s_add_u32 s48, s{49 if t<3 else 50}, {16*(t%3)}","v_add_u32 v10, s48, v8"]
        o+=["v_mul_u32_u24 v11, 4682, v10","v_mul_u32_u24 v10, 192, v10","v_lshrrev_b32 v12, 17, v11","v_bfe_u32 v11, v11, 16, 1"]
        if 3<=t<6: o+=[f"v_mad_u32_u24 v14, v12, s51, v10",f"v_add_u32 v{XO+t-3}, v14, v9"]
        o+=["v_mad_i32_i24 v10, v12, s52, v10","v_mad_u32_u24 v10, v11, s53, v10",f"v_add_u32 v{XR+t}, v10, v13"]
    o+=["v_lshrrev_b32 v10, 2, v8","v_and_b32 v11, 3, v8","v_mul_u32_u24 v10, 5376, v10","v_mul_u32_u24 v11, 192, v11","v_add3_u32 v10, v10, v11, v9",
        f"v_add_u32 v{XOUT}, {6*43008+24*192}, v10","s_min_u32 s48, s44, 2","s_lshl_b32 s48, s48, 11",f"v_add_u32 v{XA}, s48, v3"]
    return o
assert all((q*4682)>>16==q//14 and (q*4682)>>17==q//28 for q in range(208))
assert all((c*5462)>>16==c//12 for c in range(192))
def xreads(): return [f"ds_read_b128 {R(XF+12*t+4*s,4)}, v{XR+t} offset:{64*s}" for t in range(6) for s in range(3)]
def xshared(): return srd(sX,4,XB)+[f"buffer_load_dwordx4 {R(XF+72+4*s,4)}, v{XOUT}, {SR(sX)}, s47 offen offset:{64*s}" for s in range(3)]
def init_acc():
    return [f"v_accvgpr_write_b32 a{r}, 0" for r in range(96)]+[f"v_accvgpr_write_b32 {R(LL+r)}, 0" for r in range(28)]+[f"v_mov_b32 v{r}, 0" for r in range(OK,OK+72)]
def init_const():
    return [f"v_mov_b32 v{MM+r}, 0" for r in range(28)]
def dma_loop(label, vs, srdreg, step, mod=""):
    return [label+":","s_mov_b32 m0, s49","s_add_u32 s49, s49, 3072"]+\
           [f"buffer_load_dwordx4 v{vs[j]}, {SR(srdreg)}, s48 offen offset:{1024*j} {mod} lds" for j in range(3)]+\
           [f"s_add_u32 s48, s48, {step}","s_cmp_lt_u32 s49, s50",f"s_cbranch_scc1 {label}"]

N="standalone__window_attn_twins__vision_kernel"
PF="buffer_load_dwordx4 a[252:255], v9, s[88:91], 0 offen" if int(os.environ.get("PF","1")) else "s_nop 0"
entry=(["s_memrealtime s[96:97]"] if os.environ.get('P4') else [])+["s_cmp_ge_u32 s2, 256","s_cbranch_scc1 L_done",
  "s_load_dwordx8 s[4:11], s[0:1], 0","s_load_dwordx4 s[12:15], s[0:1], 32","s_load_dwordx2 s[16:17], s[0:1], 48",
  "s_getpc_b64 s[88:89]","L_pc:","s_lshr_b32 s47, s2, 3","s_lshl_b32 s48, s47, 12","v_lshl_add_u32 v9, v0, 4, s48","s_mov_b32 s90, L_end-L_pc","s_mov_b32 s91, 0x00020000",
  "v_and_b32 v9, 0x7fff, v9","v_lshrrev_b32 v8, 6, v0","v_and_b32 v0, 63, v0",
  PF,"v_lshlrev_b32 v20, 4, v0","v_readfirstlane_b32 s44, v8",f"v_mov_b32 v18, {OOB}",
  "s_and_b32 s48, s2, 7","s_mul_i32 s47, s47, 301056","s_mul_i32 s48, s48, 5376","s_add_u32 s47, s47, s48",
  f"s_mov_b32 s{sA+3}, 0x00020000",
  "s_cmp_ge_u32 s44, 2","s_cbranch_scc1 L_wpath"]
ids=["s_and_b32 s45, s44, 1","s_lshr_b32 s46, s44, 1","s_mul_i32 s63, s46, 24576","s_mov_b32 s62, 0","v_and_b32 v16, 15, v0","v_lshrrev_b32 v17, 4, v0"]
pool0=["v_cmp_gt_u32 vcc, 40, v0","s_mul_i32 s48, s44, 2688","s_add_u32 s48, s48, s47","s_mul_i32 s49, s44, 21504",f"s_add_u32 s49, s49, {XI}","s_add_u32 s50, s49, 21504",
  "v_cndmask_b32 v21, v18, v20, vcc",f"s_mov_b32 s{sA+2}, {XB}","s_waitcnt lgkmcnt(0)",f"s_mov_b32 s{sA}, s4",f"s_mov_b32 s{sA+1}, s5"]+stamp(0)
pool0+=([f"s_sleep {os.environ['PDELAY']}"] if os.environ.get('PDELAY') else [])+([f"s_setprio {os.environ.get('PRIO','1')}"])+srd(sW,16,WSB)+["s_lshl_b32 s59, s2, 2","s_add_u32 s59, s59, s44","s_cmp_lg_u32 s59, 1","s_cbranch_scc1 L_xdma"]
pz=["v_lshlrev_b32 v29, 7, v0"]+[f"v_mov_b32 v{32+i}, 0" for i in range(4)]+[f"s_mov_b32 s51, {FLG}",f"buffer_store_dwordx4 v[32:35], v29, {SR(sW)}, s51 offen sc1",
    f"s_mov_b32 s51, {FLG+8192}",f"buffer_store_dwordx4 v[32:35], v29, {SR(sW)}, s51 offen sc1"]
pool1=dma_loop("L_xdma",[20,20,21],sA,43008,PMOD)+(stamp(5) if os.environ.get('P3') else [])+["s_branch L_pool"]
PX=VF
pool=["s_setprio 0"]+srd(sD,14,256)+["s_cmp_lg_u32 s59, 1","s_cbranch_scc1 L_nrd","v_mov_b32 v32, 1","v_mov_b32 v33, 0","s_waitcnt vmcnt(21)","s_mov_b64 exec, 1",
     f"buffer_store_dword v32, v33, {SR(sD)}, 0 offen sc1","s_mov_b64 exec, -1","L_nrd:"]+ids+srd(sO,12,OUTSZ)
pool+=["v_and_b32 v21, 1, v16","v_lshlrev_b32 v21, 4, v21","v_mov_b32 v22, 0x3f80","v_lshlrev_b32 v21, v21, v22","v_lshrrev_b32 v22, 1, v16"]
for d in range(8): pool+=[f"v_cmp_eq_u32 vcc, {d}, v22","s_nop 1",f"v_cndmask_b32 v{24+d}, 0, v21, vcc"]
pool+=[f"v_mov_b32 v8, {FLAG}","v_mov_b32 v9, 0","ds_write_b32 v8, v9"]
pool+=["v_lshrrev_b32 v21, 1, v17","v_mul_u32_u24 v21, 192, v21","v_lshl_add_u32 v21, v16, 4, v21","v_and_b32 v22, 1, v17","v_lshl_add_u32 v21, v22, 3, v21",
       "s_mul_i32 s48, s44, 384",f"s_add_u32 s48, s48, {XS}","v_add_u32 v21, s48, v21","v_cmp_gt_u32 s[54:55], 12, v16",
       "s_sub_u32 s50, s50, 21504","v_lshl_add_u32 v39, v16, 4, s50","v_mul_u32_u24 v36, 192, v17","v_add_u32 v36, v36, v39","v_cmp_gt_u32 vcc, 3, v17",
       "v_add_u32 v39, 2688, v39","v_add_u32 v37, 768, v36",f"v_add_u32 v38, {768+1344}, v36","v_cndmask_b32 v37, v39, v37, vcc","v_cndmask_b32 v38, v39, v38, vcc"]
pool+=stamp(1)
PX=OK
def prd(r):
    b=PX+16*r
    return [f"ds_read_b128 {R(b,4)}, v36 offset:{3072*r}",f"ds_read_b128 {R(b+4,4)}, v37 offset:{3072*r}",
            f"ds_read_b128 {R(b+8,4)}, v36 offset:{3072*r+1344}",f"ds_read_b128 {R(b+12,4)}, v38 offset:{3072*r}"]
def pmm(r): return [M16(32, 24+4*(j//2), PX+16*r+4*j, "0" if (r,j)==(0,0) else None) for j in range(4)]
for r in range(7):
    pool+=[f"s_waitcnt vmcnt({3*(6-r)})"]+prd(r)
    if r>=2: pool+=["s_waitcnt lgkmcnt(8)"]+pmm(r-2)
pool+=["s_waitcnt lgkmcnt(4)"]+pmm(5)
m=pmm(6)
for j in range(4): pool+=[f"s_waitcnt lgkmcnt({3-j})",m[j]]
pool+=["s_nop 7"]+[f"v_mul_f32 v{32+i}, {f32(1/49)}, v{32+i}" for i in range(4)]
pool+=["v_cvt_pk_bf16_f32 v32, v32, v33","v_cvt_pk_bf16_f32 v33, v34, v35","s_mov_b64 exec, s[54:55]","ds_write_b64 v21, v[32:33]","s_mov_b64 exec, -1",
       "s_waitcnt lgkmcnt(0)"]+stamp(2)+["s_barrier"]
pool+=common_setup()+xshared()+xreads()+init_const()+init_acc()
pool+=(stamp(3) if not os.environ.get('P2') else [])+["s_branch L_go"]
wp0=["s_sub_u32 s54, s44, 2"]
for j in range(3):
    wp0+=[f"v_add_u32 v19, {64*j}, v0","v_mul_u32_u24 v24, 5462, v19","v_lshlrev_b32 v19, 4, v19","v_lshrrev_b32 v24, 16, v24",
          "v_mul_u32_u24 v24, 192, v24",f"v_add3_u32 v{21+j}, v24, v19, s{[92,93,94][j]}"]
wp0=[f"s_mov_b32 s92, 0","s_mov_b32 s93, -1024","s_mov_b32 s94, -2048"]+wp0
wp0+=["s_mul_i32 s48, s54, 192","s_mul_i32 s49, s54, 36864","s_add_u32 s50, s49, 18432",f"s_mov_b32 s{sA+2}, 36864",
     "s_waitcnt lgkmcnt(0)",f"s_mov_b32 s{sA}, s8",f"s_mov_b32 s{sA+1}, s9"]
wp=stamp(0)+([f"s_sleep {os.environ['WDELAY']}"] if os.environ.get('WDELAY') else [])+[f"s_setprio {os.environ.get('WPRIO','3')}"]+dma_loop("L_w1dma",[21,22,23],sA,6144)+["s_setprio 0"]
wp+=["s_cmp_eq_u32 s54, 0",f"s_cselect_b32 s{sB}, s6, s10",f"s_cselect_b32 s{sB+1}, s7, s11",f"s_mov_b32 s{sB+2}, 18432",f"s_mov_b32 s{sB+3}, 0x00020000",
     "s_mov_b32 s48, 0","s_add_u32 s50, s50, 18432"]+dma_loop("L_w2dma",[20,20,20],sB,3072)
wj=ids+srd(sW,16,WSB)+srd(sD,14,256)
wj+=["s_mul_i32 s55, s54, 36864","v_lshrrev_b32 v22, 2, v16","v_and_b32 v23, 3, v16",
     "v_lshl_add_u32 v44, v17, 3, v22","v_mul_u32_u24 v44, 192, v44","v_lshl_add_u32 v44, v23, 4, v44","v_add_u32 v44, s55, v44",
     "v_lshl_add_u32 v47, v22, 3, v23","v_mul_u32_u24 v47, 192, v47","v_lshl_add_u32 v47, v17, 4, v47",
     "v_mul_u32_u24 v45, 192, v23","v_lshl_add_u32 v45, v17, 4, v45",f"v_add_u32 v45, {XS}, v45",
     "v_cmp_gt_u32 vcc, 4, v16","v_cmp_gt_u32 s[52:53], 16, v0","s_cmp_eq_u32 s54, 0","s_cselect_b64 vcc, vcc, s[52:53]","s_nop 1","v_cndmask_b32 v46, v18, v20, vcc",
     "s_lshr_b32 s56, s2, 3","s_mul_i32 s56, s56, 12288","s_bfe_u32 s57, s2, 0x10002","s_and_b32 s58, s2, 3"]
wj+=stamp(1)+["s_waitcnt vmcnt(18)"]
for nt in range(6):
    for s_ in range(3):
        for h in range(2): wj.append(f"ds_read_b64_tr_b16 {R(W1(3*nt+s_)+2*h,2)}, v44 offset:{(32*s_+4*h)*192+base(nt)*2}")
D1=8; XSF=OX; KB=32
wj+=["s_waitcnt lgkmcnt(0)"]+stamp(2)+["s_cmp_eq_u32 s54, 0","s_cbranch_scc0 L_vp"]
def step1(rd):
    o=["s_barrier"]+[f"ds_read_b128 {R(XSF+4*s_,4)}, v45 offset:{64*s_}" for s_ in range(3)]+["s_waitcnt vmcnt(0)","s_waitcnt lgkmcnt(0)"]
    per=len(rd)//18
    for nt in range(6):
        for s_ in range(3):
            o.append(M16(D1+4*nt, W1(3*nt+s_), XSF+4*s_, "0" if s_==0 else None))
            o+=rd[per*(3*nt+s_):per*(3*nt+s_+1)]
    for u in range(3):
        if u==2: o.append("s_nop 1")
        for e in range(2):
            for z in range(2): o.append(f"v_cvt_pk_bf16_f32 v{KB+4*u+2*e+z}, v{D1+8*u+4*e+2*z}, v{D1+8*u+4*e+2*z+1}")
    return o+["s_waitcnt lgkmcnt(0)","v_mov_b32 v47, 0",f"buffer_load_dword v45, v47, {SR(sD)}, 0 offen sc1"]
wq=[f"ds_read_b128 {R(W2(3*ct+u),4)}, v47 offset:{18432+base(ct)*192+64*u}" for ct in range(6) for u in range(3)]
wtr=[f"ds_read_b64_tr_b16 {R(W2(3*ct+u)+2*h,2)}, v44 offset:{18432+(32*u+4*h)*192+base(ct)*2}" for ct in range(6) for u in range(3) for h in range(2)]
sc=f32(96**-0.5*math.log2(math.e))
kp=step1(wq)+[M16(D1+4*ct, W2(3*ct+u), KB+4*u, "0" if u==0 else None) for ct in range(6) for u in range(3)]
kp+=[f"s_mov_b32 s50, {sc}",f"s_mov_b32 s51, {sc}","s_mul_i32 s57, s57, 3072","s_add_u32 s56, s56, s57","s_lshl_b32 s58, s58, 6","s_add_u32 s56, s56, s58"]
for u in range(3):
    if u==2: kp.append("s_nop 1")
    kp+=[f"v_pk_mul_f32 {R(D1+8*u+2*i,2)}, {R(D1+8*u+2*i,2)}, s[50:51]" for i in range(4)]
    kp+=[f"v_cvt_pk_bf16_f32 v{KB+4*u+i}, v{D1+8*u+2*i}, v{D1+8*u+2*i+1}" for i in range(4)]
    kp.append(f"buffer_store_dwordx4 {R(KB+4*u,4)}, v46, {SR(sW)}, s56 offen offset:{1024*u} {KVMOD}")
kp.append("s_branch L_pj")
vp=step1(wtr)+[M16(D1+4*ct, KB+4*u, W2(3*ct+u), "0" if u==0 else None) for ct in range(6) for u in range(3)]
vp+=["s_lshl_b32 s57, s57, 3","s_add_u32 s56, s56, s57","s_lshl_b32 s58, s58, 8","s_add_u32 s56, s56, s58","s_add_u32 s56, s56, 6144","s_add_u32 s57, s56, 4096"]
for ct in range(6):
    vp+=[f"v_cvt_pk_bf16_f32 v{D1+4*ct}, v{D1+4*ct}, v{D1+4*ct+1}",f"v_cvt_pk_bf16_f32 v{D1+4*ct+1}, v{D1+4*ct+2}, v{D1+4*ct+3}",
         f"buffer_store_dwordx2 {R(D1+4*ct,2)}, v46, {SR(sW)}, s{56 if ct<4 else 57} offen offset:{1024*(ct%4)} {KVMOD}"]
if os.environ.get('MOCK'):
    keep=lambda L: [x for x in L if not (x.startswith('v_mfma') or x.startswith('ds_read_b64_tr') or (x.startswith('ds_read_b128') and 'v47' in x) or x=="s_waitcnt vmcnt(0)" or x.startswith('v_pk_mul') or x.startswith('v_cvt'))]
    kp=keep(kp); vp=keep(vp); wj=[x for x in keep(wj) if x!="s_waitcnt vmcnt(18)"]
    wp=stamp(0)
PRE=srd(sO,12,OUTSZ)+common_setup()+xreads()
EARLY=int(os.environ.get('EARLY','1'))
pj=(stamp(5) if os.environ.get('P1') else [])+(PRE if EARLY else [])+["s_lshr_b32 s48, s2, 4","s_lshl_b32 s48, s48, 7",f"s_add_u32 s48, s48, {FLG}","v_mov_b32 v44, 1","s_mov_b32 s49, 0x200000",
    "s_lshl_b32 s57, s2, 1","s_add_u32 s57, s57, s54","s_lshl_b32 s57, s57, 7",f"s_add_u32 s57, s57, {FLG+8192}",
    "s_mov_b64 exec, 1","s_waitcnt vmcnt(0)"]+(stamp(6) if os.environ.get('P1') else [])
wr_=["v_cmp_ne_u32 vcc, 0, v45","s_sub_u32 s49, s49, 1","s_cbranch_scc1 L_arr","s_cbranch_vccnz L_arr",f"buffer_load_dword v45, v47, {SR(sD)}, 0 offen sc1","s_waitcnt vmcnt(0)","s_branch L_wr"]
NSH=int(os.environ.get('NSH','224'))
DIRECT=int(os.environ.get('DIRECT','1'))
arr=(["s_cmp_ge_u32 s2, 32","s_cbranch_scc1 L_nd",f"buffer_store_dword v44, v47, {SR(sW)}, s57 offen sc1","L_nd:"] if DIRECT else [])
PL=f"buffer_load_dword v12, v10, {SR(sW)}, 0 offen sc1"
INIT=init_acc()+init_const()
NP=int(os.environ.get('NP','999'))
arr+=[f"buffer_atomic_add v44, v47, {SR(sW)}, s48 offen sc0 sc1","s_mov_b64 exec, -1","v_mov_b32 v45, 1","s_add_u32 s58, s48, 4096"]
arr+=["v_lshlrev_b32 v10, 7, v0",f"v_add_u32 v10, {FLG+8192}, v10","v_mov_b32 v12, 1"]+(INIT[:NP]+["s_cmp_lg_u32 s54, 0","s_cbranch_scc1 L_np",PL,"L_np:"]+xshared()+INIT[NP:] if NP<999 else ["v_mov_b32 v12, s54"]+xshared()+INIT)
arr+=["s_mov_b64 exec, 1","s_waitcnt vmcnt(3)",
  "v_cmp_eq_u32 vcc, 31, v44","s_and_b64 exec, exec, vcc","s_cbranch_execz L_nl",
  f"buffer_store_dword v45, v47, {SR(sW)}, s58 offen sc1","L_nl:","s_mov_b64 exec, -1"]+(stamp(3) if not os.environ.get('P2') else [])
arr+=["s_mov_b32 s49, 0x200000","s_branch L_chk"]
SLEEP=int(os.environ.get('SLEEP','0'))
poll=([f"s_sleep {SLEEP}"] if SLEEP else [])+[PL,"s_sub_u32 s49, s49, 1","s_cbranch_scc1 L_go","s_waitcnt vmcnt(0)",
  "L_chk:","v_cmp_ne_u32 vcc, 1, v12","s_nop 1","s_cbranch_vccnz L_poll"]
go=["v_and_b32 v8, 1, v0","v_mul_u32_u24 v8, 0xaaaa, v8",f"v_add_u32 v{IDX}, 0x4444, v8"]+[f"v_mov_b32 v{ONES+r}, 0x3f803f80" for r in range(4)]+["s_waitcnt lgkmcnt(0)","s_barrier"]+stamp(4)
pas=["s_mov_b32 s60, s63"]+[kload(0,f) for f in range(6)]+[vload(0,c) for c in range(6)]+["s_add_u32 s60, s60, 12288"]+[kload(1,f) for f in range(6)]
pas+=["s_mov_b32 s61, 7","s_waitcnt vmcnt(15)"]
q0=qk(0,0,0); q1=qk(1,0,1); ev=[x for y in expgaps(0,0,0) for x in y]
pas+=q0[:3]+["s_waitcnt vmcnt(12)"]+q0[3:]+q1[:2]+[f"buffer_load_dword v{FV}, v{FA}, {SR(sW)}, 0 offen sc1"]+q1[2:3]+(stamp(5) if not (os.environ.get('P1') or os.environ.get('P3')) else ['s_nop 4'])+["s_and_b32 s48, s2, 3"]+ev[0:2]+[q1[3]]+ev[2:4]+[q1[4]]+ev[4:6]+[q1[5]]+ev[6:]+["s_waitcnt vmcnt(7)","s_cbranch_scc1 L_s2_2","s_cmp_eq_u32 s45, 0","s_cbranch_scc0 L_s2_1","s_branch L_s2_0"]
def chk(reg): return [f"v_cmp_nle_f32 vcc, s48, v{reg}","s_or_b64 s[64:65], s[64:65], vcc",f"v_cmp_nge_f32 vcc, s49, v{reg}","s_or_b64 s[64:65], s[64:65], vcc"]
LR=LRCV
epi=(stamp(6) if not os.environ.get('P1') else [])+[f"s_mov_b32 s48, {f32(2.0**-20)}",f"s_mov_b32 s49, {f32(2.0**120)}","s_mov_b64 s[64:65], 0","s_waitcnt lgkmcnt(6)"]
XP=P0
epi+=[f"v_add_u32 v28, {2*REG}, v{XA}",f"v_add_u32 v29, {2*REG}, v3"]
late=[f"ds_read_b128 {R(RB(2)+4*q,4)}, v7 offset:{(12+q)*1024}" for q in range(6)]+[None]*3
late+=[f"ds_read_b32 v{24+w}, v{3 if w<2 else 29} offset:{(w%2)*REG+27648}" for w in range(4)]
late+=[f"ds_read_b128 {R(XP+8*w+4*e,4)}, v{XA if w<2 else 28} offset:{(w%2)*REG+18432+1024*e}" for w in range(4) for e in range(2)]
def lsum(t):
    r=LR+4*t
    return [f"v_accvgpr_read_b32 v{r+2}, {R(LL+12+4*t)}",f"v_accvgpr_read_b32 v{r+3}, {R(LL+13+4*t)}",f"v_add_f32 v{r}, v{r}, v{r+1}",f"v_add_f32 v{r+2}, v{r+2}, v{r+3}",
            f"v_add_f32 v{r+2}, v{r+2}, v{r}",f"v_rcp_f32 v{r+3}, v{r+2}"]+(["s_nop 0",f"v_mul_f32 v{r+3}, {f32(float(os.environ['EPS']))}, v{r+3}"] if os.environ.get('EPS') else [])
epi+=lsum(0)
issued=12; nan=[]
for t in range(3):
    for u in range(3):
        need=6*t+2*u+2
        if t>0: epi.append(f"s_waitcnt lgkmcnt({min(15,issued-need)})")
        o=OK+24*t+8*u; rb=RB(t)+8*u
        epi+=[f"v_pk_add_f32 {R(o+2*i,2)}, {R(o+2*i,2)}, {R(rb+2*i,2)}" for i in range(4)]
        for _ in range(3):
            if late:
                x=late.pop(0)
                if x: epi.append(x); issued+=1
        if t<2 and u==1: epi+=lsum(t+1)
        epi+=[f"v_pk_mul_f32 {R(o+2*i,2)}, {R(o+2*i,2)}, {R(LR+4*t+2,2)} op_sel:[0,1] op_sel_hi:[1,1]" for i in range(4)]
        epi+=[f"v_cvt_pk_bf16_f32 v{o+i}, v{o+2*i}, v{o+2*i+1}" for i in range(4)]
        epi.append(f"buffer_store_dwordx4 {R(o,4)}, v{XO+t}, {SR(sO)}, s47 offen offset:{64*u} {OUTMOD}")
        if os.environ.get('NOST'): epi.pop()
        nan.append(o)
assert not late
epi+=[f"v_mov_b32 v{8+i}, 0" for i in range(4)]+["s_and_b32 s50, s2, 3","s_lshr_b32 s51, s44, 1","s_and_b32 s51, s51, s44","s_waitcnt lgkmcnt(0)","s_or_b32 s50, s50, s51","s_cbranch_scc0 L_x",
      "v_mov_b32 v24, 1.0","s_branch L_nx","L_x:"]
xe=["s_lshl_b32 s50, s44, 6","s_add_u32 s50, s50, s47","v_add_f32 v24, v24, v25","v_add_f32 v26, v26, v27","v_add_f32 v24, v24, v26","v_rcp_f32 v26, v24"]
xe+=[f"v_pk_add_f32 {R(XP+2*i,2)}, {R(XP+2*i,2)}, {R(XP+8+2*i,2)}" for i in range(4)]
xe+=[f"v_pk_add_f32 {R(XP+16+2*i,2)}, {R(XP+16+2*i,2)}, {R(XP+24+2*i,2)}" for i in range(4)]
xe+=[f"v_pk_add_f32 {R(XP+2*i,2)}, {R(XP+2*i,2)}, {R(XP+16+2*i,2)}" for i in range(4)]
xe+=[f"v_pk_mul_f32 {R(XP+2*i,2)}, {R(XP+2*i,2)}, v[26:27] op_sel_hi:[1,0]" for i in range(4)]
xe+=[f"v_cvt_pk_bf16_f32 v{8+i}, v{XP+2*i}, v{XP+2*i+1}" for i in range(4)]+[f"buffer_store_dwordx4 v[8:11], v{XOUT}, {SR(sO)}, s50 offen","L_nx:"]
epi+=xe
epi+=stamp(7)+(["s_mov_b32 s82, s96"] if os.environ.get('P4') else [])+(["s_getreg_b32 s75, hwreg(HW_REG_XCC_ID)"] if DIAG else [])+stampdump()
epi+=["s_cmp_lg_u32 s62, 0","s_cbranch_scc1 L_done"]
epi+=[f"v_mov_b32 v{12+r}, 0" for r in range(4)]+["s_nop 1"]
epi+=[M16(16,12,nan[0],"0")]+[M16(16,12,o) for o in nan[1:]]+[M16(16,12,8)]
epi+=chk(24)+chk(LR+2)+chk(LR+6)+chk(LR+10)
epi+=[f"v_mov_b32 v20, {FLAG}","v_mov_b32 v21, 1","s_nop 2","v_cmp_u_f32 vcc, v16, v16","s_or_b64 s[64:65], s[64:65], vcc",
      "s_cmp_eq_u64 s[64:65], 0","s_cbranch_scc1 L_ok","ds_write_b32 v20, v21"]
ok=["s_waitcnt lgkmcnt(0)","s_barrier","ds_read_b32 v21, v20","s_waitcnt lgkmcnt(0)","v_readfirstlane_b32 s48, v21","s_nop 3",
    "s_cmp_eq_u32 s48, 0","s_cbranch_scc1 L_done"]
fb=["s_waitcnt vmcnt(0)"]+[f"v_mov_b32 v{MM+4*t}, 0xff800000" for t in range(7)]+["s_mov_b32 s60, s63","s_mov_b32 s61, 16"]
fbl=[kload(0,f) for f in range(6)]+["s_waitcnt vmcnt(0)"]
for t in range(7):
    fbl+=[M16(S0+4*k, KF+4*(3*k+j), XF+12*t+4*j, "0" if j==0 else None) for k in range(2) for j in range(3)]
    fbl+=["s_nop 7"]+[f"v_max3_f32 v{MM+4*t}, v{S0+2*i}, v{S0+2*i+1}, v{MM+4*t}" for i in range(4)]
fbl+=["s_bitcmp1_b32 s61, 0","s_cselect_b32 s48, 24576, 0","s_add_u32 s60, s60, s48","s_add_u32 s60, s60, 12288","s_sub_u32 s61, s61, 1","s_cmp_lg_u32 s61, 0","s_cbranch_scc1 L_fb"]
fb2=[f"ds_write_b32 v6, v{MM+4*t} offset:{1024*t}" for t in range(7)]
fb2+=["v_and_b32 v8, 0x300, v3","v_sub_u32 v9, v6, v8","v_sub_u32 v10, v7, v8","s_waitcnt lgkmcnt(0)","s_barrier"]
for t in range(7):
    tp=(t+3)%6 if t<6 else 6
    for G in range(4): fb2+=[f"ds_read_b32 v{12+G}, v9 offset:{1024*t+256*G}",f"ds_read_b32 v{16+G}, v10 offset:{1024*tp+256*G}"]
    fb2+=["s_waitcnt lgkmcnt(0)","v_max3_f32 v12, v12, v13, v14","v_max3_f32 v12, v12, v15, v16","v_max3_f32 v12, v12, v17, v18","v_max_f32 v12, v12, v19"]
    fb2+=[f"v_sub_f32 v{MM+4*t+i}, 0, v12" for i in range(4)]
fb2+=init_acc()+["s_barrier","s_mov_b32 s62, 1","s_branch L_pass"]

flat=lambda x: [l for y in x for l in y]
B=[body(0),body(1),body(None)]; T=[tail(0),tail(1),tail(None)]
out=[]
HDR=open('standalone__window_attn_twins__vision.s.ref').read().split('\n')
out+=HDR[:10]
out.append(f"; @launch grid=(256,1,1) block=(256,1,1) lds={LDSB}")
out+=['.amdgcn_target "amdgcn-amd-amdhsa--gfx950"',".text",f".globl {N}",".p2align 8",f".type {N},@function",f"{N}:"]
def E(lines,label=None,align=False):
    if align: out.append(".p2align 6")
    if label: out.append(label+":")
    out.extend(l if l.endswith(':') else "    "+l for l in lines)
E(entry); E(pool0); E(pz); E(pool1); E(wp0,"L_wpath"); E(wp); E(wj); E(kp); E(vp,"L_vp"); E(pj,"L_pj"); E(wr_,"L_wr"); E(arr,"L_arr")
E(pool,"L_pool")
E(poll,"L_poll"); E(go,"L_go"); E(pas,"L_pass")
for q in range(3):
    E(flat(B[q][:2]),f"L_loop{q}",True); E(flat(B[q][2:]),f"L_s2_{q}"); E([f"s_cbranch_scc1 L_loop{q}"]); E(stamp(3) if os.environ.get('P2') else []); E(T[q])
    if q<2: E(["s_branch L_epi"])
def slow(q): return [f"L_slow{q}:","s_mov_b32 s49, 0x200000",f"L_slowp{q}:",f"buffer_load_dword v{FV}, v{FA}, {SR(sW)}, 0 offen sc1","s_sub_u32 s49, s49, 1",f"s_cbranch_scc1 L_back{q}",
    "s_waitcnt vmcnt(0)",f"v_cmp_ne_u32 vcc, 1, v{FV}","s_nop 1",f"s_cbranch_vccnz L_slowp{q}",f"s_branch L_back{q}"]
E(epi,"L_epi"); E(ok,"L_ok"); E(fb); E(fbl,"L_fb"); E(fb2); E(slow(0)+slow(1)+slow(None)); E(["s_endpgm","L_end:"],"L_done")
out+=['.section .rodata,"a"',".p2align 6",f".amdhsa_kernel {N}","  .amdhsa_next_free_vgpr 512","  .amdhsa_next_free_sgpr 100","  .amdhsa_accum_offset 256",
 "  .amdhsa_group_segment_fixed_size 0","  .amdhsa_kernarg_size 56","  .amdhsa_user_sgpr_count 2","  .amdhsa_user_sgpr_kernarg_segment_ptr 1",
 "  .amdhsa_system_sgpr_workgroup_id_x 1",".end_amdhsa_kernel"]
open(sys.argv[1],'w').write("\n".join(out)+"\n")
bad=0
bad+=hz.check(entry+pool0+pz+pool1+pool+go+pas,'pool')
bad+=hz.check(entry+wp0+wp+wj+kp+pj+wr_+arr+poll+go+pas,'kpath')
bad+=hz.check(entry+wp0+wp+wj+vp+pj+wr_+arr,'vpath')
for q in range(3):
    bad+=hz.check(pas+flat(B[q][2:])+["s_cbranch x"]+flat(B[q])+["s_cbranch x"]+T[q]+epi+ok+fb+fbl+fbl+fb2+pas,f'main{q}')
print("hazards:",bad)
```

```python
import sys, struct, math, os
import hz
DIAG=int(os.environ.get('DIAG','0'))
OUTMOD=os.environ.get('OUTMOD','')
PMOD=os.environ.get('PMOD','nt')
KVMOD=os.environ.get('KVMOD','sc1')
XMOD=os.environ.get('XMOD','')
OUTSZ=int(os.environ.get('OUTSZ','9633792'))
def R(x,n=1):
    if x>=256: return f"a{x-256}" if n==1 else f"a[{x-256}:{x-256+n-1}]"
    return f"v{x}" if n==1 else f"v[{x}:{x+n-1}]"
def M16(d,a,b,c=None):
    c = R(d,4) if c is None else (c if isinstance(c,str) else R(c,4))
    return f"v_mfma_f32_16x16x32_bf16 {R(d,4)}, {R(a,4)}, {R(b,4)}, {c}"
def f32(x): return "0x%08x"%struct.unpack("<I",struct.pack("<f",x))[0]
def base(ct): return 32*(ct//2)+4*(ct%2)
XB=9633792; WSB=0x10000000; OOB=0x40000000
FLG=0x80000
REG=28672; XI=73728; XS=116736; FLAG=XS+768; LDSB=FLAG+64
assert all((q*2341)>>16==q//28 for q in range(208))
assert all((c*5462)>>16==c//12 for c in range(192))
S0=8; P0=32; P6=80; ONES=84; IDX=88; MM=92; OK=120; VF=192; XO=240; T2=56; LL=256+228
OS=256; OX=256+72; XF=256+96; KF=256+180; ASP=256+228
FV=89; FA=90
XA=1; XL=2; XOUT=243; LRCV=MM
sX=20; sO=24; sW=28; sA=32; sB=36; sD=40
def SR(d): return f"s[{d}:{d+3}]"
def srd(d, lo, size): return [f"s_mov_b32 s{d}, s{lo}", f"s_mov_b32 s{d+1}, s{lo+1}", f"s_mov_b32 s{d+2}, {size}", f"s_mov_b32 s{d+3}, 0x00020000"]
def Oreg(t): return OS+24*t if t<3 else (OK+24*(t-3) if t<6 else OX)
def RB(t): return [P0,VF,VF+24][t]
def Preg(st,t): return P0+8*t+4*st if t<6 else P6
def W1(i): return KF+4*i if i<12 else ASP+4*(i-12)
def W2(i): return VF+4*i if i<12 else T2+4*(i-12)
nst=[0]
def stamp(idx):
    if not DIAG: return []
    return ["s_memrealtime s[66:67]","s_memtime s[68:69]","s_waitcnt lgkmcnt(0)",f"s_mov_b32 s{72+2*idx}, s66",f"s_mov_b32 s{73+2*idx}, s68"]
def stampdump():
    if not DIAG: return []
    o=["s_lshl_b32 s66, s2, 2","s_add_u32 s66, s66, s44","s_lshl_b32 s66, s66, 6",f"s_add_u32 s66, s66, {0x100000}","v_mov_b32 v20, 0"]
    for i in range(8):
        o+=[f"v_mov_b32 v22, s{72+2*i}",f"v_mov_b32 v23, s{73+2*i}",f"buffer_store_dwordx2 v[22:23], v20, {SR(sW)}, s66 offen offset:{8*i}","s_nop 1"]
    return o

def kload(stage,f):
    v,o=(3,f*1024) if f<4 else (4,(f-4)*1024)
    return f"buffer_load_dwordx4 {R(KF+24*stage+4*f,4)}, v{v}, {SR(sW)}, s60 offen offset:{o}"
def vload(stage,ct):
    v,o=(4,2048+ct*1024) if ct<2 else (5,(ct-2)*1024)
    return f"buffer_load_dwordx4 {R(VF+24*stage+4*ct,4)}, v{v}, {SR(sW)}, s60 offen offset:{o}"
def slots_of(qg):
    a=[(0,t) for t in range(6)]+([(0,6)] if qg==0 else [])
    b=[(1,t) for t in range(6)]+([(1,6)] if qg==1 else [])
    return a+b
def colorf(N): return (lambda n: (n%13)%2 if n%13<12 else 2) if N==13 else (lambda n: n%2)
def qk(c,st,t):
    S=S0+8*c
    return [M16(S+4*k, KF+24*st+4*(3*k+j), XF+12*t+4*j, MM+4*t if j==0 else None) for k in range(2) for j in range(3)]
def pv(st,t):
    P=Preg(st,t)
    o=[M16(Oreg(t)+4*q, VF+24*st+4*q, P) for q in range(6)]
    if t==6: o.append(M16(LL+4*t, ONES, P))
    elif st==1: o.append(f"v_smfmac_f32_16x16x64_bf16 {R(LL+4*t,4)}, {R(ONES,4)}, {R(P0+8*t,8)}, v{IDX}")
    return o
def expgaps(c,st,t,n=13):
    S=S0+8*c; P=Preg(st,t)
    E=lambda j: f"v_exp_f32 v{S+j}, v{S+j}"
    C=lambda j: f"v_cvt_pk_bf16_f32 v{P+j}, v{S+2*j}, v{S+2*j+1}"
    return [[E(0)],[E(1)],[E(2)],[E(3)],[E(4)],[C(0),C(1)],[E(5)],[E(6)],[E(7)],[],[C(2),C(3)],[],[]][:n]
def body(qg):
    sl=slots_of(qg); out=[]; NS=len(sl); color=colorf(NS)
    for n,(st,t) in enumerate(sl):
        idx=[i for i,(s2,_) in enumerate(sl) if s2==st]
        pos=n-idx[0]; last=len(idx)-1
        mm=qk(color(n),st,t)+pv(*sl[(n-2)%NS])
        g=expgaps(color(n-1),*sl[(n-1)%NS],n=len(mm)); fr=(9,11); e=len(mm)-1
        if pos in (0,1):
            for i in range(2): g[fr[i]].append(kload(1-st,2+2*pos+i))
        if pos==1: g[e].append("s_waitcnt vmcnt(6)")
        if pos in (2,3,4):
            for i in range(2): g[fr[i]].append(vload(1-st,2*(pos-2)+i))
        if pos==last-1:
            g[e if last==5 else 9].append(f"s_add_u32 s60, s60, {36864 if st==0 else 12288}")
            g[e].append("s_waitcnt vmcnt(6)")
        if pos==last and st==0:
            g[5].append(f"v_cmp_eq_u32 vcc, 0, v{FV}"); g[7]+=[f"s_cbranch_vccnz L_slow{qg}",f"L_back{qg}:"]
        if pos==2 and st==1: g[e].append("s_sub_u32 s61, s61, 1")
        if pos==last:
            for i in range(2): g[fr[i]].append(kload(st,i))
        if pos==last and st==1: g[10].append("s_cmp_lg_u32 s61, 0")
        if os.environ.get('NOLD'): g=[[x for x in y if not x.startswith('buffer_load')] for y in g]
        o=[f"; slot {n}: stage {st} tile {t}"]
        for i in range(len(mm)): o.append(mm[i]); o+=g[i]
        out.append(o)
    return out
def tail(qg):
    sl=slots_of(qg)
    order=[(0,0),(0,1),(0,2),(0,3),(1,0),(1,1),(1,2)]+([(qg,6)] if qg is not None else [])+[(0,4),(0,5),(1,3),(1,4),(1,5)]
    NS=len(sl); color=colorf(NS)
    seq=[sl[-2],sl[-1]]+order
    col=[color(NS-2),color(NS-1)]+[color(n) for n in range(NS)]
    out=[]; pend=[]
    def states_since(i): return sum((int(l.split()[1])+1 if l.startswith('s_nop') else 1) for l in out[i+1:] if not l.startswith(';'))
    def place(n):
        for _ in range(n):
            if pend and states_since(pend[0][0])>=8:
                out.append(pend.pop(0)[1])
                if pend and 'b128' not in pend[0][1] and states_since(pend[0][0])>=8: out.append(pend.pop(0)[1])
    def wr(t,q):
        if q<6: return f"ds_write_b128 v6, {R(Oreg(t)+4*q,4)} offset:{(6*t+q)*1024 if t<3 else (18+q)*1024}"
        if t==6: return f"ds_write_b32 v6, {R(LL+4*t)} offset:{24576+3072}"
        return f"ds_write_b64 v6, {R(LL+4*t,2)} offset:{24576+1024*t}"
    rd0=[f"ds_read_b64 {R(LRCV+4*t,2)}, v7 offset:{24576+1024*t}" for t in range(3)]+[f"ds_read_b128 {R(RB(0)+4*q,4)}, v7 offset:{q*1024}" for q in range(6)]
    rd1=[f"ds_read_b128 {R(RB(1)+4*q,4)}, v7 offset:{(6+q)*1024}" for q in range(6)]
    rds=[]
    nb=NS
    for k in range(nb+2):
        out.append(f"; tail slot {k}")
        mm=[]
        if k<nb: mm+=[(m,None) for m in qk(col[k+2],*seq[k+2])]
        st,t=seq[k]
        final = k>=2 and (t==6 or (t<3 and st==1))
        mm+=[(m,(t,q) if final else None) for q,m in enumerate(pv(st,t))]
        if k<nb: g=expgaps(col[k+1],*seq[k+1],n=len(mm))
        elif k==nb:
            f=[x for y in expgaps(col[k+1],*seq[k+1]) for x in y]; g=[f[2*i:2*i+2] for i in range(7)]
        else: g=[[] for _ in range(7)]
        fr=(9,11); e=len(mm)-1
        if k in (0,1):
            for i in range(2): g[fr[i]].append(kload(1,2+2*k+i))
        if k==1: g[e].append("s_waitcnt vmcnt(6)")
        if k in (2,3):
            for i in range(3): g[(7,9,11)[i]].append(vload(1,3*(k-2)+i))
        if k==3: g[e].append("s_waitcnt vmcnt(6)")
        if k==6: g[5].append("s_waitcnt vmcnt(0)")
        BS,BG=NS-1,8
        if k==BS: g[BG]+=["s_waitcnt lgkmcnt(0)","s_barrier"]
        for i,(m,w) in enumerate(mm):
            out.append(m)
            if w: pend.append((len(out)-1, wr(*w)))
            out+=g[i]
            if k==BS and i==BG: assert not pend; rds=rd0+rd1
            if k<BS or (k==BS and i<4):
                if i in ((2,5,9,11,12) if k<BS else (0,1,2,3)): place(1)
            elif not g[i]:
                for _ in range(3):
                    if rds: out.append(rds.pop(0))
    assert not pend and not rds, (pend,rds)
    return out

XR=MM
def common_setup():
    o=["v_and_b32 v8, 15, v0","v_lshrrev_b32 v9, 4, v0","v_lshlrev_b32 v9, 4, v9",
       f"v_lshlrev_b32 v{FA}, 7, v8",f"v_add_u32 v{FA}, {FLG+4096}, v{FA}",
       "v_lshlrev_b32 v3, 4, v0","v_add_u32 v4, 4096, v3","v_add_u32 v5, 8192, v3",
       f"s_mul_i32 s48, s44, {REG}","v_add_u32 v6, s48, v3","s_xor_b32 s48, s44, 2",f"s_mul_i32 s48, s48, {REG}","v_add_u32 v7, s48, v3",
       "s_mul_i32 s48, s45, 96","s_mul_i32 s49, s46, 48","s_add_u32 s50, s48, s49",
       "s_sub_u32 s49, 48, s49","s_add_u32 s49, s48, s49",
       "s_mov_b32 s51, 37632",f"s_mov_b32 s52, {-2304}",f"s_mov_b32 s53, {21504-2688}",f"v_add_u32 v13, {XI}, v9"]
    for t in range(6):
        o+=[f"s_add_u32 s48, s{49 if t<3 else 50}, {16*(t%3)}","v_add_u32 v10, s48, v8"]
        o+=["v_mul_u32_u24 v11, 4682, v10","v_mul_u32_u24 v10, 192, v10","v_lshrrev_b32 v12, 17, v11","v_bfe_u32 v11, v11, 16, 1"]
        if 3<=t<6: o+=[f"v_mad_u32_u24 v14, v12, s51, v10",f"v_add_u32 v{XO+t-3}, v14, v9"]
        o+=["v_mad_i32_i24 v10, v12, s52, v10","v_mad_u32_u24 v10, v11, s53, v10",f"v_add_u32 v{XR+t}, v10, v13"]
    o+=["v_lshrrev_b32 v10, 2, v8","v_and_b32 v11, 3, v8","v_mul_u32_u24 v10, 5376, v10","v_mul_u32_u24 v11, 192, v11","v_add3_u32 v10, v10, v11, v9",
        f"v_add_u32 v{XOUT}, {6*43008+24*192}, v10","s_min_u32 s48, s44, 2","s_lshl_b32 s48, s48, 11",f"v_add_u32 v{XA}, s48, v3"]
    return o
assert all((q*4682)>>16==q//14 and (q*4682)>>17==q//28 for q in range(208))
assert all((c*5462)>>16==c//12 for c in range(192))
def xreads(): return [f"ds_read_b128 {R(XF+12*t+4*s,4)}, v{XR+t} offset:{64*s}" for t in range(6) for s in range(3)]
def xshared(): return srd(sX,4,XB)+[f"buffer_load_dwordx4 {R(XF+72+4*s,4)}, v{XOUT}, {SR(sX)}, s47 offen offset:{64*s}" for s in range(3)]
def init_acc():
    return [f"v_accvgpr_write_b32 a{r}, 0" for r in range(96)]+[f"v_accvgpr_write_b32 {R(LL+r)}, 0" for r in range(28)]+[f"v_mov_b32 v{r}, 0" for r in range(OK,OK+72)]
def init_const():
    return [f"v_mov_b32 v{MM+r}, 0" for r in range(28)]
def dma_loop(label, vs, srdreg, step, mod=""):
    return [label+":","s_mov_b32 m0, s49","s_add_u32 s49, s49, 3072"]+\
           [f"buffer_load_dwordx4 v{vs[j]}, {SR(srdreg)}, s48 offen offset:{1024*j} {mod} lds" for j in range(3)]+\
           [f"s_add_u32 s48, s48, {step}","s_cmp_lt_u32 s49, s50",f"s_cbranch_scc1 {label}"]

ZWG=int(os.environ.get('ZWG','254'))
N="standalone__window_attn_twins__vision_kernel"
PF="buffer_load_dwordx4 a[252:255], v9, s[88:91], 0 offen" if int(os.environ.get("PF","1")) else "s_nop 0"
entry=(["s_memrealtime s[96:97]"] if os.environ.get('P4') else [])+["s_cmp_ge_u32 s2, 256","s_cbranch_scc1 L_done",
  "s_load_dwordx8 s[4:11], s[0:1], 0","s_load_dwordx4 s[12:15], s[0:1], 32","s_load_dwordx2 s[16:17], s[0:1], 48",
  "s_getpc_b64 s[88:89]","L_pc:","s_lshr_b32 s47, s2, 3","s_lshl_b32 s48, s47, 12","v_lshl_add_u32 v9, v0, 4, s48","s_mov_b32 s90, L_end-L_pc","s_mov_b32 s91, 0x00020000",
  "v_and_b32 v9, 0x7fff, v9","v_lshrrev_b32 v8, 6, v0","v_and_b32 v0, 63, v0",
  PF,"v_lshlrev_b32 v20, 4, v0","v_readfirstlane_b32 s44, v8",f"v_mov_b32 v18, {OOB}",
  "s_and_b32 s48, s2, 7","s_mul_i32 s47, s47, 301056","s_mul_i32 s48, s48, 5376","s_add_u32 s47, s47, s48",
  f"s_mov_b32 s{sA+3}, 0x00020000",
  "s_cmp_ge_u32 s44, 2","s_cbranch_scc1 L_wpath"]
ids=["s_and_b32 s45, s44, 1","s_lshr_b32 s46, s44, 1","s_mul_i32 s63, s46, 24576","s_mov_b32 s62, 0","v_and_b32 v16, 15, v0","v_lshrrev_b32 v17, 4, v0"]
pool0=["v_cmp_gt_u32 vcc, 40, v0","s_mul_i32 s48, s44, 2688","s_add_u32 s48, s48, s47","s_mul_i32 s49, s44, 21504",f"s_add_u32 s49, s49, {XI}","s_add_u32 s50, s49, 21504",
  "v_cndmask_b32 v21, v18, v20, vcc",f"s_mov_b32 s{sA+2}, {XB}","s_waitcnt lgkmcnt(0)",f"s_mov_b32 s{sA}, s4",f"s_mov_b32 s{sA+1}, s5"]+stamp(0)
pool0+=([f"s_sleep {os.environ['PDELAY']}"] if os.environ.get('PDELAY') else [])+([f"s_setprio {os.environ.get('PRIO','1')}"])+srd(sW,16,WSB)+["s_lshl_b32 s59, s2, 2","s_add_u32 s59, s59, s44",f"s_cmp_lg_u32 s59, {4*ZWG+1}","s_cbranch_scc1 L_xdma"]
pz=["v_lshlrev_b32 v29, 7, v0"]+[f"v_mov_b32 v{32+i}, 0" for i in range(4)]+[f"s_mov_b32 s51, {FLG}",f"buffer_store_dwordx4 v[32:35], v29, {SR(sW)}, s51 offen sc1",
    f"s_mov_b32 s51, {FLG+8192}",f"buffer_store_dwordx4 v[32:35], v29, {SR(sW)}, s51 offen sc1"]
pool1=dma_loop("L_xdma",[20,20,21],sA,43008,PMOD)+(stamp(5) if os.environ.get('P3') else [])+["s_branch L_pool"]
PX=VF
pool=["s_setprio 0"]+srd(sD,14,256)+[f"s_cmp_lg_u32 s59, {4*ZWG+1}","s_cbranch_scc1 L_nrd","v_mov_b32 v32, 1","v_mov_b32 v33, 0","s_waitcnt vmcnt(21)","s_mov_b64 exec, 1",
     f"buffer_store_dword v32, v33, {SR(sD)}, 0 offen sc1","s_mov_b64 exec, -1","L_nrd:"]+ids+srd(sO,12,OUTSZ)
pool+=["v_and_b32 v21, 1, v16","v_lshlrev_b32 v21, 4, v21","v_mov_b32 v22, 0x3f80","v_lshlrev_b32 v21, v21, v22","v_lshrrev_b32 v22, 1, v16"]
for d in range(8): pool+=[f"v_cmp_eq_u32 vcc, {d}, v22","s_nop 1",f"v_cndmask_b32 v{24+d}, 0, v21, vcc"]
pool+=[f"v_mov_b32 v8, {FLAG}","v_mov_b32 v9, 0","ds_write_b32 v8, v9"]
pool+=["v_lshrrev_b32 v21, 1, v17","v_mul_u32_u24 v21, 192, v21","v_lshl_add_u32 v21, v16, 4, v21","v_and_b32 v22, 1, v17","v_lshl_add_u32 v21, v22, 3, v21",
       "s_mul_i32 s48, s44, 384",f"s_add_u32 s48, s48, {XS}","v_add_u32 v21, s48, v21","v_cmp_gt_u32 s[54:55], 12, v16",
       "s_sub_u32 s50, s50, 21504","v_lshl_add_u32 v39, v16, 4, s50","v_mul_u32_u24 v36, 192, v17","v_add_u32 v36, v36, v39","v_cmp_gt_u32 vcc, 3, v17",
       "v_add_u32 v39, 2688, v39","v_add_u32 v37, 768, v36",f"v_add_u32 v38, {768+1344}, v36","v_cndmask_b32 v37, v39, v37, vcc","v_cndmask_b32 v38, v39, v38, vcc"]
pool+=stamp(1)
PX=OK
def prd(r):
    b=PX+16*r
    return [f"ds_read_b128 {R(b,4)}, v36 offset:{3072*r}",f"ds_read_b128 {R(b+4,4)}, v37 offset:{3072*r}",
            f"ds_read_b128 {R(b+8,4)}, v36 offset:{3072*r+1344}",f"ds_read_b128 {R(b+12,4)}, v38 offset:{3072*r}"]
def pmm(r): return [M16(32, 24+4*(j//2), PX+16*r+4*j, "0" if (r,j)==(0,0) else None) for j in range(4)]
for r in range(7):
    pool+=[f"s_waitcnt vmcnt({3*(6-r)})"]+prd(r)
    if r>=2: pool+=["s_waitcnt lgkmcnt(8)"]+pmm(r-2)
pool+=["s_waitcnt lgkmcnt(4)"]+pmm(5)
m=pmm(6)
for j in range(4): pool+=[f"s_waitcnt lgkmcnt({3-j})",m[j]]
pool+=["s_nop 7"]+[f"v_mul_f32 v{32+i}, {f32(1/49)}, v{32+i}" for i in range(4)]
pool+=["v_cvt_pk_bf16_f32 v32, v32, v33","v_cvt_pk_bf16_f32 v33, v34, v35","s_mov_b64 exec, s[54:55]","ds_write_b64 v21, v[32:33]","s_mov_b64 exec, -1",
       "s_waitcnt lgkmcnt(0)"]+stamp(2)+["s_barrier"]
pool+=common_setup()+xshared()+xreads()+init_const()+init_acc()
pool+=(stamp(3) if not os.environ.get('P2') else [])+["s_branch L_go"]
wp0=["s_sub_u32 s54, s44, 2"]
for j in range(3):
    wp0+=[f"v_add_u32 v19, {64*j}, v0","v_mul_u32_u24 v24, 5462, v19","v_lshlrev_b32 v19, 4, v19","v_lshrrev_b32 v24, 16, v24",
          "v_mul_u32_u24 v24, 192, v24",f"v_add3_u32 v{21+j}, v24, v19, s{[92,93,94][j]}"]
wp0=[f"s_mov_b32 s92, 0","s_mov_b32 s93, -1024","s_mov_b32 s94, -2048"]+wp0
wp0+=["s_mul_i32 s48, s54, 192","s_mul_i32 s49, s54, 36864","s_add_u32 s50, s49, 18432",f"s_mov_b32 s{sA+2}, 36864",
     "s_waitcnt lgkmcnt(0)",f"s_mov_b32 s{sA}, s8",f"s_mov_b32 s{sA+1}, s9"]
wp=stamp(0)+([f"s_sleep {os.environ['WDELAY']}"] if os.environ.get('WDELAY') else [])+[f"s_setprio {os.environ.get('WPRIO','3')}"]+dma_loop("L_w1dma",[21,22,23],sA,6144)+["s_setprio 0"]
wp+=["s_cmp_eq_u32 s54, 0",f"s_cselect_b32 s{sB}, s6, s10",f"s_cselect_b32 s{sB+1}, s7, s11",f"s_mov_b32 s{sB+2}, 18432",f"s_mov_b32 s{sB+3}, 0x00020000",
     "s_mov_b32 s48, 0","s_add_u32 s50, s50, 18432"]+dma_loop("L_w2dma",[20,20,20],sB,3072)
wj=ids+srd(sW,16,WSB)+srd(sD,14,256)
wj+=["s_mul_i32 s55, s54, 36864","v_lshrrev_b32 v22, 2, v16","v_and_b32 v23, 3, v16",
     "v_lshl_add_u32 v44, v17, 3, v22","v_mul_u32_u24 v44, 192, v44","v_lshl_add_u32 v44, v23, 4, v44","v_add_u32 v44, s55, v44",
     "v_lshl_add_u32 v47, v22, 3, v23","v_mul_u32_u24 v47, 192, v47","v_lshl_add_u32 v47, v17, 4, v47",
     "v_mul_u32_u24 v45, 192, v23","v_lshl_add_u32 v45, v17, 4, v45",f"v_add_u32 v45, {XS}, v45",
     "v_cmp_gt_u32 vcc, 4, v16","v_cmp_gt_u32 s[52:53], 16, v0","s_cmp_eq_u32 s54, 0","s_cselect_b64 vcc, vcc, s[52:53]","s_nop 1","v_cndmask_b32 v46, v18, v20, vcc",
     "s_lshr_b32 s56, s2, 3","s_mul_i32 s56, s56, 12288","s_bfe_u32 s57, s2, 0x10002","s_and_b32 s58, s2, 3"]
wj+=stamp(1)+["s_waitcnt vmcnt(18)"]
for nt in range(6):
    for s_ in range(3):
        for h in range(2): wj.append(f"ds_read_b64_tr_b16 {R(W1(3*nt+s_)+2*h,2)}, v44 offset:{(32*s_+4*h)*192+base(nt)*2}")
D1=8; XSF=OX; KB=32
wj+=["s_waitcnt lgkmcnt(0)"]+stamp(2)+["s_cmp_eq_u32 s54, 0","s_cbranch_scc0 L_vp"]
def step1(rd):
    o=["s_barrier"]+[f"ds_read_b128 {R(XSF+4*s_,4)}, v45 offset:{64*s_}" for s_ in range(3)]+["s_waitcnt vmcnt(0)","s_waitcnt lgkmcnt(0)"]+(stamp(1) if os.environ.get('P1') else [])
    per=len(rd)//18
    for nt in range(6):
        for s_ in range(3):
            o.append(M16(D1+4*nt, W1(3*nt+s_), XSF+4*s_, "0" if s_==0 else None))
            o+=rd[per*(3*nt+s_):per*(3*nt+s_+1)]
    for u in range(3):
        if u==2: o.append("s_nop 1")
        for e in range(2):
            for z in range(2): o.append(f"v_cvt_pk_bf16_f32 v{KB+4*u+2*e+z}, v{D1+8*u+4*e+2*z}, v{D1+8*u+4*e+2*z+1}")
    return o+["s_waitcnt lgkmcnt(0)","v_mov_b32 v47, 0",f"buffer_load_dword v45, v47, {SR(sD)}, 0 offen sc1"]
wq=[f"ds_read_b128 {R(W2(3*ct+u),4)}, v47 offset:{18432+base(ct)*192+64*u}" for ct in range(6) for u in range(3)]
wtr=[f"ds_read_b64_tr_b16 {R(W2(3*ct+u)+2*h,2)}, v44 offset:{18432+(32*u+4*h)*192+base(ct)*2}" for ct in range(6) for u in range(3) for h in range(2)]
sc=f32(96**-0.5*math.log2(math.e))
kp=step1(wq)+[M16(D1+4*ct, W2(3*ct+u), KB+4*u, "0" if u==0 else None) for ct in range(6) for u in range(3)]
kp+=[f"s_mov_b32 s50, {sc}",f"s_mov_b32 s51, {sc}","s_mul_i32 s57, s57, 3072","s_add_u32 s56, s56, s57","s_lshl_b32 s58, s58, 6","s_add_u32 s56, s56, s58"]
for u in range(3):
    if u==2: kp.append("s_nop 1")
    kp+=[f"v_pk_mul_f32 {R(D1+8*u+2*i,2)}, {R(D1+8*u+2*i,2)}, s[50:51]" for i in range(4)]
    kp+=[f"v_cvt_pk_bf16_f32 v{KB+4*u+i}, v{D1+8*u+2*i}, v{D1+8*u+2*i+1}" for i in range(4)]
    kp.append(f"buffer_store_dwordx4 {R(KB+4*u,4)}, v46, {SR(sW)}, s56 offen offset:{1024*u} {KVMOD}")
kp+=["s_mov_b32 s94, 1","s_branch L_pj"]
vp=step1(wtr)+[M16(D1+4*ct, KB+4*u, W2(3*ct+u), "0" if u==0 else None) for ct in range(6) for u in range(3)]
vp+=["s_lshl_b32 s57, s57, 3","s_add_u32 s56, s56, s57","s_lshl_b32 s58, s58, 8","s_add_u32 s56, s56, s58","s_add_u32 s56, s56, 6144","s_add_u32 s57, s56, 4096"]
for ct in range(6):
    vp+=[f"v_cvt_pk_bf16_f32 v{D1+4*ct}, v{D1+4*ct}, v{D1+4*ct+1}",f"v_cvt_pk_bf16_f32 v{D1+4*ct+1}, v{D1+4*ct+2}, v{D1+4*ct+3}",
         f"buffer_store_dwordx2 {R(D1+4*ct,2)}, v46, {SR(sW)}, s{56 if ct<4 else 57} offen offset:{1024*(ct%4)} {KVMOD}"]
if os.environ.get('MOCK'):
    keep=lambda L: [x for x in L if not (x.startswith('v_mfma') or x.startswith('ds_read_b64_tr') or (x.startswith('ds_read_b128') and 'v47' in x) or x=="s_waitcnt vmcnt(0)" or x.startswith('v_pk_mul') or x.startswith('v_cvt'))]
    kp=keep(kp); vp=keep(vp); wj=[x for x in keep(wj) if x!="s_waitcnt vmcnt(18)"]
    wp=stamp(0)
vp+=["s_mov_b32 s50, 0x7fff7fff"]+[f"v_and_b32 v{KB+2*ct+h}, s50, v{D1+4*ct+h}" for ct in range(6) for h in range(2)]
vp+=[f"v_pk_max_u16 v{KB+i}, v{KB+i}, v{KB+6+i}" for i in range(6)]+[f"v_pk_max_u16 v{KB+i}, v{KB+i}, v{KB+3+i}" for i in range(3)]
vp+=[f"v_pk_max_u16 v{KB}, v{KB}, v{KB+1}",f"v_pk_max_u16 v{KB}, v{KB}, v{KB+2}",f"v_lshrrev_b32 v{KB+1}, 16, v{KB}",f"v_and_b32 v{KB}, 0xffff, v{KB}",f"v_max_u32 v{KB}, v{KB}, v{KB+1}",
     f"v_cmp_lt_u32 vcc, {(127+30)<<7}, v{KB}","s_mov_b32 s94, 1","s_cmp_lg_u64 vcc, 0","s_cselect_b32 s94, 0x10001, s94"]
PRE=srd(sO,12,OUTSZ)+common_setup()+xreads()
EARLY=int(os.environ.get('EARLY','1'))
pj=(stamp(5) if os.environ.get('P1') else [])+(PRE if EARLY else [])+["s_lshr_b32 s48, s2, 4","s_lshl_b32 s48, s48, 7",f"s_add_u32 s48, s48, {FLG}","v_mov_b32 v44, 1","s_mov_b32 s49, 0x200000",
    "s_lshl_b32 s57, s2, 1","s_add_u32 s57, s57, s54","s_lshl_b32 s57, s57, 7",f"s_add_u32 s57, s57, {FLG+8192}",
    "s_mov_b64 exec, 1","s_waitcnt vmcnt(0)"]+(stamp(6) if os.environ.get('P1') else [])
wr_=["v_cmp_ne_u32 vcc, 0, v45","s_sub_u32 s49, s49, 1","s_cbranch_scc1 L_arr","s_cbranch_vccnz L_arr",f"buffer_load_dword v45, v47, {SR(sD)}, 0 offen sc1","s_waitcnt vmcnt(0)","s_branch L_wr"]
NSH=int(os.environ.get('NSH','224'))
DIRECT=int(os.environ.get('DIRECT','1'))
arr=(["s_cmp_ge_u32 s2, 32","s_cbranch_scc1 L_nd",f"buffer_store_dword v44, v47, {SR(sW)}, s57 offen sc1","L_nd:"] if DIRECT else [])
PL=f"buffer_load_dword v12, v10, {SR(sW)}, 0 offen sc1"
INIT=init_acc()+init_const()
LP=int(os.environ.get('LP','999'))
NP=int(os.environ.get('NP','999'))
arr+=["v_mov_b32 v43, s94",f"buffer_atomic_add v43, v47, {SR(sW)}, s48 offen sc0 sc1","s_mov_b64 exec, -1","s_add_u32 s58, s48, 4096"]
arr+=["v_lshlrev_b32 v10, 7, v0",f"v_add_u32 v10, {FLG+8192}, v10","v_mov_b32 v12, 1"]+(INIT[:NP]+["s_cmp_lg_u32 s54, 0","s_cbranch_scc1 L_np",PL,"L_np:"]+xshared()+INIT[NP:] if NP<999 else
   (["v_mov_b32 v12, s54","s_and_b32 s50, s2, 3","s_or_b32 s50, s50, s54"]+INIT[:LP]+["s_cmp_lg_u32 s50, 0","s_cbranch_scc1 L_np",PL,"L_np:"]+xshared()+INIT[LP:] if LP<999 else ["v_mov_b32 v12, s54"]+xshared()+INIT))
arr+=["s_mov_b64 exec, 1","s_waitcnt vmcnt(3)",
  "v_add_u32 v43, s94, v43","v_and_b32 v44, 0xffff, v43","v_lshrrev_b32 v45, 16, v43","v_cmp_eq_u32 vcc, 32, v44","v_add_u32 v45, 1, v45","s_and_b64 exec, exec, vcc","s_cbranch_execz L_nl",
  f"buffer_store_dword v45, v47, {SR(sW)}, s58 offen sc1","L_nl:","s_mov_b64 exec, -1"]+(stamp(3) if not os.environ.get('P2') else [])
WARM=int(os.environ.get('WARM','0'))
warm=["s_lshr_b32 s50, s2, 3","s_mul_i32 s50, s50, 1536",f"buffer_load_dwordx4 v[16:19], v3, {SR(sW)}, s50 offen sc1",f"buffer_load_dwordx4 v[20:23], v3, {SR(sW)}, s50 offen offset:512 sc1"]
if WARM==1: arr+=["s_cmp_eq_u32 s54, 0","s_cbranch_scc1 L_nw"]+warm+["L_nw:"]
if WARM==2:
    i=arr.index("s_waitcnt vmcnt(3)"); arr[i]="s_waitcnt vmcnt(5)"; arr[i-1:i-1]=warm
arr+=["s_mov_b32 s49, 0x200000","s_branch L_chk"]
SLEEP=int(os.environ.get('SLEEP','0'))
poll=([f"s_sleep {SLEEP}"] if SLEEP else [])+[PL,"s_sub_u32 s49, s49, 1","s_cbranch_scc1 L_go","s_waitcnt vmcnt(0)",
  "L_chk:","v_cmp_ne_u32 vcc, 1, v12","s_nop 1","s_cbranch_vccnz L_poll"]
go=["v_and_b32 v8, 1, v0","v_mul_u32_u24 v8, 0xaaaa, v8",f"v_add_u32 v{IDX}, 0x4444, v8"]+[f"v_mov_b32 v{ONES+r}, 0x3f803f80" for r in range(4)]+["s_waitcnt lgkmcnt(0)","s_barrier"]+stamp(4)
pas=(["s_mov_b32 s77, 0"] if DIAG else [])+["s_mov_b32 s60, s63"]+[kload(0,f) for f in range(6)]+[vload(0,c) for c in range(6)]+["s_add_u32 s60, s60, 12288"]+[kload(1,f) for f in range(6)]
pas+=["s_mov_b32 s61, 7","s_waitcnt vmcnt(15)"]
q0=qk(0,0,0); q1=qk(1,0,1); ev=[x for y in expgaps(0,0,0) for x in y]
pas+=q0[:3]+["s_waitcnt vmcnt(12)"]+q0[3:]+q1[:2]+[f"buffer_load_dword v{FV}, v{FA}, {SR(sW)}, 0 offen sc1"]+q1[2:3]+(stamp(5) if not (os.environ.get('P1') or os.environ.get('P3')) else ['s_nop 4'])+["s_and_b32 s48, s2, 3"]+ev[0:2]+[q1[3]]+ev[2:4]+[q1[4]]+ev[4:6]+[q1[5]]+ev[6:]+["s_waitcnt vmcnt(7)","s_cbranch_scc1 L_s2_2","s_cmp_eq_u32 s45, 0","s_cbranch_scc0 L_s2_1","s_branch L_s2_0"]
def chk(reg): return [f"v_cmp_nle_f32 vcc, s48, v{reg}","s_or_b64 s[64:65], s[64:65], vcc",f"v_cmp_nge_f32 vcc, s49, v{reg}","s_or_b64 s[64:65], s[64:65], vcc"]
LR=LRCV
epi=(stamp(6) if not os.environ.get('P1') else [])+[f"s_mov_b32 s48, {f32(2.0**-20)}",f"s_mov_b32 s49, {f32(2.0**90)}","s_mov_b64 s[64:65], 0","s_waitcnt lgkmcnt(6)"]
XP=P0
epi+=[f"v_add_u32 v28, {2*REG}, v{XA}",f"v_add_u32 v29, {2*REG}, v3"]
late=[f"ds_read_b128 {R(RB(2)+4*q,4)}, v7 offset:{(12+q)*1024}" for q in range(6)]+[None]*3
late+=[f"ds_read_b32 v{24+w}, v{3 if w<2 else 29} offset:{(w%2)*REG+27648}" for w in range(4)]
late+=[f"ds_read_b128 {R(XP+8*w+4*e,4)}, v{XA if w<2 else 28} offset:{(w%2)*REG+18432+1024*e}" for w in range(4) for e in range(2)]
def lsum(t):
    r=LR+4*t
    return [f"v_accvgpr_read_b32 v{r+2}, {R(LL+12+4*t)}",f"v_accvgpr_read_b32 v{r+3}, {R(LL+13+4*t)}",f"v_add_f32 v{r}, v{r}, v{r+1}",f"v_add_f32 v{r+2}, v{r+2}, v{r+3}",
            f"v_add_f32 v{r+2}, v{r+2}, v{r}",f"v_rcp_f32 v{r+3}, v{r+2}"]+(["s_nop 0",f"v_mul_f32 v{r+3}, {f32(float(os.environ['EPS']))}, v{r+3}"] if os.environ.get('EPS') else [])
epi+=lsum(0)
issued=12; nan=[]
for t in range(3):
    for u in range(3):
        need=6*t+2*u+2
        if t==1: epi.append(f"s_waitcnt lgkmcnt({min(15,issued-need)})")
        o=OK+24*t+8*u; rb=RB(t)+8*u
        epi+=[f"v_pk_add_f32 {R(o+2*i,2)}, {R(o+2*i,2)}, {R(rb+2*i,2)}" for i in range(4)]
        for _ in range(3 if t<1 else 4):
            if late:
                x=late.pop(0)
                if x: epi.append(x); issued+=1
        if t<2 and u==1: epi+=lsum(t+1)
        epi+=[f"v_pk_mul_f32 {R(o+2*i,2)}, {R(o+2*i,2)}, {R(LR+4*t+2,2)} op_sel:[0,1] op_sel_hi:[1,1]" for i in range(4)]
        epi+=[f"v_cvt_pk_bf16_f32 v{o+i}, v{o+2*i}, v{o+2*i+1}" for i in range(4)]
        epi.append(f"buffer_store_dwordx4 {R(o,4)}, v{XO+t}, {SR(sO)}, s47 offen offset:{64*u} {OUTMOD}")
        if os.environ.get('NOST'): epi.pop()
        if (t,u)==(1,2):
            epi+=["s_and_b32 s50, s2, 3","s_cselect_b64 vcc, -1, 0","s_waitcnt lgkmcnt(8)","v_add_f32 v24, v24, v25","v_add_f32 v26, v26, v27","v_add_f32 v24, v24, v26",
                  f"v_mov_b32 v20, {FLAG}","v_mov_b32 v21, 1","v_cndmask_b32 v24, v24, 1.0, vcc"]
            epi+=chk(LR+2)+chk(LR+6)+chk(LR+10)+chk(24)+[f"v_cmp_lt_u32 vcc, 1, v{FV}","s_or_b64 s[64:65], s[64:65], vcc","v_rcp_f32 v26, v24",
                  "s_cmp_eq_u64 s[64:65], 0","s_cbranch_scc1 L_ok","ds_write_b32 v20, v21","L_ok:","s_waitcnt lgkmcnt(0)","s_barrier","ds_read_b32 v21, v20"]
            issued=18; fixed=True
assert not late
epi+=["s_and_b32 s50, s2, 3","s_lshr_b32 s51, s44, 1","s_and_b32 s51, s51, s44","s_or_b32 s50, s50, s51","s_cbranch_scc1 L_nx"]
xe=["s_lshl_b32 s50, s44, 6","s_add_u32 s50, s50, s47"]
xe+=[f"v_pk_add_f32 {R(XP+2*i,2)}, {R(XP+2*i,2)}, {R(XP+8+2*i,2)}" for i in range(4)]
xe+=[f"v_pk_add_f32 {R(XP+16+2*i,2)}, {R(XP+16+2*i,2)}, {R(XP+24+2*i,2)}" for i in range(4)]
xe+=[f"v_pk_add_f32 {R(XP+2*i,2)}, {R(XP+2*i,2)}, {R(XP+16+2*i,2)}" for i in range(4)]
xe+=[f"v_pk_mul_f32 {R(XP+2*i,2)}, {R(XP+2*i,2)}, v[26:27] op_sel_hi:[1,0]" for i in range(4)]
xe+=[f"v_cvt_pk_bf16_f32 v{8+i}, v{XP+2*i}, v{XP+2*i+1}" for i in range(4)]+[f"buffer_store_dwordx4 v[8:11], v{XOUT}, {SR(sO)}, s50 offen","L_nx:"]
epi+=xe
epi+=stamp(7)+(["s_mov_b32 s82, s96"] if os.environ.get('P4') else [])+(["s_getreg_b32 s75, hwreg(HW_REG_XCC_ID)"] if DIAG else [])+stampdump()
ok=["s_waitcnt lgkmcnt(0)","v_readfirstlane_b32 s48, v21","s_nop 3","s_andn2_b32 s48, s48, s62","s_cbranch_scc0 L_done"]
fb=["s_waitcnt vmcnt(0)"]+[f"v_mov_b32 v{MM+4*t}, 0xff800000" for t in range(7)]+["s_mov_b32 s60, s63","s_mov_b32 s61, 16"]
fbl=[kload(0,f) for f in range(6)]+["s_waitcnt vmcnt(0)"]
for t in range(7):
    fbl+=[M16(S0+4*k, KF+4*(3*k+j), XF+12*t+4*j, "0" if j==0 else None) for k in range(2) for j in range(3)]
    fbl+=["s_nop 7"]+[f"v_max3_f32 v{MM+4*t}, v{S0+2*i}, v{S0+2*i+1}, v{MM+4*t}" for i in range(4)]
fbl+=["s_bitcmp1_b32 s61, 0","s_cselect_b32 s48, 24576, 0","s_add_u32 s60, s60, s48","s_add_u32 s60, s60, 12288","s_sub_u32 s61, s61, 1","s_cmp_lg_u32 s61, 0","s_cbranch_scc1 L_fb"]
fb2=[f"ds_write_b32 v6, v{MM+4*t} offset:{1024*t}" for t in range(7)]
fb2+=["v_and_b32 v8, 0x300, v3","v_sub_u32 v9, v6, v8","v_sub_u32 v10, v7, v8","s_waitcnt lgkmcnt(0)","s_barrier"]
for t in range(7):
    tp=(t+3)%6 if t<6 else 6
    for G in range(4): fb2+=[f"ds_read_b32 v{12+G}, v9 offset:{1024*t+256*G}",f"ds_read_b32 v{16+G}, v10 offset:{1024*tp+256*G}"]
    fb2+=["s_waitcnt lgkmcnt(0)","v_max3_f32 v12, v12, v13, v14","v_max3_f32 v12, v12, v15, v16","v_max3_f32 v12, v12, v17, v18","v_max_f32 v12, v12, v19"]
    fb2+=[f"v_sub_f32 v{MM+4*t+i}, 0, v12" for i in range(4)]
fb2+=init_acc()+["s_barrier","s_mov_b32 s62, 1","s_branch L_pass"]

flat=lambda x: [l for y in x for l in y]
B=[body(0),body(1),body(None)]; T=[tail(0),tail(1),tail(None)]
out=[]
HDR=open('standalone__window_attn_twins__vision.s.ref').read().split('\n')
out+=HDR[:10]
out.append(f"; @launch grid=(256,1,1) block=(256,1,1) lds={LDSB}")
out+=['.amdgcn_target "amdgcn-amd-amdhsa--gfx950"',".text",f".globl {N}",".p2align 8",f".type {N},@function",f"{N}:"]
def E(lines,label=None,align=False):
    if align: out.append(".p2align 6")
    if label: out.append(label+":")
    out.extend(l if l.endswith(':') else "    "+l for l in lines)
E(entry); E(pool0); E(pz); E(pool1); E(wp0,"L_wpath"); E(wp); E(wj); E(kp); E(vp,"L_vp"); E(pj,"L_pj"); E(wr_,"L_wr"); E(arr,"L_arr")
E(pool,"L_pool")
E(poll,"L_poll"); E(go,"L_go"); E(pas,"L_pass")
for q in range(3):
    E(flat(B[q][:2]),f"L_loop{q}",True); E(flat(B[q][2:]),f"L_s2_{q}"); E([f"s_cbranch_scc1 L_loop{q}"]); E(stamp(3) if os.environ.get('P2') else []); E(T[q])
    if q<2: E(["s_branch L_epi"])
def slow(q): return [f"L_slow{q}:","s_mov_b32 s49, 0x200000"]+(["s_mov_b32 s77, 1"] if DIAG else [])+[f"L_slowp{q}:",f"buffer_load_dword v{FV}, v{FA}, {SR(sW)}, 0 offen sc1","s_sub_u32 s49, s49, 1",f"s_cbranch_scc1 L_back{q}",
    "s_waitcnt vmcnt(0)",f"v_cmp_eq_u32 vcc, 0, v{FV}","s_nop 1",f"s_cbranch_vccnz L_slowp{q}",f"s_branch L_back{q}"]
E(epi,"L_epi"); E(ok); E(fb); E(fbl,"L_fb"); E(fb2); E(slow(0)+slow(1)+slow(None)); E(["s_endpgm","L_end:"],"L_done")
out+=['.section .rodata,"a"',".p2align 6",f".amdhsa_kernel {N}","  .amdhsa_next_free_vgpr 512","  .amdhsa_next_free_sgpr 100","  .amdhsa_accum_offset 256",
 "  .amdhsa_group_segment_fixed_size 0","  .amdhsa_kernarg_size 56","  .amdhsa_user_sgpr_count 2","  .amdhsa_user_sgpr_kernarg_segment_ptr 1",
 "  .amdhsa_system_sgpr_workgroup_id_x 1",".end_amdhsa_kernel"]
open(sys.argv[1],'w').write("\n".join(out)+"\n")
bad=0
bad+=hz.check(entry+pool0+pz+pool1+pool+go+pas,'pool')
bad+=hz.check(entry+wp0+wp+wj+kp+pj+wr_+arr+poll+go+pas,'kpath')
bad+=hz.check(entry+wp0+wp+wj+vp+pj+wr_+arr,'vpath')
for q in range(3):
    bad+=hz.check(pas+flat(B[q][2:])+["s_cbranch x"]+flat(B[q])+["s_cbranch x"]+T[q]+epi+ok+fb+fbl+fbl+fb2+pas,f'main{q}')
print("hazards:",bad)
```

```python
import sys, struct, math, os
import hz
DIAG=int(os.environ.get('DIAG','0'))
OUTMOD=os.environ.get('OUTMOD','')
PMOD=os.environ.get('PMOD','nt')
KVMOD=os.environ.get('KVMOD','sc1')
XMOD=os.environ.get('XMOD','')
OUTSZ=int(os.environ.get('OUTSZ','9633792'))
def R(x,n=1):
    if x>=256: return f"a{x-256}" if n==1 else f"a[{x-256}:{x-256+n-1}]"
    return f"v{x}" if n==1 else f"v[{x}:{x+n-1}]"
def M16(d,a,b,c=None):
    c = R(d,4) if c is None else (c if isinstance(c,str) else R(c,4))
    return f"v_mfma_f32_16x16x32_bf16 {R(d,4)}, {R(a,4)}, {R(b,4)}, {c}"
def f32(x): return "0x%08x"%struct.unpack("<I",struct.pack("<f",x))[0]
def base(ct): return 32*(ct//2)+4*(ct%2)
XB=9633792; WSB=0x10000000; OOB=0x40000000
FLG=0x80000
REG=28672; XI=73728; XS=116736; FLAG=XS+768; LDSB=FLAG+64
assert all((q*2341)>>16==q//28 for q in range(208))
assert all((c*5462)>>16==c//12 for c in range(192))
S0=8; P0=32; P6=80; ONES=84; IDX=88; MM=92; OK=120; VF=192; XO=240; T2=56; LL=256+228
OS=256; OX=256+72; XF=256+96; KF=256+180; ASP=256+228
FV=89; FA=90
XA=1; XL=2; XOUT=243; LRCV=MM
sX=20; sO=24; sW=28; sA=32; sB=36; sD=40
def SR(d): return f"s[{d}:{d+3}]"
def srd(d, lo, size): return [f"s_mov_b32 s{d}, s{lo}", f"s_mov_b32 s{d+1}, s{lo+1}", f"s_mov_b32 s{d+2}, {size}", f"s_mov_b32 s{d+3}, 0x00020000"]
def Oreg(t): return OS+24*t if t<3 else (OK+24*(t-3) if t<6 else OX)
def RB(t): return [P0,VF,VF+24][t]
def Preg(st,t): return P0+8*t+4*st if t<6 else P6
def W1(i): return KF+4*i if i<12 else XF+4*(i-12)
def W2(i): return VF+4*i if i<12 else T2+4*(i-12)
nst=[0]
def stamp(idx):
    if not DIAG: return []
    return ["s_memrealtime s[66:67]","s_memtime s[68:69]","s_waitcnt lgkmcnt(0)",f"s_mov_b32 s{72+2*idx}, s66",f"s_mov_b32 s{73+2*idx}, s68"]
def stampdump():
    if not DIAG: return []
    o=["s_lshl_b32 s66, s2, 2","s_add_u32 s66, s66, s44","s_lshl_b32 s66, s66, 6",f"s_add_u32 s66, s66, {0x100000}","v_mov_b32 v20, 0"]
    for i in range(8):
        o+=[f"v_mov_b32 v22, s{72+2*i}",f"v_mov_b32 v23, s{73+2*i}",f"buffer_store_dwordx2 v[22:23], v20, {SR(sW)}, s66 offen offset:{8*i}","s_nop 1"]
    return o

def kload(stage,f):
    v,o=(3,f*1024) if f<4 else (4,(f-4)*1024)
    return f"buffer_load_dwordx4 {R(KF+24*stage+4*f,4)}, v{v}, {SR(sW)}, s60 offen offset:{o}"
def vload(stage,ct):
    v,o=(4,2048+ct*1024) if ct<2 else (5,(ct-2)*1024)
    return f"buffer_load_dwordx4 {R(VF+24*stage+4*ct,4)}, v{v}, {SR(sW)}, s60 offen offset:{o}"
def slots_of(qg):
    a=[(0,t) for t in range(6)]+([(0,6)] if qg==0 else [])
    b=[(1,t) for t in range(6)]+([(1,6)] if qg==1 else [])
    return a+b
def colorf(N): return (lambda n: (n%13)%2 if n%13<12 else 2) if N==13 else (lambda n: n%2)
def qk(c,st,t):
    S=S0+8*c
    return [M16(S+4*k, KF+24*st+4*(3*k+j), XF+12*t+4*j, MM+4*t if j==0 else None) for k in range(2) for j in range(3)]
def pv(st,t):
    P=Preg(st,t)
    o=[M16(Oreg(t)+4*q, VF+24*st+4*q, P) for q in range(6)]
    if t==6: o.append(M16(LL+4*t, ONES, P))
    elif st==1: o.append(f"v_smfmac_f32_16x16x64_bf16 {R(LL+4*t,4)}, {R(ONES,4)}, {R(P0+8*t,8)}, v{IDX}")
    return o
def expgaps(c,st,t,n=13):
    S=S0+8*c; P=Preg(st,t)
    E=lambda j: f"v_exp_f32 v{S+j}, v{S+j}"
    C=lambda j: f"v_cvt_pk_bf16_f32 v{P+j}, v{S+2*j}, v{S+2*j+1}"
    return [[E(0)],[E(1)],[E(2)],[E(3)],[E(4)],[C(0),C(1)],[E(5)],[E(6)],[E(7)],[],[C(2),C(3)],[],[]][:n]
def body(qg):
    sl=slots_of(qg); out=[]; NS=len(sl); color=colorf(NS)
    for n,(st,t) in enumerate(sl):
        idx=[i for i,(s2,_) in enumerate(sl) if s2==st]
        pos=n-idx[0]; last=len(idx)-1
        mm=qk(color(n),st,t)+pv(*sl[(n-2)%NS])
        g=expgaps(color(n-1),*sl[(n-1)%NS],n=len(mm)); fr=(9,11); e=len(mm)-1
        if pos in (0,1):
            for i in range(2): g[fr[i]].append(kload(1-st,2+2*pos+i))
        if pos==1: g[e].append("s_waitcnt vmcnt(6)")
        if pos in (2,3,4):
            for i in range(2): g[fr[i]].append(vload(1-st,2*(pos-2)+i))
        if pos==last-1:
            g[e if last==5 else 9].append(f"s_add_u32 s60, s60, {36864 if st==0 else 12288}")
            g[e].append("s_waitcnt vmcnt(6)")
        if pos==last and st==0:
            g[5].append(f"v_cmp_eq_u32 vcc, 0, v{FV}"); g[7]+=[f"s_cbranch_vccnz L_slow{qg}",f"L_back{qg}:"]
        if pos==2 and st==1: g[e].append("s_sub_u32 s61, s61, 1")
        if pos==3 and st==1: g[e]+=["s_cmp_eq_u32 s61, 6",f"s_cbranch_scc1 L_fv{qg}",f"L_fvb{qg}:"]
        if pos==last:
            for i in range(2): g[fr[i]].append(kload(st,i))
        if pos==last and st==1: g[10].append("s_cmp_lg_u32 s61, 0")
        if os.environ.get('NOLD'): g=[[x for x in y if not x.startswith('buffer_load')] for y in g]
        o=[f"; slot {n}: stage {st} tile {t}"]
        for i in range(len(mm)): o.append(mm[i]); o+=g[i]
        out.append(o)
    return out
def tail(qg):
    sl=slots_of(qg)
    order=[(0,0),(0,1),(0,2),(0,3),(1,0),(1,1),(1,2)]+([(qg,6)] if qg is not None else [])+[(0,4),(0,5),(1,3),(1,4),(1,5)]
    NS=len(sl); color=colorf(NS)
    seq=[sl[-2],sl[-1]]+order
    col=[color(NS-2),color(NS-1)]+[color(n) for n in range(NS)]
    out=[]; pend=[]
    def states_since(i): return sum((int(l.split()[1])+1 if l.startswith('s_nop') else 1) for l in out[i+1:] if not l.startswith(';'))
    def place(n):
        for _ in range(n):
            if pend and states_since(pend[0][0])>=8:
                out.append(pend.pop(0)[1])
                if pend and 'b128' not in pend[0][1] and states_since(pend[0][0])>=8: out.append(pend.pop(0)[1])
    def wr(t,q):
        if q<6: return f"ds_write_b128 v6, {R(Oreg(t)+4*q,4)} offset:{(6*t+q)*1024 if t<3 else (18+q)*1024}"
        if t==6: return f"ds_write_b32 v6, {R(LL+4*t)} offset:{24576+3072}"
        return f"ds_write_b64 v6, {R(LL+4*t,2)} offset:{24576+1024*t}"
    rd0=[f"ds_read_b64 {R(LRCV+4*t,2)}, v7 offset:{24576+1024*t}" for t in range(3)]+[f"ds_read_b128 {R(RB(0)+4*q,4)}, v7 offset:{q*1024}" for q in range(6)]
    rd1=[f"ds_read_b128 {R(RB(1)+4*q,4)}, v7 offset:{(6+q)*1024}" for q in range(6)]
    rds=[]
    nb=NS
    for k in range(nb+2):
        out.append(f"; tail slot {k}")
        mm=[]
        if k<nb: mm+=[(m,None) for m in qk(col[k+2],*seq[k+2])]
        st,t=seq[k]
        final = k>=2 and (t==6 or (t<3 and st==1))
        mm+=[(m,(t,q) if final else None) for q,m in enumerate(pv(st,t))]
        if k<nb: g=expgaps(col[k+1],*seq[k+1],n=len(mm))
        elif k==nb:
            f=[x for y in expgaps(col[k+1],*seq[k+1]) for x in y]; g=[f[2*i:2*i+2] for i in range(7)]
        else: g=[[] for _ in range(7)]
        fr=(9,11); e=len(mm)-1
        if k in (0,1):
            for i in range(2): g[fr[i]].append(kload(1,2+2*k+i))
        if k==1: g[e].append("s_waitcnt vmcnt(6)")
        if k in (2,3):
            for i in range(3): g[(7,9,11)[i]].append(vload(1,3*(k-2)+i))
        if k==3: g[e].append("s_waitcnt vmcnt(6)")
        if k==6: g[5].append("s_waitcnt vmcnt(0)")
        BS,BG=NS-1,8
        if k==BS: g[BG]+=["s_waitcnt lgkmcnt(0)","s_barrier"]
        for i,(m,w) in enumerate(mm):
            out.append(m)
            if w: pend.append((len(out)-1, wr(*w)))
            out+=g[i]
            if k==BS and i==BG: assert not pend; rds=rd0+rd1
            if k<BS or (k==BS and i<4):
                if i in ((2,5,9,11,12) if k<BS else (0,1,2,3)): place(1)
            elif not g[i]:
                for _ in range(3):
                    if rds: out.append(rds.pop(0))
    assert not pend and not rds, (pend,rds)
    return out

XR=MM
def common_setup():
    o=["v_and_b32 v8, 15, v0","v_lshrrev_b32 v9, 4, v0","v_lshlrev_b32 v9, 4, v9",
       f"v_lshlrev_b32 v{FA}, 7, v8",f"v_add_u32 v{FA}, {FLG+4096}, v{FA}",
       "v_lshlrev_b32 v3, 4, v0","v_add_u32 v4, 4096, v3","v_add_u32 v5, 8192, v3",
       f"s_mul_i32 s48, s44, {REG}","v_add_u32 v6, s48, v3","s_xor_b32 s48, s44, 2",f"s_mul_i32 s48, s48, {REG}","v_add_u32 v7, s48, v3",
       "s_mul_i32 s48, s45, 96","s_mul_i32 s49, s46, 48","s_add_u32 s50, s48, s49",
       "s_sub_u32 s49, 48, s49","s_add_u32 s49, s48, s49",
       "s_mov_b32 s51, 37632",f"s_mov_b32 s52, {-2304}",f"s_mov_b32 s53, {21504-2688}",f"v_add_u32 v13, {XI}, v9"]
    for t in range(6):
        o+=[f"s_add_u32 s48, s{49 if t<3 else 50}, {16*(t%3)}","v_add_u32 v10, s48, v8"]
        o+=["v_mul_u32_u24 v11, 4682, v10","v_mul_u32_u24 v10, 192, v10","v_lshrrev_b32 v12, 17, v11","v_bfe_u32 v11, v11, 16, 1"]
        if 3<=t<6: o+=[f"v_mad_u32_u24 v14, v12, s51, v10",f"v_add_u32 v{XO+t-3}, v14, v9"]
        o+=["v_mad_i32_i24 v10, v12, s52, v10","v_mad_u32_u24 v10, v11, s53, v10",f"v_add_u32 v{XR+t}, v10, v13"]
    o+=["v_lshrrev_b32 v10, 2, v8","v_and_b32 v11, 3, v8","v_mul_u32_u24 v10, 5376, v10","v_mul_u32_u24 v11, 192, v11","v_add3_u32 v10, v10, v11, v9",
        f"v_add_u32 v{XOUT}, {6*43008+24*192}, v10","s_min_u32 s48, s44, 2","s_lshl_b32 s48, s48, 11",f"v_add_u32 v{XA}, s48, v3"]
    return o
assert all((q*4682)>>16==q//14 and (q*4682)>>17==q//28 for q in range(208))
assert all((c*5462)>>16==c//12 for c in range(192))
def xreads(): return [f"ds_read_b128 {R(XF+12*t+4*s,4)}, v{XR+t} offset:{64*s}" for t in range(6) for s in range(3)]
def xshared(): return srd(sX,4,XB)+[f"buffer_load_dwordx4 {R(XF+72+4*s,4)}, v{XOUT}, {SR(sX)}, s47 offen offset:{64*s}" for s in range(3)]
def init_acc():
    return [f"v_accvgpr_write_b32 a{r}, 0" for r in range(96)]+[f"v_accvgpr_write_b32 {R(LL+r)}, 0" for r in range(28)]+[f"v_mov_b32 v{r}, 0" for r in range(OK,OK+72)]
def init_const():
    return [f"v_mov_b32 v{MM+r}, 0" for r in range(28)]
def dma_loop(label, vs, srdreg, step, mod=""):
    return [label+":","s_mov_b32 m0, s49","s_add_u32 s49, s49, 3072"]+\
           [f"buffer_load_dwordx4 v{vs[j]}, {SR(srdreg)}, s48 offen offset:{1024*j} {mod} lds" for j in range(3)]+\
           [f"s_add_u32 s48, s48, {step}","s_cmp_lt_u32 s49, s50",f"s_cbranch_scc1 {label}"]

ZWG=int(os.environ.get('ZWG','254'))
ORD=int(os.environ.get('ORD','1'))
EB=int(os.environ.get('EB','1'))
SPLIT=int(os.environ.get('SPLIT','3'))
NE=int(os.environ.get('NE','64'))
N="standalone__window_attn_twins__vision_kernel"
PF="buffer_load_dwordx4 a[252:255], v9, s[88:91], 0 offen" if int(os.environ.get("PF","1")) else "s_nop 0"
entry=(["s_memrealtime s[96:97]"] if os.environ.get('P4') else [])+["s_cmp_ge_u32 s2, 256","s_cbranch_scc1 L_done",
  "s_load_dwordx8 s[4:11], s[0:1], 0","s_load_dwordx4 s[12:15], s[0:1], 32","s_load_dwordx2 s[16:17], s[0:1], 48",
  "s_getpc_b64 s[88:89]","L_pc:","s_lshr_b32 s47, s2, 3","s_lshl_b32 s48, s47, 12","v_lshl_add_u32 v9, v0, 4, s48","s_mov_b32 s90, L_end-L_pc","s_mov_b32 s91, 0x00020000",
  "v_and_b32 v9, 0x7fff, v9","v_lshrrev_b32 v8, 6, v0","v_and_b32 v0, 63, v0",
  PF,"v_lshlrev_b32 v20, 4, v0","v_readfirstlane_b32 s44, v8",f"v_mov_b32 v18, {OOB}",
  "s_and_b32 s48, s2, 7","s_mul_i32 s47, s47, 301056","s_mul_i32 s48, s48, 5376","s_add_u32 s47, s47, s48",
  f"s_mov_b32 s{sA+3}, 0x00020000",
  "s_cmp_ge_u32 s44, 2","s_cbranch_scc1 L_wpath"]
ids=["s_and_b32 s45, s44, 1","s_lshr_b32 s46, s44, 1","s_mul_i32 s63, s46, 24576","s_mov_b32 s62, 0","v_and_b32 v16, 15, v0","v_lshrrev_b32 v17, 4, v0"]
pool0=["v_cmp_gt_u32 vcc, 40, v0","s_mul_i32 s48, s44, 2688","s_add_u32 s48, s48, s47","s_mul_i32 s49, s44, 21504",f"s_add_u32 s49, s49, {XI}","s_add_u32 s50, s49, 21504",
  "v_cndmask_b32 v21, v18, v20, vcc",f"s_mov_b32 s{sA+2}, {XB}","s_waitcnt lgkmcnt(0)",f"s_mov_b32 s{sA}, s4",f"s_mov_b32 s{sA+1}, s5"]+stamp(0)
pool0+=([f"s_sleep {os.environ['PDELAY']}"] if os.environ.get('PDELAY') else [])+([f"s_setprio {os.environ.get('PRIO','1')}"])+srd(sW,16,WSB)+["s_lshl_b32 s59, s2, 2","s_add_u32 s59, s59, s44",f"s_cmp_lg_u32 s59, {4*ZWG+1}","s_cbranch_scc1 L_nz0"]
pz=["v_lshlrev_b32 v29, 7, v0"]+[f"v_mov_b32 v{32+i}, 0" for i in range(4)]+[f"s_mov_b32 s51, {FLG}",f"buffer_store_dwordx4 v[32:35], v29, {SR(sW)}, s51 offen sc1",
    f"s_mov_b32 s51, {FLG+8192}",f"buffer_store_dwordx4 v[32:35], v29, {SR(sW)}, s51 offen sc1"]
pool1=["L_nz0:"]+([f"s_cmp_lt_u32 s2, {NE}","s_cbranch_scc1 L_xdma","s_barrier"] if ORD else [])+dma_loop("L_xdma",[20,20,21],sA,43008,PMOD)+([f"s_cmp_ge_u32 s2, {NE}","s_cbranch_scc1 L_pool","s_barrier"] if ORD and EB else [])+["s_branch L_pool"]
PX=VF
pool=["s_setprio 0"]+srd(sD,14,256)+[f"s_cmp_lg_u32 s59, {4*ZWG+1}","s_cbranch_scc1 L_nrd","v_mov_b32 v32, 1","v_mov_b32 v33, 0","s_waitcnt vmcnt(21)","s_mov_b64 exec, 1",
     f"buffer_store_dword v32, v33, {SR(sD)}, 0 offen sc1","s_mov_b64 exec, -1","L_nrd:"]+ids+srd(sO,12,OUTSZ)
pool+=["v_and_b32 v21, 1, v16","v_lshlrev_b32 v21, 4, v21","v_mov_b32 v22, 0x3f80","v_lshlrev_b32 v21, v21, v22","v_lshrrev_b32 v22, 1, v16"]
for d in range(8): pool+=[f"v_cmp_eq_u32 vcc, {d}, v22","s_nop 1",f"v_cndmask_b32 v{24+d}, 0, v21, vcc"]
pool+=[f"v_mov_b32 v8, {FLAG}","v_mov_b32 v9, 0","ds_write_b32 v8, v9"]
pool+=["v_lshrrev_b32 v21, 1, v17","v_mul_u32_u24 v21, 192, v21","v_lshl_add_u32 v21, v16, 4, v21","v_and_b32 v22, 1, v17","v_lshl_add_u32 v21, v22, 3, v21",
       "s_mul_i32 s48, s44, 384",f"s_add_u32 s48, s48, {XS}","v_add_u32 v21, s48, v21","v_cmp_gt_u32 s[54:55], 12, v16",
       "s_sub_u32 s50, s50, 21504","v_lshl_add_u32 v39, v16, 4, s50","v_mul_u32_u24 v36, 192, v17","v_add_u32 v36, v36, v39","v_cmp_gt_u32 vcc, 3, v17",
       "v_add_u32 v39, 2688, v39","v_add_u32 v37, 768, v36",f"v_add_u32 v38, {768+1344}, v36","v_cndmask_b32 v37, v39, v37, vcc","v_cndmask_b32 v38, v39, v38, vcc"]
pool+=stamp(1)
PX=OK
def prd(r):
    b=PX+16*r
    return [f"ds_read_b128 {R(b,4)}, v36 offset:{3072*r}",f"ds_read_b128 {R(b+4,4)}, v37 offset:{3072*r}",
            f"ds_read_b128 {R(b+8,4)}, v36 offset:{3072*r+1344}",f"ds_read_b128 {R(b+12,4)}, v38 offset:{3072*r}"]
def pmm(r): return [M16(32, 24+4*(j//2), PX+16*r+4*j, "0" if (r,j)==(0,0) else None) for j in range(4)]
for r in range(7):
    pool+=[f"s_waitcnt vmcnt({3*(6-r)})"]+prd(r)
    if r>=2: pool+=["s_waitcnt lgkmcnt(8)"]+pmm(r-2)
pool+=["s_waitcnt lgkmcnt(4)"]+pmm(5)
m=pmm(6)
for j in range(4): pool+=[f"s_waitcnt lgkmcnt({3-j})",m[j]]
pool+=["s_nop 7"]+[f"v_mul_f32 v{32+i}, {f32(1/49)}, v{32+i}" for i in range(4)]
pool+=["v_cvt_pk_bf16_f32 v32, v32, v33","v_cvt_pk_bf16_f32 v33, v34, v35","s_mov_b64 exec, s[54:55]","ds_write_b64 v21, v[32:33]","s_mov_b64 exec, -1",
       "s_waitcnt lgkmcnt(0)"]+stamp(2)+["s_barrier"]
pool+=common_setup()+xshared()+xreads()+init_const()+init_acc()
pool+=(stamp(3) if not os.environ.get('P2') else [])+["s_branch L_go"]
wp0=["s_sub_u32 s54, s44, 2"]
for j in range(3):
    wp0+=[f"v_add_u32 v19, {64*j}, v0","v_mul_u32_u24 v24, 5462, v19","v_lshlrev_b32 v19, 4, v19","v_lshrrev_b32 v24, 16, v24",
          "v_mul_u32_u24 v24, 192, v24",f"v_add3_u32 v{21+j}, v24, v19, s{[92,93,94][j]}"]
wp0=[f"s_mov_b32 s92, 0","s_mov_b32 s93, -1024","s_mov_b32 s94, -2048"]+wp0
wp0+=["s_mul_i32 s48, s54, 192","s_mul_i32 s49, s54, 36864","s_add_u32 s50, s49, 18432",f"s_mov_b32 s{sA+2}, 36864",
     "s_waitcnt lgkmcnt(0)",f"s_mov_b32 s{sA}, s8",f"s_mov_b32 s{sA+1}, s9"]
TLB=int(os.environ.get('TLB','0'))
tlb=srd(sW,16,WSB)+srd(sD,14,256)+srd(sO,12,OUTSZ)+["v_mov_b32 v25, 0",f"s_mov_b32 s51, {0x70000}","s_mov_b64 exec, 1",f"buffer_load_dword v26, v25, {SR(sW)}, s51 offen sc1",
     f"buffer_load_dword v27, v25, {SR(sD)}, 0 offen offset:128 sc1",f"buffer_load_dword v28, v25, {SR(sO)}, s47 offen","s_add_u32 s51, s47, 290000",f"buffer_load_dword v29, v25, {SR(sO)}, s51 offen","s_mov_b64 exec, -1"]
wp=stamp(0)+(tlb if TLB else [])+([f"s_sleep {os.environ['WDELAY']}"] if os.environ.get('WDELAY') else [])
if ORD:
    wp+=([f"s_cmp_ge_u32 s2, {NE}","s_cbranch_scc1 L_nb1","s_barrier","L_nb1:"] if EB else [])+[f"s_add_u32 s50, s49, {3072*SPLIT}"]+dma_loop("L_w1a",[21,22,23],sA,6144)
    wp+=[f"s_cmp_lt_u32 s2, {NE}","s_cbranch_scc1 L_nb2","s_barrier","L_nb2:",f"s_add_u32 s50, s49, {3072*(6-SPLIT)}"]+dma_loop("L_w1b",[21,22,23],sA,6144)
else: wp+=dma_loop("L_w1dma",[21,22,23],sA,6144)
wp+=["s_cmp_eq_u32 s54, 0",f"s_cselect_b32 s{sB}, s6, s10",f"s_cselect_b32 s{sB+1}, s7, s11",f"s_mov_b32 s{sB+2}, 18432",f"s_mov_b32 s{sB+3}, 0x00020000",
     "s_mov_b32 s48, 0"]
IA=init_acc()
EI=int(os.environ.get('EI','1'))
if EI: wp+=[f"s_cmp_ge_u32 s2, {NE}","s_cbranch_scc1 L_w2u","s_add_u32 s50, s49, 18432"]+dma_loop("L_w2dma",[20,20,20],sB,3072)+["s_branch L_w2e","L_w2u:"]
for i in range(18):
    if i%3==0: wp+=["s_mov_b32 m0, s49","s_add_u32 s49, s49, 3072"]
    wp.append(f"buffer_load_dwordx4 v20, {SR(sB)}, s48 offen offset:{1024*(i%3)} lds")
    if i%3==2: wp.append("s_add_u32 s48, s48, 3072")
    wp+=IA[len(IA)*i//17:len(IA)*(i+1)//17] if i<17 else []
wj=(["L_w2e:"] if EI else [])+ids+(srd(sW,16,WSB)+srd(sD,14,256) if not TLB else [])
wj+=["s_mul_i32 s55, s54, 36864","v_lshrrev_b32 v22, 2, v16","v_and_b32 v23, 3, v16",
     "v_lshl_add_u32 v44, v17, 3, v22","v_mul_u32_u24 v44, 192, v44","v_lshl_add_u32 v44, v23, 4, v44","v_add_u32 v44, s55, v44",
     "v_lshl_add_u32 v47, v22, 3, v23","v_mul_u32_u24 v47, 192, v47","v_lshl_add_u32 v47, v17, 4, v47",
     "v_mul_u32_u24 v45, 192, v23","v_lshl_add_u32 v45, v17, 4, v45",f"v_add_u32 v45, {XS}, v45",
     "v_cmp_gt_u32 vcc, 4, v16","v_cmp_gt_u32 s[52:53], 16, v0","s_cmp_eq_u32 s54, 0","s_cselect_b64 vcc, vcc, s[52:53]","s_nop 1","v_cndmask_b32 v46, v18, v20, vcc",
     "s_lshr_b32 s56, s2, 3","s_mul_i32 s56, s56, 12288","s_bfe_u32 s57, s2, 0x10002","s_and_b32 s58, s2, 3"]
wj+=stamp(1)+["s_waitcnt vmcnt(18)"]
for nt in range(6):
    for s_ in range(3):
        for h in range(2): wj.append(f"ds_read_b64_tr_b16 {R(W1(3*nt+s_)+2*h,2)}, v44 offset:{(32*s_+4*h)*192+base(nt)*2}")
D1=8; XSF=XF+24; KB=32
wj+=["s_waitcnt lgkmcnt(0)"]+stamp(2)+["s_cmp_eq_u32 s54, 0","s_cbranch_scc0 L_vp"]
def step1(rd):
    o=["s_barrier"]+[f"ds_read_b128 {R(XSF+4*s_,4)}, v45 offset:{64*s_}" for s_ in range(3)]+["s_waitcnt vmcnt(0)","s_waitcnt lgkmcnt(0)"]+(stamp(1) if os.environ.get('P1') else [])
    per=len(rd)//18
    for nt in range(6):
        for s_ in range(3):
            o.append(M16(D1+4*nt, W1(3*nt+s_), XSF+4*s_, "0" if s_==0 else None))
            o+=rd[per*(3*nt+s_):per*(3*nt+s_+1)]
    for u in range(3):
        if u==2: o.append("s_nop 1")
        for e in range(2):
            for z in range(2): o.append(f"v_cvt_pk_bf16_f32 v{KB+4*u+2*e+z}, v{D1+8*u+4*e+2*z}, v{D1+8*u+4*e+2*z+1}")
    return o+["s_waitcnt lgkmcnt(0)","v_mov_b32 v47, 0",f"buffer_load_dword v45, v47, {SR(sD)}, 0 offen sc1"]
wq=[f"ds_read_b128 {R(W2(3*ct+u),4)}, v47 offset:{18432+base(ct)*192+64*u}" for ct in range(6) for u in range(3)]
wtr=[f"ds_read_b64_tr_b16 {R(W2(3*ct+u)+2*h,2)}, v44 offset:{18432+(32*u+4*h)*192+base(ct)*2}" for ct in range(6) for u in range(3) for h in range(2)]
sc=f32(96**-0.5*math.log2(math.e))
kp=step1(wq)+[M16(D1+4*ct, W2(3*ct+u), KB+4*u, "0" if u==0 else None) for ct in range(6) for u in range(3)]
kp+=[f"s_mov_b32 s50, {sc}",f"s_mov_b32 s51, {sc}","s_mul_i32 s57, s57, 3072","s_add_u32 s56, s56, s57","s_lshl_b32 s58, s58, 6","s_add_u32 s56, s56, s58"]
for u in range(3):
    if u==2: kp.append("s_nop 1")
    kp+=[f"v_pk_mul_f32 {R(D1+8*u+2*i,2)}, {R(D1+8*u+2*i,2)}, s[50:51]" for i in range(4)]
    kp+=[f"v_cvt_pk_bf16_f32 v{KB+4*u+i}, v{D1+8*u+2*i}, v{D1+8*u+2*i+1}" for i in range(4)]
    kp.append(f"buffer_store_dwordx4 {R(KB+4*u,4)}, v46, {SR(sW)}, s56 offen offset:{1024*u} {KVMOD}")
kp+=["s_mov_b32 s94, 1","s_branch L_pj"]
vp=step1(wtr)+[M16(D1+4*ct, KB+4*u, W2(3*ct+u), "0" if u==0 else None) for ct in range(6) for u in range(3)]
vp+=["s_lshl_b32 s57, s57, 3","s_add_u32 s56, s56, s57","s_lshl_b32 s58, s58, 8","s_add_u32 s56, s56, s58","s_add_u32 s56, s56, 6144","s_add_u32 s57, s56, 4096"]
for ct in range(6):
    vp+=[f"v_cvt_pk_bf16_f32 v{D1+4*ct}, v{D1+4*ct}, v{D1+4*ct+1}",f"v_cvt_pk_bf16_f32 v{D1+4*ct+1}, v{D1+4*ct+2}, v{D1+4*ct+3}",
         f"buffer_store_dwordx2 {R(D1+4*ct,2)}, v46, {SR(sW)}, s{56 if ct<4 else 57} offen offset:{1024*(ct%4)} {KVMOD}"]
if os.environ.get('MOCK'):
    keep=lambda L: [x for x in L if not (x.startswith('v_mfma') or x.startswith('ds_read_b64_tr') or (x.startswith('ds_read_b128') and 'v47' in x) or x=="s_waitcnt vmcnt(0)" or x.startswith('v_pk_mul') or x.startswith('v_cvt'))]
    kp=keep(kp); vp=keep(vp); wj=[x for x in keep(wj) if x!="s_waitcnt vmcnt(18)"]
    wp=stamp(0)
vp+=["s_mov_b32 s50, 0x7fff7fff"]+[f"v_and_b32 v{KB+2*ct+h}, s50, v{D1+4*ct+h}" for ct in range(6) for h in range(2)]
vp+=[f"v_pk_max_u16 v{KB+i}, v{KB+i}, v{KB+6+i}" for i in range(6)]+[f"v_pk_max_u16 v{KB+i}, v{KB+i}, v{KB+3+i}" for i in range(3)]
vp+=[f"v_pk_max_u16 v{KB}, v{KB}, v{KB+1}",f"v_pk_max_u16 v{KB}, v{KB}, v{KB+2}",f"v_lshrrev_b32 v{KB+1}, 16, v{KB}",f"v_and_b32 v{KB}, 0xffff, v{KB}",f"v_max_u32 v{KB}, v{KB}, v{KB+1}",
     f"v_cmp_lt_u32 vcc, {(127+30)<<7}, v{KB}","s_mov_b32 s94, 1","s_cmp_lg_u64 vcc, 0","s_cselect_b32 s94, 0x10001, s94"]
PRE=srd(sO,12,OUTSZ)+common_setup()+xreads()
EARLY=int(os.environ.get('EARLY','1'))
pj=(stamp(5) if os.environ.get('P1') else [])+(PRE if EARLY else [])+["s_lshr_b32 s48, s2, 4","s_lshl_b32 s48, s48, 7",f"s_add_u32 s48, s48, {FLG}","v_mov_b32 v44, 1","s_mov_b32 s49, 0x200000",
    "s_lshl_b32 s57, s2, 5","s_add_u32 s57, s57, s54","s_lshl_b32 s57, s57, 2",f"s_add_u32 s57, s57, {FLG+8192}",
    "s_mov_b64 exec, 1","s_waitcnt vmcnt(0)"]+(stamp(6) if os.environ.get('P1') else [])
wr_=["v_cmp_ne_u32 vcc, 0, v45","s_sub_u32 s49, s49, 1","s_cbranch_scc1 L_arr","s_cbranch_vccnz L_arr",f"buffer_load_dword v45, v47, {SR(sD)}, 0 offen sc1","s_waitcnt vmcnt(0)","s_branch L_wr"]
NSH=int(os.environ.get('NSH','224'))
DIRECT=int(os.environ.get('DIRECT','1'))
arr=([f"s_cmp_ge_u32 s2, {NE}","s_cbranch_scc1 L_nd",f"buffer_store_dword v44, v47, {SR(sW)}, s57 offen sc1","L_nd:"] if DIRECT else [])
PL=f"buffer_load_dwordx2 v[12:13], v10, {SR(sW)}, 0 offen sc1"
INIT=init_const()+[f'v_accvgpr_write_b32 a{252+h}, 0' for h in range(4)]+([f"s_cmp_ge_u32 s2, {NE}","s_cbranch_scc1 L_ni"]+init_acc()+["L_ni:"] if EI else [])
LP=int(os.environ.get('LP','999'))
NP=int(os.environ.get('NP','999'))
arr+=["v_mov_b32 v43, s94",f"buffer_atomic_add v43, v47, {SR(sW)}, s48 offen sc0 sc1","s_mov_b64 exec, -1","s_add_u32 s58, s48, 4096"]
arr+=[f"v_and_b32 v10, {NE-1}, v0","v_lshlrev_b32 v10, 7, v10",f"v_add_u32 v10, {FLG+8192}, v10","v_mov_b32 v12, 1","v_mov_b32 v13, 1"]+(INIT[:NP]+["s_cmp_lg_u32 s54, 0","s_cbranch_scc1 L_np",PL,"L_np:"]+xshared()+INIT[NP:] if NP<999 else
   (["v_mov_b32 v12, s54","s_and_b32 s50, s2, 3","s_or_b32 s50, s50, s54"]+INIT[:LP]+["s_cmp_lg_u32 s50, 0","s_cbranch_scc1 L_np",PL,"L_np:"]+xshared()+INIT[LP:] if LP<999 else ["v_mov_b32 v12, s54"]+xshared()+INIT))
arr+=["s_mov_b64 exec, 1","s_waitcnt vmcnt(3)",
  "v_add_u32 v43, s94, v43","v_and_b32 v44, 0xffff, v43","v_lshrrev_b32 v45, 16, v43","v_cmp_eq_u32 vcc, 32, v44","v_add_u32 v45, 1, v45","s_and_b64 exec, exec, vcc","s_cbranch_execz L_nl",
  f"buffer_store_dword v45, v47, {SR(sW)}, s58 offen sc1","L_nl:","s_mov_b64 exec, -1"]+(stamp(3) if not os.environ.get('P2') else [])
WARM=int(os.environ.get('WARM','0'))
warm=["s_lshr_b32 s50, s2, 3","s_mul_i32 s50, s50, 1536",f"buffer_load_dwordx4 v[16:19], v3, {SR(sW)}, s50 offen sc1",f"buffer_load_dwordx4 v[20:23], v3, {SR(sW)}, s50 offen offset:512 sc1"]
if WARM==1: arr+=["s_cmp_eq_u32 s54, 0","s_cbranch_scc1 L_nw"]+warm+["L_nw:"]
if WARM==2:
    i=arr.index("s_waitcnt vmcnt(3)"); arr[i]="s_waitcnt vmcnt(5)"; arr[i-1:i-1]=warm
arr+=["s_mov_b32 s49, 0x200000"]+(["s_cmp_eq_u32 s54, 0","s_cbranch_scc1 L_poll1","s_branch L_go"] if NP>=999 and LP>=999 else ["s_branch L_chk"])
SLEEP=int(os.environ.get('SLEEP','6'))
poll=([f"s_sleep {SLEEP}"] if SLEEP else [])+["L_poll1:",PL,"s_sub_u32 s49, s49, 1","s_cbranch_scc1 L_go","s_waitcnt vmcnt(0)",
  "L_chk:","v_and_b32 v12, v12, v13","v_cmp_ne_u32 vcc, 1, v12","s_nop 1","s_cbranch_vccnz L_poll"]
CONSTS=["v_and_b32 v8, 1, v0","v_mul_u32_u24 v8, 0xaaaa, v8",f"v_add_u32 v{IDX}, 0x4444, v8",f"v_mov_b32 v{FV}, 1"]+[f"v_mov_b32 v{ONES+r}, 0x3f803f80" for r in range(4)]
go=(CONSTS if not int(os.environ.get('CG','0')) else [])+["s_waitcnt lgkmcnt(0)","s_barrier"]+stamp(4)
pas=(["s_mov_b32 s77, 0"] if DIAG else [])+["s_mov_b32 s60, s63"]+[kload(0,f) for f in range(6)]+(CONSTS if int(os.environ.get('CG','0')) else [])+[vload(0,c) for c in range(6)]+([f"s_nop 15"]*int(os.environ.get('GAP2','0')))+["s_add_u32 s60, s60, 12288"]+[kload(1,f) for f in range(6)]
pas+=["s_mov_b32 s61, 7","s_waitcnt vmcnt(15)"]
q0=qk(0,0,0); q1=qk(1,0,1); ev=[x for y in expgaps(0,0,0) for x in y]
pas+=(stamp(1) if os.environ.get('P6') else [])+q0[:3]+["s_waitcnt vmcnt(12)"]+(stamp(2) if os.environ.get('P6') else [])+q0[3:]+q1[:3]+(stamp(5) if not (os.environ.get('P1') or os.environ.get('P3')) else ['s_nop 4'])+["s_and_b32 s48, s2, 3"]+ev[0:2]+[q1[3]]+ev[2:4]+[q1[4]]+ev[4:6]+[q1[5]]+ev[6:]+["s_waitcnt vmcnt(6)","s_cbranch_scc1 L_s2_2","s_cmp_eq_u32 s45, 0","s_cbranch_scc0 L_s2_1","s_branch L_s2_0"]
def chk(reg): return [f"v_cmp_nle_f32 vcc, s48, v{reg}","s_or_b64 s[64:65], s[64:65], vcc",f"v_cmp_nge_f32 vcc, s49, v{reg}","s_or_b64 s[64:65], s[64:65], vcc"]
LR=LRCV
epi=(stamp(6) if not os.environ.get('P1') else [])+[f"s_mov_b32 s48, {f32(2.0**-20)}",f"s_mov_b32 s49, {f32(2.0**90)}","s_mov_b64 s[64:65], 0","s_waitcnt lgkmcnt(6)"]
XP=P0
epi+=[f"v_add_u32 v28, {2*REG}, v{XA}",f"v_add_u32 v29, {2*REG}, v3"]
late=[f"ds_read_b128 {R(RB(2)+4*q,4)}, v7 offset:{(12+q)*1024}" for q in range(6)]+[None]*3
late+=[f"ds_read_b32 v{24+w}, v{3 if w<2 else 29} offset:{(w%2)*REG+27648}" for w in range(4)]
late+=[f"ds_read_b128 {R(XP+8*w+4*e,4)}, v{XA if w<2 else 28} offset:{(w%2)*REG+18432+1024*e}" for w in range(4) for e in range(2)]
def lsum(t):
    r=LR+4*t
    return [f"v_accvgpr_read_b32 v{r+2}, {R(LL+12+4*t)}",f"v_accvgpr_read_b32 v{r+3}, {R(LL+13+4*t)}",f"v_add_f32 v{r}, v{r}, v{r+1}",f"v_add_f32 v{r+2}, v{r+2}, v{r+3}",
            f"v_add_f32 v{r+2}, v{r+2}, v{r}",f"v_rcp_f32 v{r+3}, v{r+2}"]+(["s_nop 0",f"v_mul_f32 v{r+3}, {f32(float(os.environ['EPS']))}, v{r+3}"] if os.environ.get('EPS') else [])
epi+=lsum(0)
issued=12; nan=[]
for t in range(3):
    for u in range(3):
        need=6*t+2*u+2
        if t==1: epi.append(f"s_waitcnt lgkmcnt({min(15,issued-need)})")
        o=OK+24*t+8*u; rb=RB(t)+8*u
        epi+=[f"v_pk_add_f32 {R(o+2*i,2)}, {R(o+2*i,2)}, {R(rb+2*i,2)}" for i in range(4)]
        for _ in range(3 if t<1 else 4):
            if late:
                x=late.pop(0)
                if x: epi.append(x); issued+=1
        if t<2 and u==1: epi+=lsum(t+1)
        epi+=[f"v_pk_mul_f32 {R(o+2*i,2)}, {R(o+2*i,2)}, {R(LR+4*t+2,2)} op_sel:[0,1] op_sel_hi:[1,1]" for i in range(4)]
        epi+=[f"v_cvt_pk_bf16_f32 v{o+i}, v{o+2*i}, v{o+2*i+1}" for i in range(4)]
        epi.append(f"buffer_store_dwordx4 {R(o,4)}, v{XO+t}, {SR(sO)}, s47 offen offset:{64*u} {OUTMOD}")
        if os.environ.get('NOST'): epi.pop()
        if (t,u)==(1,2):
            epi+=["s_and_b32 s50, s2, 3","s_cselect_b64 vcc, -1, 0","s_waitcnt lgkmcnt(8)","v_add_f32 v24, v24, v25","v_add_f32 v26, v26, v27","v_add_f32 v24, v24, v26",
                  f"v_mov_b32 v20, {FLAG}","v_mov_b32 v21, 1","v_cndmask_b32 v24, v24, 1.0, vcc"]
            epi+=chk(LR+2)+chk(LR+6)+chk(LR+10)+chk(24)+[f"v_cmp_lt_u32 vcc, 1, v{FV}","s_or_b64 s[64:65], s[64:65], vcc","v_rcp_f32 v26, v24",
                  "s_cmp_eq_u64 s[64:65], 0","s_cbranch_scc1 L_ok","ds_write_b32 v20, v21","L_ok:","s_waitcnt lgkmcnt(0)","s_barrier","ds_read_b32 v21, v20"]
            issued=18; fixed=True
assert not late
epi+=["s_and_b32 s50, s2, 3","s_lshr_b32 s51, s44, 1","s_and_b32 s51, s51, s44","s_or_b32 s50, s50, s51","s_cbranch_scc1 L_nx"]
xe=["s_lshl_b32 s50, s44, 6","s_add_u32 s50, s50, s47"]
xe+=[f"v_pk_add_f32 {R(XP+2*i,2)}, {R(XP+2*i,2)}, {R(XP+8+2*i,2)}" for i in range(4)]
xe+=[f"v_pk_add_f32 {R(XP+16+2*i,2)}, {R(XP+16+2*i,2)}, {R(XP+24+2*i,2)}" for i in range(4)]
xe+=[f"v_pk_add_f32 {R(XP+2*i,2)}, {R(XP+2*i,2)}, {R(XP+16+2*i,2)}" for i in range(4)]
xe+=[f"v_pk_mul_f32 {R(XP+2*i,2)}, {R(XP+2*i,2)}, v[26:27] op_sel_hi:[1,0]" for i in range(4)]
xe+=[f"v_cvt_pk_bf16_f32 v{8+i}, v{XP+2*i}, v{XP+2*i+1}" for i in range(4)]+[f"buffer_store_dwordx4 v[8:11], v{XOUT}, {SR(sO)}, s50 offen","L_nx:"]
epi+=xe
epi+=stamp(7)+(["s_mov_b32 s82, s96"] if os.environ.get('P4') else [])+(["s_getreg_b32 s75, hwreg(HW_REG_XCC_ID)"] if DIAG else [])+stampdump()
ok=["s_waitcnt lgkmcnt(0)","v_readfirstlane_b32 s48, v21","s_nop 3","s_andn2_b32 s48, s48, s62","s_cbranch_scc0 L_done"]
fb=["s_waitcnt vmcnt(0)"]+[f"v_mov_b32 v{MM+4*t}, 0xff800000" for t in range(7)]+["s_mov_b32 s60, s63","s_mov_b32 s61, 16"]
fbl=[kload(0,f) for f in range(6)]+["s_waitcnt vmcnt(0)"]
for t in range(7):
    fbl+=[M16(S0+4*k, KF+4*(3*k+j), XF+12*t+4*j, "0" if j==0 else None) for k in range(2) for j in range(3)]
    fbl+=["s_nop 7"]+[f"v_max3_f32 v{MM+4*t}, v{S0+2*i}, v{S0+2*i+1}, v{MM+4*t}" for i in range(4)]
fbl+=["s_bitcmp1_b32 s61, 0","s_cselect_b32 s48, 24576, 0","s_add_u32 s60, s60, s48","s_add_u32 s60, s60, 12288","s_sub_u32 s61, s61, 1","s_cmp_lg_u32 s61, 0","s_cbranch_scc1 L_fb"]
fb2=[f"ds_write_b32 v6, v{MM+4*t} offset:{1024*t}" for t in range(7)]
fb2+=["v_and_b32 v8, 0x300, v3","v_sub_u32 v9, v6, v8","v_sub_u32 v10, v7, v8","s_waitcnt lgkmcnt(0)","s_barrier"]
for t in range(7):
    tp=(t+3)%6 if t<6 else 6
    for G in range(4): fb2+=[f"ds_read_b32 v{12+G}, v9 offset:{1024*t+256*G}",f"ds_read_b32 v{16+G}, v10 offset:{1024*tp+256*G}"]
    fb2+=["s_waitcnt lgkmcnt(0)","v_max3_f32 v12, v12, v13, v14","v_max3_f32 v12, v12, v15, v16","v_max3_f32 v12, v12, v17, v18","v_max_f32 v12, v12, v19"]
    fb2+=[f"v_sub_f32 v{MM+4*t+i}, 0, v12" for i in range(4)]
fb2+=init_acc()+["s_barrier","s_mov_b32 s62, 1","s_branch L_pass"]

flat=lambda x: [l for y in x for l in y]
B=[body(0),body(1),body(None)]; T=[tail(0),tail(1),tail(None)]
out=[]
HDR=open('standalone__window_attn_twins__vision.s.ref').read().split('\n')
out+=HDR[:10]
out.append(f"; @launch grid=(256,1,1) block=(256,1,1) lds={LDSB}")
out+=['.amdgcn_target "amdgcn-amd-amdhsa--gfx950"',".text",f".globl {N}",".p2align 8",f".type {N},@function",f"{N}:"]
def E(lines,label=None,align=False):
    if align: out.append(".p2align 6")
    if label: out.append(label+":")
    out.extend(l if l.endswith(':') else "    "+l for l in lines)
E(entry); E(pool0); E(pz); E(pool1); E(wp0,"L_wpath"); E(wp); E(wj); E(kp); E(vp,"L_vp"); E(pj,"L_pj"); E(wr_,"L_wr"); E(arr,"L_arr")
E(pool,"L_pool")
E(poll,"L_poll"); E(go,"L_go"); E(pas,"L_pass"); E(flat([[f"L_fv{q}:",f"buffer_load_dword v{FV}, v{FA}, {SR(sW)}, 0 offen sc1",f"s_branch L_fvb{q}"] for q in (0,1,None)]))
for q in range(3):
    E(flat(B[q][:2]),f"L_loop{q}",True); E(flat(B[q][2:]),f"L_s2_{q}"); E([f"s_cbranch_scc1 L_loop{q}"]); E(stamp(3) if os.environ.get('P2') else []); E(T[q])
    if q<2: E(["s_branch L_epi"])
def slow(q): return [f"L_slow{q}:","s_mov_b32 s49, 0x200000"]+(["s_mov_b32 s77, 1"] if DIAG else [])+[f"L_slowp{q}:",f"buffer_load_dword v{FV}, v{FA}, {SR(sW)}, 0 offen sc1","s_sub_u32 s49, s49, 1",f"s_cbranch_scc1 L_back{q}",
    "s_waitcnt vmcnt(0)",f"v_cmp_eq_u32 vcc, 0, v{FV}","s_nop 1",f"s_cbranch_vccnz L_slowp{q}",f"s_branch L_back{q}"]
E(epi,"L_epi"); E(ok); E(fb); E(fbl,"L_fb"); E(fb2); E(slow(0)+slow(1)+slow(None)); E(["s_endpgm","L_end:"],"L_done")
out+=['.section .rodata,"a"',".p2align 6",f".amdhsa_kernel {N}","  .amdhsa_next_free_vgpr 512","  .amdhsa_next_free_sgpr 100","  .amdhsa_accum_offset 256",
 "  .amdhsa_group_segment_fixed_size 0","  .amdhsa_kernarg_size 56","  .amdhsa_user_sgpr_count 2","  .amdhsa_user_sgpr_kernarg_segment_ptr 1",
 "  .amdhsa_system_sgpr_workgroup_id_x 1",".end_amdhsa_kernel"]
open(sys.argv[1],'w').write("\n".join(out)+"\n")
bad=0
bad+=hz.check(entry+pool0+pz+pool1+pool+go+pas,'pool')
bad+=hz.check(entry+wp0+wp+wj+kp+pj+wr_+arr+poll+go+pas,'kpath')
bad+=hz.check(entry+wp0+wp+wj+vp+pj+wr_+arr,'vpath')
for q in range(3):
    bad+=hz.check(pas+flat(B[q][2:])+["s_cbranch x"]+flat(B[q])+["s_cbranch x"]+T[q]+epi+ok+fb+fbl+fbl+fb2+pas,f'main{q}')
print("hazards:",bad)
```

```python
import sys, struct, math, os
import hz
DIAG=int(os.environ.get('DIAG','0'))
OUTMOD=os.environ.get('OUTMOD','')
PMOD=os.environ.get('PMOD','nt')
KVMOD=os.environ.get('KVMOD','sc1')
XMOD=os.environ.get('XMOD','')
OUTSZ=int(os.environ.get('OUTSZ','9633792'))
def R(x,n=1):
    if x>=256: return f"a{x-256}" if n==1 else f"a[{x-256}:{x-256+n-1}]"
    return f"v{x}" if n==1 else f"v[{x}:{x+n-1}]"
def M16(d,a,b,c=None):
    c = R(d,4) if c is None else (c if isinstance(c,str) else R(c,4))
    return f"v_mfma_f32_16x16x32_bf16 {R(d,4)}, {R(a,4)}, {R(b,4)}, {c}"
def f32(x): return "0x%08x"%struct.unpack("<I",struct.pack("<f",x))[0]
def base(ct): return 32*(ct//2)+4*(ct%2)
XB=9633792; WSB=0x10000000; OOB=0x40000000
FLG=0x80000
REG=28672; XI=73728; XS=116736; FLAG=XS+768; LDSB=FLAG+64
assert all((q*2341)>>16==q//28 for q in range(208))
assert all((c*5462)>>16==c//12 for c in range(192))
S0=8; P0=32; P6=80; ONES=84; IDX=88; MM=92; OK=120; VF=192; XO=240; T2=56; LL=256+228
OS=256; OX=256+72; XF=256+96; KF=256+180; ASP=256+228
FV=89; FA=90
XA=1; XL=2; XOUT=243; LRCV=MM
sX=20; sO=24; sW=28; sA=32; sB=36; sD=40
def SR(d): return f"s[{d}:{d+3}]"
def srd(d, lo, size): return [f"s_mov_b32 s{d}, s{lo}", f"s_mov_b32 s{d+1}, s{lo+1}", f"s_mov_b32 s{d+2}, {size}", f"s_mov_b32 s{d+3}, 0x00020000"]
def Oreg(t): return OS+24*t if t<3 else (OK+24*(t-3) if t<6 else OX)
def RB(t): return [P0,VF,VF+24][t]
def Preg(st,t): return P0+8*t+4*st if t<6 else P6
def W1(i): return KF+4*i if i<12 else XF+4*(i-12)
def W2(i): return VF+4*i if i<12 else T2+4*(i-12)
nst=[0]
def stamp(idx):
    if not DIAG: return []
    return ["s_memrealtime s[66:67]","s_memtime s[68:69]","s_waitcnt lgkmcnt(0)",f"s_mov_b32 s{72+2*idx}, s66",f"s_mov_b32 s{73+2*idx}, s68"]
def stampdump():
    if not DIAG: return []
    o=["s_lshl_b32 s66, s2, 2","s_add_u32 s66, s66, s44","s_lshl_b32 s66, s66, 6",f"s_add_u32 s66, s66, {0x100000}","v_mov_b32 v20, 0"]
    for i in range(8):
        o+=[f"v_mov_b32 v22, s{72+2*i}",f"v_mov_b32 v23, s{73+2*i}",f"buffer_store_dwordx2 v[22:23], v20, {SR(sW)}, s66 offen offset:{8*i}","s_nop 1"]
    return o

def kload(stage,f):
    v,o=(3,f*1024) if f<4 else (4,(f-4)*1024)
    return f"buffer_load_dwordx4 {R(KF+24*stage+4*f,4)}, v{v}, {SR(sW)}, s60 offen offset:{o}"
def vload(stage,ct):
    v,o=(4,2048+ct*1024) if ct<2 else (5,(ct-2)*1024)
    return f"buffer_load_dwordx4 {R(VF+24*stage+4*ct,4)}, v{v}, {SR(sW)}, s60 offen offset:{o}"
def slots_of(qg):
    a=[(0,t) for t in range(6)]+([(0,6)] if qg==0 else [])
    b=[(1,t) for t in range(6)]+([(1,6)] if qg==1 else [])
    return a+b
def colorf(N): return (lambda n: (n%13)%2 if n%13<12 else 2) if N==13 else (lambda n: n%2)
def qk(c,st,t):
    S=S0+8*c
    return [M16(S+4*k, KF+24*st+4*(3*k+j), XF+12*t+4*j, MM+4*t if j==0 else None) for k in range(2) for j in range(3)]
def pv(st,t):
    P=Preg(st,t)
    o=[M16(Oreg(t)+4*q, VF+24*st+4*q, P) for q in range(6)]
    if t==6: o.append(M16(LL+4*t, ONES, P))
    elif st==1: o.append(f"v_smfmac_f32_16x16x64_bf16 {R(LL+4*t,4)}, {R(ONES,4)}, {R(P0+8*t,8)}, v{IDX}")
    return o
def expgaps(c,st,t,n=13):
    S=S0+8*c; P=Preg(st,t)
    E=lambda j: f"v_exp_f32 v{S+j}, v{S+j}"
    C=lambda j: f"v_cvt_pk_bf16_f32 v{P+j}, v{S+2*j}, v{S+2*j+1}"
    return [[E(0)],[E(1)],[E(2)],[E(3)],[E(4)],[C(0),C(1)],[E(5)],[E(6)],[E(7)],[],[C(2),C(3)],[],[]][:n]
def body(qg):
    sl=slots_of(qg); out=[]; NS=len(sl); color=colorf(NS)
    for n,(st,t) in enumerate(sl):
        idx=[i for i,(s2,_) in enumerate(sl) if s2==st]
        pos=n-idx[0]; last=len(idx)-1
        mm=qk(color(n),st,t)+pv(*sl[(n-2)%NS])
        g=expgaps(color(n-1),*sl[(n-1)%NS],n=len(mm)); fr=(9,11); e=len(mm)-1
        if pos in (0,1):
            for i in range(2): g[fr[i]].append(kload(1-st,2+2*pos+i))
        if pos==1: g[e].append("s_waitcnt vmcnt(6)")
        if pos in (2,3,4):
            for i in range(2): g[fr[i]].append(vload(1-st,2*(pos-2)+i))
        if pos==last-1:
            g[e if last==5 else 9].append(f"s_add_u32 s60, s60, {36864 if st==0 else 12288}")
            g[e].append("s_waitcnt vmcnt(6)")
        if pos==last and st==0:
            g[5].append(f"v_cmp_eq_u32 vcc, 0, v{FV}"); g[7]+=[f"s_cbranch_vccnz L_slow{qg}",f"L_back{qg}:"]
        if pos==2 and st==1: g[e].append("s_sub_u32 s61, s61, 1")
        if pos==3 and st==1: g[e]+=["s_cmp_eq_u32 s61, 6",f"s_cbranch_scc1 L_fv{qg}",f"L_fvb{qg}:"]
        if pos==last:
            for i in range(2): g[fr[i]].append(kload(st,i))
        if pos==last and st==1: g[10].append("s_cmp_lg_u32 s61, 0")
        if os.environ.get('NOLD'): g=[[x for x in y if not x.startswith('buffer_load')] for y in g]
        o=[f"; slot {n}: stage {st} tile {t}"]
        for i in range(len(mm)): o.append(mm[i]); o+=g[i]
        out.append(o)
    return out
def tail(qg):
    sl=slots_of(qg)
    order=[(0,0),(0,1),(0,2),(0,3),(1,0),(1,1),(1,2)]+([(qg,6)] if qg is not None else [])+[(0,4),(0,5),(1,3),(1,4),(1,5)]
    NS=len(sl); color=colorf(NS)
    seq=[sl[-2],sl[-1]]+order
    col=[color(NS-2),color(NS-1)]+[color(n) for n in range(NS)]
    out=[]; pend=[]
    def states_since(i): return sum((int(l.split()[1])+1 if l.startswith('s_nop') else 1) for l in out[i+1:] if not l.startswith(';'))
    def place(n):
        for _ in range(n):
            if pend and states_since(pend[0][0])>=8:
                out.append(pend.pop(0)[1])
                if pend and 'b128' not in pend[0][1] and states_since(pend[0][0])>=8: out.append(pend.pop(0)[1])
    def wr(t,q):
        if q<6: return f"ds_write_b128 v6, {R(Oreg(t)+4*q,4)} offset:{(6*t+q)*1024 if t<3 else (18+q)*1024}"
        if t==6: return f"ds_write_b32 v6, {R(LL+4*t)} offset:{24576+3072}"
        return f"ds_write_b64 v6, {R(LL+4*t,2)} offset:{24576+1024*t}"
    rd0=[f"ds_read_b64 {R(LRCV+4*t,2)}, v7 offset:{24576+1024*t}" for t in range(3)]+[f"ds_read_b128 {R(RB(0)+4*q,4)}, v7 offset:{q*1024}" for q in range(6)]
    rd1=[f"ds_read_b128 {R(RB(1)+4*q,4)}, v7 offset:{(6+q)*1024}" for q in range(6)]
    rds=[]
    nb=NS
    for k in range(nb+2):
        out.append(f"; tail slot {k}")
        mm=[]
        if k<nb: mm+=[(m,None) for m in qk(col[k+2],*seq[k+2])]
        st,t=seq[k]
        final = k>=2 and (t==6 or (t<3 and st==1))
        mm+=[(m,(t,q) if final else None) for q,m in enumerate(pv(st,t))]
        if k<nb: g=expgaps(col[k+1],*seq[k+1],n=len(mm))
        elif k==nb:
            f=[x for y in expgaps(col[k+1],*seq[k+1]) for x in y]; g=[f[2*i:2*i+2] for i in range(7)]
        else: g=[[] for _ in range(7)]
        fr=(9,11); e=len(mm)-1
        if k in (0,1):
            for i in range(2): g[fr[i]].append(kload(1,2+2*k+i))
        if k==1: g[e].append("s_waitcnt vmcnt(6)")
        if k in (2,3):
            for i in range(3): g[(7,9,11)[i]].append(vload(1,3*(k-2)+i))
        if k==3: g[e].append("s_waitcnt vmcnt(6)")
        if k==6: g[5].append("s_waitcnt vmcnt(0)")
        BS,BG=NS-1,8
        if k==BS: g[BG]+=["s_waitcnt lgkmcnt(0)","s_barrier"]
        for i,(m,w) in enumerate(mm):
            out.append(m)
            if w: pend.append((len(out)-1, wr(*w)))
            out+=g[i]
            if k==BS and i==BG: assert not pend; rds=rd0+rd1
            if k<BS or (k==BS and i<4):
                if i in ((2,5,9,11,12) if k<BS else (0,1,2,3)): place(1)
            elif not g[i]:
                for _ in range(3):
                    if rds: out.append(rds.pop(0))
    assert not pend and not rds, (pend,rds)
    return out

XR=MM
def common_setup():
    o=["v_and_b32 v8, 15, v0","v_lshrrev_b32 v9, 4, v0","v_lshlrev_b32 v9, 4, v9",
       f"v_lshlrev_b32 v{FA}, 7, v8",f"v_add_u32 v{FA}, {FLG+4096}, v{FA}",
       "v_lshlrev_b32 v3, 4, v0","v_add_u32 v4, 4096, v3","v_add_u32 v5, 8192, v3",
       f"s_mul_i32 s48, s44, {REG}","v_add_u32 v6, s48, v3","s_xor_b32 s48, s44, 2",f"s_mul_i32 s48, s48, {REG}","v_add_u32 v7, s48, v3",
       "s_mul_i32 s48, s45, 96","s_mul_i32 s49, s46, 48","s_add_u32 s50, s48, s49",
       "s_sub_u32 s49, 48, s49","s_add_u32 s49, s48, s49",
       "s_mov_b32 s51, 37632",f"s_mov_b32 s52, {-2304}",f"s_mov_b32 s53, {21504-2688}",f"v_add_u32 v13, {XI}, v9"]
    for t in range(6):
        o+=[f"s_add_u32 s48, s{49 if t<3 else 50}, {16*(t%3)}","v_add_u32 v10, s48, v8"]
        o+=["v_mul_u32_u24 v11, 4682, v10","v_mul_u32_u24 v10, 192, v10","v_lshrrev_b32 v12, 17, v11","v_bfe_u32 v11, v11, 16, 1"]
        if 3<=t<6: o+=[f"v_mad_u32_u24 v14, v12, s51, v10",f"v_add_u32 v{XO+t-3}, v14, v9"]
        o+=["v_mad_i32_i24 v10, v12, s52, v10","v_mad_u32_u24 v10, v11, s53, v10",f"v_add_u32 v{XR+t}, v10, v13"]
    o+=["v_lshrrev_b32 v10, 2, v8","v_and_b32 v11, 3, v8","v_mul_u32_u24 v10, 5376, v10","v_mul_u32_u24 v11, 192, v11","v_add3_u32 v10, v10, v11, v9",
        f"v_add_u32 v{XOUT}, {6*43008+24*192}, v10","s_min_u32 s48, s44, 2","s_lshl_b32 s48, s48, 11",f"v_add_u32 v{XA}, s48, v3"]
    return o
assert all((q*4682)>>16==q//14 and (q*4682)>>17==q//28 for q in range(208))
assert all((c*5462)>>16==c//12 for c in range(192))
def xreads(): return [f"ds_read_b128 {R(XF+12*t+4*s,4)}, v{XR+t} offset:{64*s}" for t in range(6) for s in range(3)]
def xshared(): return srd(sX,4,XB)+[f"buffer_load_dwordx4 {R(XF+72+4*s,4)}, v{XOUT}, {SR(sX)}, s47 offen offset:{64*s}" for s in range(3)]
def init_acc():
    return [f"v_accvgpr_write_b32 a{r}, 0" for r in range(96)]+[f"v_accvgpr_write_b32 {R(LL+r)}, 0" for r in range(28)]+[f"v_mov_b32 v{r}, 0" for r in range(OK,OK+72)]
def init_const():
    return [f"v_mov_b32 v{MM+r}, 0" for r in range(28)]
def dma_loop(label, vs, srdreg, step, mod=""):
    return [label+":","s_mov_b32 m0, s49","s_add_u32 s49, s49, 3072"]+\
           [f"buffer_load_dwordx4 v{vs[j]}, {SR(srdreg)}, s48 offen offset:{1024*j} {mod} lds" for j in range(3)]+\
           [f"s_add_u32 s48, s48, {step}","s_cmp_lt_u32 s49, s50",f"s_cbranch_scc1 {label}"]

ZWG=int(os.environ.get('ZWG','254'))
ORD=int(os.environ.get('ORD','1'))
EB=int(os.environ.get('EB','1'))
SPLIT=int(os.environ.get('SPLIT','3'))
FSH=int(os.environ.get('FSH','5'))
NE=int(os.environ.get('NE','64'))
N="standalone__window_attn_twins__vision_kernel"
PF="buffer_load_dwordx4 a[252:255], v9, s[88:91], 0 offen" if int(os.environ.get("PF","1")) else "s_nop 0"
entry=(["s_memrealtime s[96:97]"] if os.environ.get('P4') else [])+["s_cmp_ge_u32 s2, 256","s_cbranch_scc1 L_done",
  "s_load_dwordx8 s[4:11], s[0:1], 0","s_load_dwordx4 s[12:15], s[0:1], 32","s_load_dwordx2 s[16:17], s[0:1], 48",
  "s_getpc_b64 s[88:89]","L_pc:","s_lshr_b32 s47, s2, 3","s_lshl_b32 s48, s47, 12","v_lshl_add_u32 v9, v0, 4, s48","s_mov_b32 s90, L_end-L_pc","s_mov_b32 s91, 0x00020000",
  "v_and_b32 v9, 0x7fff, v9","v_lshrrev_b32 v8, 6, v0","v_and_b32 v0, 63, v0",
  PF,"v_lshlrev_b32 v20, 4, v0","v_readfirstlane_b32 s44, v8",f"v_mov_b32 v18, {OOB}",
  "s_and_b32 s48, s2, 7","s_mul_i32 s47, s47, 301056","s_mul_i32 s48, s48, 5376","s_add_u32 s47, s47, s48",
  f"s_mov_b32 s{sA+3}, 0x00020000",
  "s_cmp_ge_u32 s44, 2","s_cbranch_scc1 L_wpath"]
ids=["s_and_b32 s45, s44, 1","s_lshr_b32 s46, s44, 1","s_mul_i32 s63, s46, 24576","s_mov_b32 s62, 0","v_and_b32 v16, 15, v0","v_lshrrev_b32 v17, 4, v0"]
pool0=["v_cmp_gt_u32 vcc, 40, v0","s_mul_i32 s48, s44, 2688","s_add_u32 s48, s48, s47","s_mul_i32 s49, s44, 21504",f"s_add_u32 s49, s49, {XI}","s_add_u32 s50, s49, 21504",
  "v_cndmask_b32 v21, v18, v20, vcc",f"s_mov_b32 s{sA+2}, {XB}","s_waitcnt lgkmcnt(0)",f"s_mov_b32 s{sA}, s4",f"s_mov_b32 s{sA+1}, s5"]+stamp(0)
pool0+=([f"s_sleep {os.environ['PDELAY']}"] if os.environ.get('PDELAY') else [])+([f"s_setprio {os.environ.get('PRIO','1')}"])+srd(sW,16,WSB)+["s_lshl_b32 s59, s2, 2","s_add_u32 s59, s59, s44",f"s_cmp_lg_u32 s59, {4*ZWG+1}","s_cbranch_scc1 L_nz0"]
pz=["v_lshlrev_b32 v29, 7, v0"]+[f"v_mov_b32 v{32+i}, 0" for i in range(4)]+[f"s_mov_b32 s51, {FLG}",f"buffer_store_dwordx4 v[32:35], v29, {SR(sW)}, s51 offen sc1",
    f"s_mov_b32 s51, {FLG+8192}",f"v_lshlrev_b32 v29, {max(FSH,4)}, v0",f"buffer_store_dwordx4 v[32:35], v29, {SR(sW)}, s51 offen sc1"]
pool1=["L_nz0:"]+([f"s_cmp_lt_u32 s2, {NE}","s_cbranch_scc1 L_xdma","s_barrier"] if ORD else [])+dma_loop("L_xdma",[20,20,21],sA,43008,PMOD)+([f"s_cmp_ge_u32 s2, {NE}","s_cbranch_scc1 L_pool","s_barrier"] if ORD and EB else [])+["s_branch L_pool"]
PX=VF
pool=["s_setprio 0"]+srd(sD,14,256)+[f"s_cmp_lg_u32 s59, {4*ZWG+1}","s_cbranch_scc1 L_nrd","v_mov_b32 v32, 1","v_mov_b32 v33, 0","s_waitcnt vmcnt(21)","s_mov_b64 exec, 1",
     f"buffer_store_dword v32, v33, {SR(sD)}, 0 offen sc1","s_mov_b64 exec, -1","L_nrd:"]+ids+srd(sO,12,OUTSZ)
pool+=["v_and_b32 v21, 1, v16","v_lshlrev_b32 v21, 4, v21","v_mov_b32 v22, 0x3f80","v_lshlrev_b32 v21, v21, v22","v_lshrrev_b32 v22, 1, v16"]
for d in range(8): pool+=[f"v_cmp_eq_u32 vcc, {d}, v22","s_nop 1",f"v_cndmask_b32 v{24+d}, 0, v21, vcc"]
pool+=[f"v_mov_b32 v8, {FLAG}","v_mov_b32 v9, 0","ds_write_b32 v8, v9"]
pool+=["v_lshrrev_b32 v21, 1, v17","v_mul_u32_u24 v21, 192, v21","v_lshl_add_u32 v21, v16, 4, v21","v_and_b32 v22, 1, v17","v_lshl_add_u32 v21, v22, 3, v21",
       "s_mul_i32 s48, s44, 384",f"s_add_u32 s48, s48, {XS}","v_add_u32 v21, s48, v21","v_cmp_gt_u32 s[54:55], 12, v16",
       "s_sub_u32 s50, s50, 21504","v_lshl_add_u32 v39, v16, 4, s50","v_mul_u32_u24 v36, 192, v17","v_add_u32 v36, v36, v39","v_cmp_gt_u32 vcc, 3, v17",
       "v_add_u32 v39, 2688, v39","v_add_u32 v37, 768, v36",f"v_add_u32 v38, {768+1344}, v36","v_cndmask_b32 v37, v39, v37, vcc","v_cndmask_b32 v38, v39, v38, vcc"]
pool+=stamp(1)
PX=OK
def prd(r):
    b=PX+16*r
    return [f"ds_read_b128 {R(b,4)}, v36 offset:{3072*r}",f"ds_read_b128 {R(b+4,4)}, v37 offset:{3072*r}",
            f"ds_read_b128 {R(b+8,4)}, v36 offset:{3072*r+1344}",f"ds_read_b128 {R(b+12,4)}, v38 offset:{3072*r}"]
def pmm(r): return [M16(32, 24+4*(j//2), PX+16*r+4*j, "0" if (r,j)==(0,0) else None) for j in range(4)]
for r in range(7):
    pool+=[f"s_waitcnt vmcnt({3*(6-r)})"]+prd(r)
    if r>=2: pool+=["s_waitcnt lgkmcnt(8)"]+pmm(r-2)
pool+=["s_waitcnt lgkmcnt(4)"]+pmm(5)
m=pmm(6)
for j in range(4): pool+=[f"s_waitcnt lgkmcnt({3-j})",m[j]]
pool+=["s_nop 7"]+[f"v_mul_f32 v{32+i}, {f32(1/49)}, v{32+i}" for i in range(4)]
pool+=["v_cvt_pk_bf16_f32 v32, v32, v33","v_cvt_pk_bf16_f32 v33, v34, v35","s_mov_b64 exec, s[54:55]","ds_write_b64 v21, v[32:33]","s_mov_b64 exec, -1",
       "s_waitcnt lgkmcnt(0)"]+stamp(2)+["s_barrier"]
pool+=common_setup()+xshared()+xreads()+init_const()+init_acc()
pool+=(stamp(3) if not os.environ.get('P2') else [])+["s_branch L_go"]
wp0=["s_sub_u32 s54, s44, 2"]
for j in range(3):
    wp0+=[f"v_add_u32 v19, {64*j}, v0","v_mul_u32_u24 v24, 5462, v19","v_lshlrev_b32 v19, 4, v19","v_lshrrev_b32 v24, 16, v24",
          "v_mul_u32_u24 v24, 192, v24",f"v_add3_u32 v{21+j}, v24, v19, s{[92,93,94][j]}"]
wp0=[f"s_mov_b32 s92, 0","s_mov_b32 s93, -1024","s_mov_b32 s94, -2048"]+wp0
wp0+=["s_mul_i32 s48, s54, 192","s_mul_i32 s49, s54, 36864","s_add_u32 s50, s49, 18432",f"s_mov_b32 s{sA+2}, 36864",
     "s_waitcnt lgkmcnt(0)",f"s_mov_b32 s{sA}, s8",f"s_mov_b32 s{sA+1}, s9"]
TLB=int(os.environ.get('TLB','0'))
tlb=srd(sW,16,WSB)+srd(sD,14,256)+srd(sO,12,OUTSZ)+["v_mov_b32 v25, 0",f"s_mov_b32 s51, {0x70000}","s_mov_b64 exec, 1",f"buffer_load_dword v26, v25, {SR(sW)}, s51 offen sc1",
     f"buffer_load_dword v27, v25, {SR(sD)}, 0 offen offset:128 sc1",f"buffer_load_dword v28, v25, {SR(sO)}, s47 offen","s_add_u32 s51, s47, 290000",f"buffer_load_dword v29, v25, {SR(sO)}, s51 offen","s_mov_b64 exec, -1"]
wp=stamp(0)+(tlb if TLB else [])+([f"s_sleep {os.environ['WDELAY']}"] if os.environ.get('WDELAY') else [])
if ORD:
    wp+=([f"s_cmp_ge_u32 s2, {NE}","s_cbranch_scc1 L_nb1","s_barrier","L_nb1:"] if EB else [])+[f"s_add_u32 s50, s49, {3072*SPLIT}"]+dma_loop("L_w1a",[21,22,23],sA,6144)
    wp+=[f"s_cmp_lt_u32 s2, {NE}","s_cbranch_scc1 L_nb2","s_barrier","L_nb2:",f"s_add_u32 s50, s49, {3072*(6-SPLIT)}"]+dma_loop("L_w1b",[21,22,23],sA,6144)
else: wp+=dma_loop("L_w1dma",[21,22,23],sA,6144)
wp+=["s_cmp_eq_u32 s54, 0",f"s_cselect_b32 s{sB}, s6, s10",f"s_cselect_b32 s{sB+1}, s7, s11",f"s_mov_b32 s{sB+2}, 18432",f"s_mov_b32 s{sB+3}, 0x00020000",
     "s_mov_b32 s48, 0"]
IA=init_acc()
EI=int(os.environ.get('EI','1'))
if EI: wp+=[f"s_cmp_ge_u32 s2, {NE}","s_cbranch_scc1 L_w2u","s_add_u32 s50, s49, 18432"]+dma_loop("L_w2dma",[20,20,20],sB,3072)+["s_branch L_w2e","L_w2u:"]
for i in range(18):
    if i%3==0: wp+=["s_mov_b32 m0, s49","s_add_u32 s49, s49, 3072"]
    wp.append(f"buffer_load_dwordx4 v20, {SR(sB)}, s48 offen offset:{1024*(i%3)} lds")
    if i%3==2: wp.append("s_add_u32 s48, s48, 3072")
    wp+=IA[len(IA)*i//17:len(IA)*(i+1)//17] if i<17 else []
wj=(["L_w2e:"] if EI else [])+ids+(srd(sW,16,WSB)+srd(sD,14,256) if not TLB else [])
wj+=["s_mul_i32 s55, s54, 36864","v_lshrrev_b32 v22, 2, v16","v_and_b32 v23, 3, v16",
     "v_lshl_add_u32 v44, v17, 3, v22","v_mul_u32_u24 v44, 192, v44","v_lshl_add_u32 v44, v23, 4, v44","v_add_u32 v44, s55, v44",
     "v_lshl_add_u32 v47, v22, 3, v23","v_mul_u32_u24 v47, 192, v47","v_lshl_add_u32 v47, v17, 4, v47",
     "v_mul_u32_u24 v45, 192, v23","v_lshl_add_u32 v45, v17, 4, v45",f"v_add_u32 v45, {XS}, v45",
     "v_cmp_gt_u32 vcc, 4, v16","v_cmp_gt_u32 s[52:53], 16, v0","s_cmp_eq_u32 s54, 0","s_cselect_b64 vcc, vcc, s[52:53]","s_nop 1","v_cndmask_b32 v46, v18, v20, vcc",
     "s_lshr_b32 s56, s2, 3","s_mul_i32 s56, s56, 12288","s_bfe_u32 s57, s2, 0x10002","s_and_b32 s58, s2, 3"]
wj+=stamp(1)+["s_waitcnt vmcnt(18)"]
for nt in range(6):
    for s_ in range(3):
        for h in range(2): wj.append(f"ds_read_b64_tr_b16 {R(W1(3*nt+s_)+2*h,2)}, v44 offset:{(32*s_+4*h)*192+base(nt)*2}")
D1=8; XSF=XF+24; KB=32
wj+=["s_waitcnt lgkmcnt(0)"]+stamp(2)+["s_cmp_eq_u32 s54, 0","s_cbranch_scc0 L_vp"]
def step1(rd):
    o=["s_barrier"]+[f"ds_read_b128 {R(XSF+4*s_,4)}, v45 offset:{64*s_}" for s_ in range(3)]+["s_waitcnt vmcnt(0)","s_waitcnt lgkmcnt(0)"]+(stamp(1) if os.environ.get('P1') else [])
    per=len(rd)//18
    for nt in range(6):
        for s_ in range(3):
            o.append(M16(D1+4*nt, W1(3*nt+s_), XSF+4*s_, "0" if s_==0 else None))
            o+=rd[per*(3*nt+s_):per*(3*nt+s_+1)]
    for u in range(3):
        if u==2: o.append("s_nop 1")
        for e in range(2):
            for z in range(2): o.append(f"v_cvt_pk_bf16_f32 v{KB+4*u+2*e+z}, v{D1+8*u+4*e+2*z}, v{D1+8*u+4*e+2*z+1}")
    return o+["s_waitcnt lgkmcnt(0)","v_mov_b32 v47, 0",f"buffer_load_dword v45, v47, {SR(sD)}, 0 offen sc1"]
wq=[f"ds_read_b128 {R(W2(3*ct+u),4)}, v47 offset:{18432+base(ct)*192+64*u}" for ct in range(6) for u in range(3)]
wtr=[f"ds_read_b64_tr_b16 {R(W2(3*ct+u)+2*h,2)}, v44 offset:{18432+(32*u+4*h)*192+base(ct)*2}" for ct in range(6) for u in range(3) for h in range(2)]
sc=f32(96**-0.5*math.log2(math.e))
kp=step1(wq)+[M16(D1+4*ct, W2(3*ct+u), KB+4*u, "0" if u==0 else None) for ct in range(6) for u in range(3)]
kp+=[f"s_mov_b32 s50, {sc}",f"s_mov_b32 s51, {sc}","s_mul_i32 s57, s57, 3072","s_add_u32 s56, s56, s57","s_lshl_b32 s58, s58, 6","s_add_u32 s56, s56, s58"]
for u in range(3):
    if u==2: kp.append("s_nop 1")
    kp+=[f"v_pk_mul_f32 {R(D1+8*u+2*i,2)}, {R(D1+8*u+2*i,2)}, s[50:51]" for i in range(4)]
    kp+=[f"v_cvt_pk_bf16_f32 v{KB+4*u+i}, v{D1+8*u+2*i}, v{D1+8*u+2*i+1}" for i in range(4)]
    kp.append(f"buffer_store_dwordx4 {R(KB+4*u,4)}, v46, {SR(sW)}, s56 offen offset:{1024*u} {KVMOD}")
kp+=["s_mov_b32 s94, 1","s_branch L_pj"]
vp=step1(wtr)+[M16(D1+4*ct, KB+4*u, W2(3*ct+u), "0" if u==0 else None) for ct in range(6) for u in range(3)]
vp+=["s_lshl_b32 s57, s57, 3","s_add_u32 s56, s56, s57","s_lshl_b32 s58, s58, 8","s_add_u32 s56, s56, s58","s_add_u32 s56, s56, 6144","s_add_u32 s57, s56, 4096"]
for ct in range(6):
    vp+=[f"v_cvt_pk_bf16_f32 v{D1+4*ct}, v{D1+4*ct}, v{D1+4*ct+1}",f"v_cvt_pk_bf16_f32 v{D1+4*ct+1}, v{D1+4*ct+2}, v{D1+4*ct+3}",
         f"buffer_store_dwordx2 {R(D1+4*ct,2)}, v46, {SR(sW)}, s{56 if ct<4 else 57} offen offset:{1024*(ct%4)} {KVMOD}"]
if os.environ.get('MOCK'):
    keep=lambda L: [x for x in L if not (x.startswith('v_mfma') or x.startswith('ds_read_b64_tr') or (x.startswith('ds_read_b128') and 'v47' in x) or x=="s_waitcnt vmcnt(0)" or x.startswith('v_pk_mul') or x.startswith('v_cvt'))]
    kp=keep(kp); vp=keep(vp); wj=[x for x in keep(wj) if x!="s_waitcnt vmcnt(18)"]
    wp=stamp(0)
vp+=["s_mov_b32 s50, 0x7fff7fff"]+[f"v_and_b32 v{KB+2*ct+h}, s50, v{D1+4*ct+h}" for ct in range(6) for h in range(2)]
vp+=[f"v_pk_max_u16 v{KB+i}, v{KB+i}, v{KB+6+i}" for i in range(6)]+[f"v_pk_max_u16 v{KB+i}, v{KB+i}, v{KB+3+i}" for i in range(3)]
vp+=[f"v_pk_max_u16 v{KB}, v{KB}, v{KB+1}",f"v_pk_max_u16 v{KB}, v{KB}, v{KB+2}",f"v_lshrrev_b32 v{KB+1}, 16, v{KB}",f"v_and_b32 v{KB}, 0xffff, v{KB}",f"v_max_u32 v{KB}, v{KB}, v{KB+1}",
     f"v_cmp_lt_u32 vcc, {(127+30)<<7}, v{KB}","s_mov_b32 s94, 1","s_cmp_lg_u64 vcc, 0","s_cselect_b32 s94, 0x10001, s94"]
PRE=srd(sO,12,OUTSZ)+common_setup()+xreads()
EARLY=int(os.environ.get('EARLY','1'))
pj=(stamp(5) if os.environ.get('P1') else [])+(PRE if EARLY else [])+["s_lshr_b32 s48, s2, 4","s_lshl_b32 s48, s48, 7",f"s_add_u32 s48, s48, {FLG}","v_mov_b32 v44, 1","s_mov_b32 s49, 0x200000",
    f"s_lshl_b32 s57, s2, {FSH-2}","s_add_u32 s57, s57, s54","s_lshl_b32 s57, s57, 2",f"s_add_u32 s57, s57, {FLG+8192}",
    "s_mov_b64 exec, 1","s_waitcnt vmcnt(0)"]+(stamp(6) if os.environ.get('P1') else [])
wr_=["v_cmp_ne_u32 vcc, 0, v45","s_sub_u32 s49, s49, 1","s_cbranch_scc1 L_arr","s_cbranch_vccnz L_arr",f"buffer_load_dword v45, v47, {SR(sD)}, 0 offen sc1","s_waitcnt vmcnt(0)","s_branch L_wr"]
NSH=int(os.environ.get('NSH','224'))
DIRECT=int(os.environ.get('DIRECT','1'))
arr=([f"s_cmp_ge_u32 s2, {NE}","s_cbranch_scc1 L_nd",f"buffer_store_dword v44, v47, {SR(sW)}, s57 offen sc1","L_nd:"] if DIRECT else [])
PL=f"buffer_load_dwordx2 v[12:13], v10, {SR(sW)}, 0 offen sc1"
INIT=init_const()+[f'v_accvgpr_write_b32 a{252+h}, 0' for h in range(4)]+([f"s_cmp_ge_u32 s2, {NE}","s_cbranch_scc1 L_ni"]+init_acc()+["L_ni:"] if EI else [])
LP=int(os.environ.get('LP','999'))
NP=int(os.environ.get('NP','999'))
arr+=["v_mov_b32 v43, s94",f"buffer_atomic_add v43, v47, {SR(sW)}, s48 offen sc0 sc1","s_mov_b64 exec, -1","s_add_u32 s58, s48, 4096"]
arr+=[f"v_and_b32 v10, {NE-1}, v0",f"v_lshlrev_b32 v10, {FSH}, v10",f"v_add_u32 v10, {FLG+8192}, v10","v_mov_b32 v12, 1","v_mov_b32 v13, 1"]+(INIT[:NP]+["s_cmp_lg_u32 s54, 0","s_cbranch_scc1 L_np",PL,"L_np:"]+xshared()+INIT[NP:] if NP<999 else
   (["v_mov_b32 v12, s54","s_and_b32 s50, s2, 3","s_or_b32 s50, s50, s54"]+INIT[:LP]+["s_cmp_lg_u32 s50, 0","s_cbranch_scc1 L_np",PL,"L_np:"]+xshared()+INIT[LP:] if LP<999 else ["v_mov_b32 v12, s54"]+xshared()+INIT))
arr+=["s_mov_b64 exec, 1","s_waitcnt vmcnt(3)",
  "v_add_u32 v43, s94, v43","v_and_b32 v44, 0xffff, v43","v_lshrrev_b32 v45, 16, v43","v_cmp_eq_u32 vcc, 32, v44","v_add_u32 v45, 1, v45","s_and_b64 exec, exec, vcc","s_cbranch_execz L_nl",
  f"buffer_store_dword v45, v47, {SR(sW)}, s58 offen sc1","L_nl:","s_mov_b64 exec, -1"]+(stamp(3) if not os.environ.get('P2') else [])
WARM=int(os.environ.get('WARM','0'))
warm=["s_lshr_b32 s50, s2, 3","s_mul_i32 s50, s50, 1536",f"buffer_load_dwordx4 v[16:19], v3, {SR(sW)}, s50 offen sc1",f"buffer_load_dwordx4 v[20:23], v3, {SR(sW)}, s50 offen offset:512 sc1"]
if WARM==1: arr+=["s_cmp_eq_u32 s54, 0","s_cbranch_scc1 L_nw"]+warm+["L_nw:"]
if WARM==2:
    i=arr.index("s_waitcnt vmcnt(3)"); arr[i]="s_waitcnt vmcnt(5)"; arr[i-1:i-1]=warm
arr+=["s_mov_b32 s49, 0x200000"]+(["s_cmp_eq_u32 s54, 0","s_cbranch_scc1 L_poll1","s_branch L_go"] if NP>=999 and LP>=999 else ["s_branch L_chk"])
SLEEP=int(os.environ.get('SLEEP','6'))
poll=([f"s_sleep {SLEEP}"] if SLEEP else [])+["L_poll1:",PL,"s_sub_u32 s49, s49, 1","s_cbranch_scc1 L_go","s_waitcnt vmcnt(0)",
  "L_chk:","v_and_b32 v12, v12, v13","v_cmp_ne_u32 vcc, 1, v12","s_nop 1","s_cbranch_vccnz L_poll"]
CONSTS=["v_and_b32 v8, 1, v0","v_mul_u32_u24 v8, 0xaaaa, v8",f"v_add_u32 v{IDX}, 0x4444, v8",f"v_mov_b32 v{FV}, 1"]+[f"v_mov_b32 v{ONES+r}, 0x3f803f80" for r in range(4)]
go=(CONSTS if not int(os.environ.get('CG','0')) else [])+["s_waitcnt lgkmcnt(0)","s_barrier"]+stamp(4)
pas=(["s_mov_b32 s77, 0"] if DIAG else [])+["s_mov_b32 s60, s63"]+[kload(0,f) for f in range(6)]+(CONSTS if int(os.environ.get('CG','0')) else [])+[vload(0,c) for c in range(6)]+([f"s_nop 15"]*int(os.environ.get('GAP2','0')))+["s_add_u32 s60, s60, 12288"]+[kload(1,f) for f in range(6)]
pas+=["s_mov_b32 s61, 7","s_waitcnt vmcnt(15)"]
q0=qk(0,0,0); q1=qk(1,0,1); ev=[x for y in expgaps(0,0,0) for x in y]
pas+=(stamp(1) if os.environ.get('P6') else [])+q0[:3]+["s_waitcnt vmcnt(12)"]+(stamp(2) if os.environ.get('P6') else [])+q0[3:]+q1[:3]+(stamp(5) if not (os.environ.get('P1') or os.environ.get('P3')) else ['s_nop 4'])+["s_and_b32 s48, s2, 3"]+ev[0:2]+[q1[3]]+ev[2:4]+[q1[4]]+ev[4:6]+[q1[5]]+ev[6:]+["s_waitcnt vmcnt(6)","s_cbranch_scc1 L_s2_2","s_cmp_eq_u32 s45, 0","s_cbranch_scc0 L_s2_1","s_branch L_s2_0"]
def chk(reg): return [f"v_cmp_nle_f32 vcc, s48, v{reg}","s_or_b64 s[64:65], s[64:65], vcc",f"v_cmp_nge_f32 vcc, s49, v{reg}","s_or_b64 s[64:65], s[64:65], vcc"]
LR=LRCV
epi=(stamp(6) if not os.environ.get('P1') else [])+[f"s_mov_b32 s48, {f32(2.0**-20)}",f"s_mov_b32 s49, {f32(2.0**90)}","s_mov_b64 s[64:65], 0","s_waitcnt lgkmcnt(6)"]
XP=P0
epi+=[f"v_add_u32 v28, {2*REG}, v{XA}",f"v_add_u32 v29, {2*REG}, v3"]
late=[f"ds_read_b128 {R(RB(2)+4*q,4)}, v7 offset:{(12+q)*1024}" for q in range(6)]+[None]*3
late+=[f"ds_read_b32 v{24+w}, v{3 if w<2 else 29} offset:{(w%2)*REG+27648}" for w in range(4)]
late+=[f"ds_read_b128 {R(XP+8*w+4*e,4)}, v{XA if w<2 else 28} offset:{(w%2)*REG+18432+1024*e}" for w in range(4) for e in range(2)]
def lsum(t):
    r=LR+4*t
    return [f"v_accvgpr_read_b32 v{r+2}, {R(LL+12+4*t)}",f"v_accvgpr_read_b32 v{r+3}, {R(LL+13+4*t)}",f"v_add_f32 v{r}, v{r}, v{r+1}",f"v_add_f32 v{r+2}, v{r+2}, v{r+3}",
            f"v_add_f32 v{r+2}, v{r+2}, v{r}",f"v_rcp_f32 v{r+3}, v{r+2}"]+(["s_nop 0",f"v_mul_f32 v{r+3}, {f32(float(os.environ['EPS']))}, v{r+3}"] if os.environ.get('EPS') else [])
epi+=lsum(0)
issued=12; nan=[]
for t in range(3):
    for u in range(3):
        need=6*t+2*u+2
        if t==1: epi.append(f"s_waitcnt lgkmcnt({min(15,issued-need)})")
        o=OK+24*t+8*u; rb=RB(t)+8*u
        epi+=[f"v_pk_add_f32 {R(o+2*i,2)}, {R(o+2*i,2)}, {R(rb+2*i,2)}" for i in range(4)]
        for _ in range(3 if t<1 else 4):
            if late:
                x=late.pop(0)
                if x: epi.append(x); issued+=1
        if t<2 and u==1: epi+=lsum(t+1)
        epi+=[f"v_pk_mul_f32 {R(o+2*i,2)}, {R(o+2*i,2)}, {R(LR+4*t+2,2)} op_sel:[0,1] op_sel_hi:[1,1]" for i in range(4)]
        epi+=[f"v_cvt_pk_bf16_f32 v{o+i}, v{o+2*i}, v{o+2*i+1}" for i in range(4)]
        epi.append(f"buffer_store_dwordx4 {R(o,4)}, v{XO+t}, {SR(sO)}, s47 offen offset:{64*u} {OUTMOD}")
        if os.environ.get('NOST'): epi.pop()
        if (t,u)==(1,2):
            epi+=["s_and_b32 s50, s2, 3","s_cselect_b64 vcc, -1, 0","s_waitcnt lgkmcnt(8)","v_add_f32 v24, v24, v25","v_add_f32 v26, v26, v27","v_add_f32 v24, v24, v26",
                  f"v_mov_b32 v20, {FLAG}","v_mov_b32 v21, 1","v_cndmask_b32 v24, v24, 1.0, vcc"]
            epi+=chk(LR+2)+chk(LR+6)+chk(LR+10)+chk(24)+[f"v_cmp_lt_u32 vcc, 1, v{FV}","s_or_b64 s[64:65], s[64:65], vcc","v_rcp_f32 v26, v24",
                  "s_cmp_eq_u64 s[64:65], 0","s_cbranch_scc1 L_ok","ds_write_b32 v20, v21","L_ok:","s_waitcnt lgkmcnt(0)","s_barrier","ds_read_b32 v21, v20"]
            issued=18; fixed=True
assert not late
epi+=["s_and_b32 s50, s2, 3","s_lshr_b32 s51, s44, 1","s_and_b32 s51, s51, s44","s_or_b32 s50, s50, s51","s_cbranch_scc1 L_nx"]
xe=["s_lshl_b32 s50, s44, 6","s_add_u32 s50, s50, s47"]
xe+=[f"v_pk_add_f32 {R(XP+2*i,2)}, {R(XP+2*i,2)}, {R(XP+8+2*i,2)}" for i in range(4)]
xe+=[f"v_pk_add_f32 {R(XP+16+2*i,2)}, {R(XP+16+2*i,2)}, {R(XP+24+2*i,2)}" for i in range(4)]
xe+=[f"v_pk_add_f32 {R(XP+2*i,2)}, {R(XP+2*i,2)}, {R(XP+16+2*i,2)}" for i in range(4)]
xe+=[f"v_pk_mul_f32 {R(XP+2*i,2)}, {R(XP+2*i,2)}, v[26:27] op_sel_hi:[1,0]" for i in range(4)]
xe+=[f"v_cvt_pk_bf16_f32 v{8+i}, v{XP+2*i}, v{XP+2*i+1}" for i in range(4)]+[f"buffer_store_dwordx4 v[8:11], v{XOUT}, {SR(sO)}, s50 offen","L_nx:"]
epi+=xe
epi+=stamp(7)+(["s_mov_b32 s82, s96"] if os.environ.get('P4') else [])+(["s_getreg_b32 s75, hwreg(HW_REG_XCC_ID)"] if DIAG else [])+stampdump()
ok=["s_waitcnt lgkmcnt(0)","v_readfirstlane_b32 s48, v21","s_nop 3","s_andn2_b32 s48, s48, s62","s_cbranch_scc0 L_done"]
fb=["s_waitcnt vmcnt(0)"]+[f"v_mov_b32 v{MM+4*t}, 0xff800000" for t in range(7)]+["s_mov_b32 s60, s63","s_mov_b32 s61, 16"]
fbl=[kload(0,f) for f in range(6)]+["s_waitcnt vmcnt(0)"]
for t in range(7):
    fbl+=[M16(S0+4*k, KF+4*(3*k+j), XF+12*t+4*j, "0" if j==0 else None) for k in range(2) for j in range(3)]
    fbl+=["s_nop 7"]+[f"v_max3_f32 v{MM+4*t}, v{S0+2*i}, v{S0+2*i+1}, v{MM+4*t}" for i in range(4)]
fbl+=["s_bitcmp1_b32 s61, 0","s_cselect_b32 s48, 24576, 0","s_add_u32 s60, s60, s48","s_add_u32 s60, s60, 12288","s_sub_u32 s61, s61, 1","s_cmp_lg_u32 s61, 0","s_cbranch_scc1 L_fb"]
fb2=[f"ds_write_b32 v6, v{MM+4*t} offset:{1024*t}" for t in range(7)]
fb2+=["v_and_b32 v8, 0x300, v3","v_sub_u32 v9, v6, v8","v_sub_u32 v10, v7, v8","s_waitcnt lgkmcnt(0)","s_barrier"]
for t in range(7):
    tp=(t+3)%6 if t<6 else 6
    for G in range(4): fb2+=[f"ds_read_b32 v{12+G}, v9 offset:{1024*t+256*G}",f"ds_read_b32 v{16+G}, v10 offset:{1024*tp+256*G}"]
    fb2+=["s_waitcnt lgkmcnt(0)","v_max3_f32 v12, v12, v13, v14","v_max3_f32 v12, v12, v15, v16","v_max3_f32 v12, v12, v17, v18","v_max_f32 v12, v12, v19"]
    fb2+=[f"v_sub_f32 v{MM+4*t+i}, 0, v12" for i in range(4)]
fb2+=init_acc()+["s_barrier","s_mov_b32 s62, 1","s_branch L_pass"]


DOC=""";
; ---------------------------------------------------------------------------------------------
; Twins global sub-sampled attention, one fused launch, 256 workgroups x 4 waves (one per SIMD).
;
; Math (c = 96^-0.5 * log2(e)):  xs = bf16(mean7x7(x)),  [k|v] = bf16(xs wkv),
;   K' = bf16(c * k wq^T),  V' = bf16(v wo),  S = x K'^T (base-2 logits),  out = (exp2(S-m) V') / sum(exp2(S-m)).
;   wq and wo are folded into the 1024 keys instead of being applied to the 50176 queries.
;
; Phase 1  workgroup b owns windows 4b..4b+3 (7 rows x 28 pixels).  Waves 0,1 stream x into LDS and pool it with
;          one-hot MFMAs; waves 2,3 load the weights and compute K' / V' for the 4 keys, store them write-through
;          to d_ws in MFMA-fragment order, and signal (flag words in d_ws, cleared by workgroup 254 at the start of
;          every launch; d_debug[0] says "flags are cleared").
; Phase 2  flash-style sweep over 32-key steps.  wave = (query group, key half): 6 query tiles of 16 x 512 keys,
;          fragments straight from L2 into registers, 16x16x32 MFMAs, row sums by a sparse MFMA against ones.
;          The 4 left-over queries of workgroups 4j..4j+3 form one more tile, done by workgroup 4j.
; Phase 3  key halves are merged through LDS, normalised, stored.
;
; Softmax guard: pass 1 uses the stand-in m = 0 (the M registers, fed in as the accumulator of the QK MFMAs).
;   A run-time check decides whether that was safe: every row sum must lie in [2^-20, 2^90] and |V'| < 2^30, so no
;   exp2, product or sum overflowed and nothing that matters underflowed.  Otherwise the workgroup computes the true
;   row maxima (L_fb) and repeats phases 2 and 3 with m = true max.
; ---------------------------------------------------------------------------------------------""".split("\n")
flat=lambda x: [l for y in x for l in y]
B=[body(0),body(1),body(None)]; T=[tail(0),tail(1),tail(None)]
out=[]
HDR=open('standalone__window_attn_twins__vision.s.ref').read().split('\n')
out+=HDR[:10]
out.append(f"; @launch grid=(256,1,1) block=(256,1,1) lds={LDSB}")
out+=DOC
out+=['.amdgcn_target "amdgcn-amd-amdhsa--gfx950"',".text",f".globl {N}",".p2align 8",f".type {N},@function",f"{N}:"]
def E(lines,label=None,align=False):
    if align: out.append(".p2align 6")
    if label: out.append(label+":")
    out.extend(l if l.endswith(':') else "    "+l for l in lines)
E(["; entry: kernel arguments, ids, one load per wave that pulls this kernel's code into L2"]); E(entry); E(['; waves 0,1: x rows -> LDS (workgroups >= 64 let half of their first weight matrix go first, so that the']); E(["; keys needed first are ready first)"]); E(pool0); E(pz); E(pool1); E(['; waves 2 (K path), 3 (V path): weights -> LDS, fragments, two small GEMMs, write-through stores, arrival']); E(wp0,"L_wpath"); E(wp); E(wj); E(kp); E(vp,"L_vp"); E(pj,"L_pj"); E(wr_,"L_wr"); E(arr,"L_arr")
E(['; pooling by MFMA, xs -> LDS, then address set-up, x fragments and accumulator init']); E(pool,"L_pool")
E(['; wave 2 waits for the keys of the first two iterations (workgroups 0..63)']); E(poll,"L_poll"); E(go,"L_go"); E(['; first fragments, pipeline fill, jump into the loop variant (0/1: with the shared tile, 2: without)']); E(pas,"L_pass"); E(flat([[f"L_fv{q}:",f"buffer_load_dword v{FV}, v{FA}, {SR(sW)}, 0 offen sc1",f"s_branch L_fvb{q}"] for q in (0,1,None)]))
for q in range(3):
    E(flat(B[q][:2]),f"L_loop{q}",True); E(flat(B[q][2:]),f"L_s2_{q}"); E([f"s_cbranch_scc1 L_loop{q}"]); E(stamp(3) if os.environ.get('P2') else []); E(T[q])
    if q<2: E(["s_branch L_epi"])
def slow(q): return [f"L_slow{q}:","s_mov_b32 s49, 0x200000"]+(["s_mov_b32 s77, 1"] if DIAG else [])+[f"L_slowp{q}:",f"buffer_load_dword v{FV}, v{FA}, {SR(sW)}, 0 offen sc1","s_sub_u32 s49, s49, 1",f"s_cbranch_scc1 L_back{q}",
    "s_waitcnt vmcnt(0)",f"v_cmp_eq_u32 vcc, 0, v{FV}","s_nop 1",f"s_cbranch_vccnz L_slowp{q}",f"s_branch L_back{q}"]
E(['; merge key halves, normalise, store; safety check and workgroup-wide decision half-way']); E(epi,"L_epi"); E(ok); E(['; rare path: true row maxima, then repeat']); E(fb); E(fbl,"L_fb"); E(fb2); E(slow(0)+slow(1)+slow(None)); E(["s_endpgm","L_end:"],"L_done")
out+=['.section .rodata,"a"',".p2align 6",f".amdhsa_kernel {N}","  .amdhsa_next_free_vgpr 512","  .amdhsa_next_free_sgpr 100","  .amdhsa_accum_offset 256",
 "  .amdhsa_group_segment_fixed_size 0","  .amdhsa_kernarg_size 56","  .amdhsa_user_sgpr_count 2","  .amdhsa_user_sgpr_kernarg_segment_ptr 1",
 "  .amdhsa_system_sgpr_workgroup_id_x 1",".end_amdhsa_kernel"]
open(sys.argv[1],'w').write("\n".join(out)+"\n")
bad=0
bad+=hz.check(entry+pool0+pz+pool1+pool+go+pas,'pool')
bad+=hz.check(entry+wp0+wp+wj+kp+pj+wr_+arr+poll+go+pas,'kpath')
bad+=hz.check(entry+wp0+wp+wj+vp+pj+wr_+arr,'vpath')
for q in range(3):
    bad+=hz.check(pas+flat(B[q][2:])+["s_cbranch x"]+flat(B[q])+["s_cbranch x"]+T[q]+epi+ok+fb+fbl+fbl+fb2+pas,f'main{q}')
print("hazards:",bad)
```

```python
import sys, struct, math, os
import hz
DIAG=int(os.environ.get('DIAG','0'))
OUTMOD=os.environ.get('OUTMOD','')
PMOD=os.environ.get('PMOD','nt')
KVMOD=os.environ.get('KVMOD','sc1')
XMOD=os.environ.get('XMOD','')
OUTSZ=int(os.environ.get('OUTSZ','9633792'))
def R(x,n=1):
    if x>=256: return f"a{x-256}" if n==1 else f"a[{x-256}:{x-256+n-1}]"
    return f"v{x}" if n==1 else f"v[{x}:{x+n-1}]"
def M16(d,a,b,c=None):
    c = R(d,4) if c is None else (c if isinstance(c,str) else R(c,4))
    return f"v_mfma_f32_16x16x32_bf16 {R(d,4)}, {R(a,4)}, {R(b,4)}, {c}"
def f32(x): return "0x%08x"%struct.unpack("<I",struct.pack("<f",x))[0]
def base(ct): return 32*(ct//2)+4*(ct%2)
XB=9633792; WSB=0x10000000; OOB=0x40000000
FLG=0x80000
REG=28672; XI=73728; XS=116736; FLAG=XS+768; LDSB=FLAG+64
assert all((q*2341)>>16==q//28 for q in range(208))
assert all((c*5462)>>16==c//12 for c in range(192))
S0=8; P0=32; P6=80; ONES=84; IDX=88; MM=92; OK=120; VF=192; XO=240; T2=56; LL=256+228
OS=256; OX=256+72; XF=256+96; KF=256+180; ASP=256+228
FV=89; FA=90
XA=1; XL=2; XOUT=243; LRCV=MM
sX=20; sO=24; sW=28; sA=32; sB=36; sD=40
def SR(d): return f"s[{d}:{d+3}]"
def srd(d, lo, size): return [f"s_mov_b32 s{d}, s{lo}", f"s_mov_b32 s{d+1}, s{lo+1}", f"s_mov_b32 s{d+2}, {size}", f"s_mov_b32 s{d+3}, 0x00020000"]
def Oreg(t): return OS+24*t if t<3 else (OK+24*(t-3) if t<6 else OX)
def RB(t): return [P0,VF,VF+24][t]
def Preg(st,t): return P0+8*t+4*st if t<6 else P6
def W1(i): return KF+4*i if i<12 else XF+4*(i-12)
def W2(i): return VF+4*i if i<12 else T2+4*(i-12)
nst=[0]
def stamp(idx):
    if not DIAG: return []
    return ["s_memrealtime s[66:67]","s_memtime s[68:69]","s_waitcnt lgkmcnt(0)",f"s_mov_b32 s{72+2*idx}, s66",f"s_mov_b32 s{73+2*idx}, s68"]
def stampdump():
    if not DIAG: return []
    o=["s_lshl_b32 s66, s2, 2","s_add_u32 s66, s66, s44","s_lshl_b32 s66, s66, 6",f"s_add_u32 s66, s66, {0x100000}","v_mov_b32 v20, 0"]
    for i in range(8):
        o+=[f"v_mov_b32 v22, s{72+2*i}",f"v_mov_b32 v23, s{73+2*i}",f"buffer_store_dwordx2 v[22:23], v20, {SR(sW)}, s66 offen offset:{8*i}","s_nop 1"]
    return o

def kload(stage,f):
    v,o=(3,f*1024) if f<4 else (4,(f-4)*1024)
    return f"buffer_load_dwordx4 {R(KF+24*stage+4*f,4)}, v{v}, {SR(sW)}, s60 offen offset:{o}"
def vload(stage,ct):
    v,o=(4,2048+ct*1024) if ct<2 else (5,(ct-2)*1024)
    return f"buffer_load_dwordx4 {R(VF+24*stage+4*ct,4)}, v{v}, {SR(sW)}, s60 offen offset:{o}"
def slots_of(qg):
    a=[(0,t) for t in range(6)]+([(0,6)] if qg==0 else [])
    b=[(1,t) for t in range(6)]+([(1,6)] if qg==1 else [])
    return a+b
def colorf(N): return (lambda n: (n%13)%2 if n%13<12 else 2) if N==13 else (lambda n: n%2)
def qk(c,st,t):
    S=S0+8*c
    return [M16(S+4*k, KF+24*st+4*(3*k+j), XF+12*t+4*j, MM+4*t if j==0 else None) for k in range(2) for j in range(3)]
def pv(st,t):
    P=Preg(st,t)
    o=[M16(Oreg(t)+4*q, VF+24*st+4*q, P) for q in range(6)]
    if t==6: o.append(M16(LL+4*t, ONES, P))
    elif st==1: o.append(f"v_smfmac_f32_16x16x64_bf16 {R(LL+4*t,4)}, {R(ONES,4)}, {R(P0+8*t,8)}, v{IDX}")
    return o
def expgaps(c,st,t,n=13):
    S=S0+8*c; P=Preg(st,t)
    E=lambda j: f"v_exp_f32 v{S+j}, v{S+j}"
    C=lambda j: f"v_cvt_pk_bf16_f32 v{P+j}, v{S+2*j}, v{S+2*j+1}"
    return [[E(0)],[E(1)],[E(2)],[E(3)],[E(4)],[C(0),C(1)],[E(5)],[E(6)],[E(7)],[],[C(2),C(3)],[],[]][:n]
def body(qg):
    sl=slots_of(qg); out=[]; NS=len(sl); color=colorf(NS)
    for n,(st,t) in enumerate(sl):
        idx=[i for i,(s2,_) in enumerate(sl) if s2==st]
        pos=n-idx[0]; last=len(idx)-1
        mm=qk(color(n),st,t)+pv(*sl[(n-2)%NS])
        g=expgaps(color(n-1),*sl[(n-1)%NS],n=len(mm)); fr=(9,11); e=len(mm)-1
        if pos in (0,1):
            for i in range(2): g[fr[i]].append(kload(1-st,2+2*pos+i))
        if pos==1: g[e].append("s_waitcnt vmcnt(6)")
        if pos in (2,3,4):
            for i in range(2): g[fr[i]].append(vload(1-st,2*(pos-2)+i))
        if pos==last-1:
            g[e if last==5 else 9].append(f"s_add_u32 s60, s60, {36864 if st==0 else 12288}")
            g[e].append("s_waitcnt vmcnt(6)")
        if pos==last and st==0:
            g[5].append(f"v_cmp_eq_u32 vcc, 0, v{FV}"); g[7]+=[f"s_cbranch_vccnz L_slow{qg}",f"L_back{qg}:"]
        if pos==2 and st==1: g[e].append("s_sub_u32 s61, s61, 1")
        if pos==3 and st==1: g[e]+=["s_cmp_eq_u32 s61, 6",f"s_cbranch_scc1 L_fv{qg}",f"L_fvb{qg}:"]
        if pos==last:
            for i in range(2): g[fr[i]].append(kload(st,i))
        if pos==last and st==1: g[10].append("s_cmp_lg_u32 s61, 0")
        if os.environ.get('NOLD'): g=[[x for x in y if not x.startswith('buffer_load')] for y in g]
        o=[f"; slot {n}: stage {st} tile {t}"]
        for i in range(len(mm)): o.append(mm[i]); o+=g[i]
        out.append(o)
    return out
def tail(qg):
    sl=slots_of(qg)
    order=[(0,0),(0,1),(0,2),(0,3),(1,0),(1,1),(1,2)]+([(qg,6)] if qg is not None else [])+[(0,4),(0,5),(1,3),(1,4),(1,5)]
    NS=len(sl); color=colorf(NS)
    seq=[sl[-2],sl[-1]]+order
    col=[color(NS-2),color(NS-1)]+[color(n) for n in range(NS)]
    out=[]; pend=[]
    def states_since(i): return sum((int(l.split()[1])+1 if l.startswith('s_nop') else 1) for l in out[i+1:] if not l.startswith(';'))
    def place(n):
        for _ in range(n):
            if pend and states_since(pend[0][0])>=8:
                out.append(pend.pop(0)[1])
                if pend and 'b128' not in pend[0][1] and states_since(pend[0][0])>=8: out.append(pend.pop(0)[1])
    def wr(t,q):
        if q<6: return f"ds_write_b128 v6, {R(Oreg(t)+4*q,4)} offset:{(6*t+q)*1024 if t<3 else (18+q)*1024}"
        if t==6: return f"ds_write_b32 v6, {R(LL+4*t)} offset:{24576+3072}"
        return f"ds_write_b64 v6, {R(LL+4*t,2)} offset:{24576+1024*t}"
    rd0=[f"ds_read_b64 {R(LRCV+4*t,2)}, v7 offset:{24576+1024*t}" for t in range(3)]+[f"ds_read_b128 {R(RB(0)+4*q,4)}, v7 offset:{q*1024}" for q in range(6)]
    rd1=[f"ds_read_b128 {R(RB(1)+4*q,4)}, v7 offset:{(6+q)*1024}" for q in range(6)]
    rds=[]
    nb=NS
    for k in range(nb+2):
        out.append(f"; tail slot {k}")
        mm=[]
        if k<nb: mm+=[(m,None) for m in qk(col[k+2],*seq[k+2])]
        st,t=seq[k]
        final = k>=2 and (t==6 or (t<3 and st==1))
        mm+=[(m,(t,q) if final else None) for q,m in enumerate(pv(st,t))]
        if k<nb: g=expgaps(col[k+1],*seq[k+1],n=len(mm))
        elif k==nb:
            f=[x for y in expgaps(col[k+1],*seq[k+1]) for x in y]; g=[f[2*i:2*i+2] for i in range(7)]
        else: g=[[] for _ in range(7)]
        fr=(9,11); e=len(mm)-1
        if k in (0,1):
            for i in range(2): g[fr[i]].append(kload(1,2+2*k+i))
        if k==1: g[e].append("s_waitcnt vmcnt(6)")
        if k in (2,3):
            for i in range(3): g[(7,9,11)[i]].append(vload(1,3*(k-2)+i))
        if k==3: g[e].append("s_waitcnt vmcnt(6)")
        if k==6: g[5].append("s_waitcnt vmcnt(0)")
        BS,BG=NS-1,8
        if k==BS: g[BG]+=["s_waitcnt lgkmcnt(0)","s_barrier"]
        for i,(m,w) in enumerate(mm):
            out.append(m)
            if w: pend.append((len(out)-1, wr(*w)))
            out+=g[i]
            if k==BS and i==BG: assert not pend; rds=rd0+rd1
            if k<BS or (k==BS and i<4):
                if i in ((2,5,9,11,12) if k<BS else (0,1,2,3)): place(1)
            elif not g[i]:
                for _ in range(3):
                    if rds: out.append(rds.pop(0))
    assert not pend and not rds, (pend,rds)
    return out

XR=MM
def common_setup():
    o=["v_and_b32 v8, 15, v0","v_lshrrev_b32 v9, 4, v0","v_lshlrev_b32 v9, 4, v9",
       f"v_lshlrev_b32 v{FA}, 7, v8",f"v_add_u32 v{FA}, {FLG+4096}, v{FA}",
       "v_lshlrev_b32 v3, 4, v0","v_add_u32 v4, 4096, v3","v_add_u32 v5, 8192, v3",
       f"s_mul_i32 s48, s44, {REG}","v_add_u32 v6, s48, v3","s_xor_b32 s48, s44, 2",f"s_mul_i32 s48, s48, {REG}","v_add_u32 v7, s48, v3",
       "s_mul_i32 s48, s45, 96","s_mul_i32 s49, s46, 48","s_add_u32 s50, s48, s49",
       "s_sub_u32 s49, 48, s49","s_add_u32 s49, s48, s49",
       "s_mov_b32 s51, 37632",f"s_mov_b32 s52, {-2304}",f"s_mov_b32 s53, {21504-2688}",f"v_add_u32 v13, {XI}, v9"]
    for t in range(6):
        o+=[f"s_add_u32 s48, s{49 if t<3 else 50}, {16*(t%3)}","v_add_u32 v10, s48, v8"]
        o+=["v_mul_u32_u24 v11, 4682, v10","v_mul_u32_u24 v10, 192, v10","v_lshrrev_b32 v12, 17, v11","v_bfe_u32 v11, v11, 16, 1"]
        if 3<=t<6: o+=[f"v_mad_u32_u24 v14, v12, s51, v10",f"v_add_u32 v{XO+t-3}, v14, v9"]
        o+=["v_mad_i32_i24 v10, v12, s52, v10","v_mad_u32_u24 v10, v11, s53, v10",f"v_add_u32 v{XR+t}, v10, v13"]
    o+=["v_lshrrev_b32 v10, 2, v8","v_and_b32 v11, 3, v8","v_mul_u32_u24 v10, 5376, v10","v_mul_u32_u24 v11, 192, v11","v_add3_u32 v10, v10, v11, v9",
        f"v_add_u32 v{XOUT}, {6*43008+24*192}, v10","s_min_u32 s48, s44, 2","s_lshl_b32 s48, s48, 11",f"v_add_u32 v{XA}, s48, v3"]
    return o
assert all((q*4682)>>16==q//14 and (q*4682)>>17==q//28 for q in range(208))
assert all((c*5462)>>16==c//12 for c in range(192))
def xreads(): return [f"ds_read_b128 {R(XF+12*t+4*s,4)}, v{XR+t} offset:{64*s}" for t in range(6) for s in range(3)]
def xshared(): return srd(sX,4,XB)+[f"buffer_load_dwordx4 {R(XF+72+4*s,4)}, v{XOUT}, {SR(sX)}, s47 offen offset:{64*s}" for s in range(3)]
def init_acc():
    return [f"v_accvgpr_write_b32 a{r}, 0" for r in range(96)]+[f"v_accvgpr_write_b32 {R(LL+r)}, 0" for r in range(28)]+[f"v_mov_b32 v{r}, 0" for r in range(OK,OK+72)]
def init_const():
    return [f"v_mov_b32 v{MM+r}, 0" for r in range(28)]
def dma_loop(label, vs, srdreg, step, mod=""):
    return [label+":","s_mov_b32 m0, s49","s_add_u32 s49, s49, 3072"]+\
           [f"buffer_load_dwordx4 v{vs[j]}, {SR(srdreg)}, s48 offen offset:{1024*j} {mod} lds" for j in range(3)]+\
           [f"s_add_u32 s48, s48, {step}","s_cmp_lt_u32 s49, s50",f"s_cbranch_scc1 {label}"]

ZWG=int(os.environ.get('ZWG','254'))
ORD=int(os.environ.get('ORD','1'))
EB=int(os.environ.get('EB','1'))
SPLIT=int(os.environ.get('SPLIT','3'))
FSH=int(os.environ.get('FSH','5'))
NE=int(os.environ.get('NE','64'))
N="standalone__window_attn_twins__vision_kernel"
PF="buffer_load_dwordx4 a[252:255], v9, s[88:91], 0 offen" if int(os.environ.get("PF","1")) else "s_nop 0"
entry=(["s_memrealtime s[96:97]"] if os.environ.get('P4') else [])+["s_cmp_ge_u32 s2, 256","s_cbranch_scc1 L_done",
  "s_load_dwordx8 s[4:11], s[0:1], 0","s_load_dwordx4 s[12:15], s[0:1], 32","s_load_dwordx2 s[16:17], s[0:1], 48",
  "s_getpc_b64 s[88:89]","L_pc:","s_lshr_b32 s47, s2, 3","s_lshl_b32 s48, s47, 12","v_lshl_add_u32 v9, v0, 4, s48","s_mov_b32 s90, L_end-L_pc","s_mov_b32 s91, 0x00020000",
  "v_and_b32 v9, 0x7fff, v9","v_lshrrev_b32 v8, 6, v0","v_and_b32 v0, 63, v0",
  PF,"v_lshlrev_b32 v20, 4, v0","v_readfirstlane_b32 s44, v8",f"v_mov_b32 v18, {OOB}",
  "s_and_b32 s48, s2, 7","s_mul_i32 s47, s47, 301056","s_mul_i32 s48, s48, 5376","s_add_u32 s47, s47, s48",
  f"s_mov_b32 s{sA+3}, 0x00020000",
  "s_cmp_ge_u32 s44, 2","s_cbranch_scc1 L_wpath"]
ids=["s_and_b32 s45, s44, 1","s_lshr_b32 s46, s44, 1","s_mul_i32 s63, s46, 24576","s_mov_b32 s62, 0","v_and_b32 v16, 15, v0","v_lshrrev_b32 v17, 4, v0"]
pool0=["v_cmp_gt_u32 vcc, 40, v0","s_mul_i32 s48, s44, 2688","s_add_u32 s48, s48, s47","s_mul_i32 s49, s44, 21504",f"s_add_u32 s49, s49, {XI}","s_add_u32 s50, s49, 21504",
  "v_cndmask_b32 v21, v18, v20, vcc",f"s_mov_b32 s{sA+2}, {XB}","s_waitcnt lgkmcnt(0)",f"s_mov_b32 s{sA}, s4",f"s_mov_b32 s{sA+1}, s5"]+stamp(0)
pool0+=([f"s_sleep {os.environ['PDELAY']}"] if os.environ.get('PDELAY') else [])+([f"s_setprio {os.environ.get('PRIO','1')}"])+srd(sW,16,WSB)+["s_lshl_b32 s59, s2, 2","s_add_u32 s59, s59, s44",f"s_cmp_lg_u32 s59, {4*ZWG+1}","s_cbranch_scc1 L_nz0"]
pz=["v_lshlrev_b32 v29, 7, v0"]+[f"v_mov_b32 v{32+i}, 0" for i in range(4)]+[f"s_mov_b32 s51, {FLG}",f"buffer_store_dwordx4 v[32:35], v29, {SR(sW)}, s51 offen sc1",
    f"s_mov_b32 s51, {FLG+8192}",f"v_lshlrev_b32 v29, {max(FSH,4)}, v0",f"buffer_store_dwordx4 v[32:35], v29, {SR(sW)}, s51 offen sc1"]
pool1=["L_nz0:"]+([f"s_cmp_lt_u32 s2, {NE}","s_cbranch_scc1 L_xdma","s_barrier"] if ORD else [])+dma_loop("L_xdma",[20,20,21],sA,43008,PMOD)+([f"s_cmp_ge_u32 s2, {NE}","s_cbranch_scc1 L_pool","s_barrier"] if ORD and EB else [])+["s_branch L_pool"]
PX=VF
pool=["s_setprio 0"]+srd(sD,14,256)+[f"s_cmp_lg_u32 s59, {4*ZWG+1}","s_cbranch_scc1 L_nrd","v_mov_b32 v32, 1","v_mov_b32 v33, 0","s_waitcnt vmcnt(21)","s_mov_b64 exec, 1",
     f"buffer_store_dword v32, v33, {SR(sD)}, 0 offen sc1","s_mov_b64 exec, -1","L_nrd:"]+ids+srd(sO,12,OUTSZ)
pool+=["v_and_b32 v21, 1, v16","v_lshlrev_b32 v21, 4, v21","v_mov_b32 v22, 0x3f80","v_lshlrev_b32 v21, v21, v22","v_lshrrev_b32 v22, 1, v16"]
for d in range(8): pool+=[f"v_cmp_eq_u32 vcc, {d}, v22","s_nop 1",f"v_cndmask_b32 v{24+d}, 0, v21, vcc"]
pool+=[f"v_mov_b32 v8, {FLAG}","v_mov_b32 v9, 0","ds_write_b32 v8, v9"]
pool+=["v_lshrrev_b32 v21, 1, v17","v_mul_u32_u24 v21, 192, v21","v_lshl_add_u32 v21, v16, 4, v21","v_and_b32 v22, 1, v17","v_lshl_add_u32 v21, v22, 3, v21",
       "s_mul_i32 s48, s44, 384",f"s_add_u32 s48, s48, {XS}","v_add_u32 v21, s48, v21","v_cmp_gt_u32 s[54:55], 12, v16",
       "s_sub_u32 s50, s50, 21504","v_lshl_add_u32 v39, v16, 4, s50","v_mul_u32_u24 v36, 192, v17","v_add_u32 v36, v36, v39","v_cmp_gt_u32 vcc, 3, v17",
       "v_add_u32 v39, 2688, v39","v_add_u32 v37, 768, v36",f"v_add_u32 v38, {768+1344}, v36","v_cndmask_b32 v37, v39, v37, vcc","v_cndmask_b32 v38, v39, v38, vcc"]
pool+=stamp(1)
PX=OK
def prd(r):
    b=PX+16*r
    return [f"ds_read_b128 {R(b,4)}, v36 offset:{3072*r}",f"ds_read_b128 {R(b+4,4)}, v37 offset:{3072*r}",
            f"ds_read_b128 {R(b+8,4)}, v36 offset:{3072*r+1344}",f"ds_read_b128 {R(b+12,4)}, v38 offset:{3072*r}"]
def pmm(r): return [M16(32, 24+4*(j//2), PX+16*r+4*j, "0" if (r,j)==(0,0) else None) for j in range(4)]
for r in range(7):
    pool+=[f"s_waitcnt vmcnt({3*(6-r)})"]+prd(r)
    if r>=2: pool+=["s_waitcnt lgkmcnt(8)"]+pmm(r-2)
pool+=["s_waitcnt lgkmcnt(4)"]+pmm(5)
m=pmm(6)
for j in range(4): pool+=[f"s_waitcnt lgkmcnt({3-j})",m[j]]
pool+=["s_nop 7"]+[f"v_mul_f32 v{32+i}, {f32(1/49)}, v{32+i}" for i in range(4)]
pool+=["v_cvt_pk_bf16_f32 v32, v32, v33","v_cvt_pk_bf16_f32 v33, v34, v35","s_mov_b64 exec, s[54:55]","ds_write_b64 v21, v[32:33]","s_mov_b64 exec, -1",
       "s_waitcnt lgkmcnt(0)"]+stamp(2)+["s_barrier"]
pool+=common_setup()+xshared()+xreads()+init_const()+init_acc()
pool+=(stamp(3) if not os.environ.get('P2') else [])+["s_branch L_go"]
wp0=["s_sub_u32 s54, s44, 2"]
for j in range(3):
    wp0+=[f"v_add_u32 v19, {64*j}, v0","v_mul_u32_u24 v24, 5462, v19","v_lshlrev_b32 v19, 4, v19","v_lshrrev_b32 v24, 16, v24",
          "v_mul_u32_u24 v24, 192, v24",f"v_add3_u32 v{21+j}, v24, v19, s{[92,93,94][j]}"]
wp0=[f"s_mov_b32 s92, 0","s_mov_b32 s93, -1024","s_mov_b32 s94, -2048"]+wp0
wp0+=["s_mul_i32 s48, s54, 192","s_mul_i32 s49, s54, 36864","s_add_u32 s50, s49, 18432",f"s_mov_b32 s{sA+2}, 36864",
     "s_waitcnt lgkmcnt(0)",f"s_mov_b32 s{sA}, s8",f"s_mov_b32 s{sA+1}, s9"]
TLB=int(os.environ.get('TLB','0'))
tlb=srd(sW,16,WSB)+srd(sD,14,256)+srd(sO,12,OUTSZ)+["v_mov_b32 v25, 0",f"s_mov_b32 s51, {0x70000}","s_mov_b64 exec, 1",f"buffer_load_dword v26, v25, {SR(sW)}, s51 offen sc1",
     f"buffer_load_dword v27, v25, {SR(sD)}, 0 offen offset:128 sc1",f"buffer_load_dword v28, v25, {SR(sO)}, s47 offen","s_add_u32 s51, s47, 290000",f"buffer_load_dword v29, v25, {SR(sO)}, s51 offen","s_mov_b64 exec, -1"]
wp=stamp(0)+(tlb if TLB else [])+([f"s_sleep {os.environ['WDELAY']}"] if os.environ.get('WDELAY') else [])
if ORD:
    wp+=([f"s_cmp_ge_u32 s2, {NE}","s_cbranch_scc1 L_nb1","s_barrier","L_nb1:"] if EB else [])+[f"s_add_u32 s50, s49, {3072*SPLIT}"]+dma_loop("L_w1a",[21,22,23],sA,6144)
    wp+=[f"s_cmp_lt_u32 s2, {NE}","s_cbranch_scc1 L_nb2","s_barrier","L_nb2:",f"s_add_u32 s50, s49, {3072*(6-SPLIT)}"]+dma_loop("L_w1b",[21,22,23],sA,6144)
else: wp+=dma_loop("L_w1dma",[21,22,23],sA,6144)
wp+=["s_cmp_eq_u32 s54, 0",f"s_cselect_b32 s{sB}, s6, s10",f"s_cselect_b32 s{sB+1}, s7, s11",f"s_mov_b32 s{sB+2}, 18432",f"s_mov_b32 s{sB+3}, 0x00020000",
     "s_mov_b32 s48, 0"]
IA=init_acc()
EI=int(os.environ.get('EI','1'))
if EI: wp+=[f"s_cmp_ge_u32 s2, {NE}","s_cbranch_scc1 L_w2u","s_add_u32 s50, s49, 18432"]+dma_loop("L_w2dma",[20,20,20],sB,3072)+["s_branch L_w2e","L_w2u:"]
for i in range(18):
    if i%3==0: wp+=["s_mov_b32 m0, s49","s_add_u32 s49, s49, 3072"]
    wp.append(f"buffer_load_dwordx4 v20, {SR(sB)}, s48 offen offset:{1024*(i%3)} lds")
    if i%3==2: wp.append("s_add_u32 s48, s48, 3072")
    wp+=IA[len(IA)*i//17:len(IA)*(i+1)//17] if i<17 else []
wj=(["L_w2e:"] if EI else [])+ids+(srd(sW,16,WSB)+srd(sD,14,256) if not TLB else [])
wj+=["s_mul_i32 s55, s54, 36864","v_lshrrev_b32 v22, 2, v16","v_and_b32 v23, 3, v16",
     "v_lshl_add_u32 v44, v17, 3, v22","v_mul_u32_u24 v44, 192, v44","v_lshl_add_u32 v44, v23, 4, v44","v_add_u32 v44, s55, v44",
     "v_lshl_add_u32 v47, v22, 3, v23","v_mul_u32_u24 v47, 192, v47","v_lshl_add_u32 v47, v17, 4, v47",
     "v_mul_u32_u24 v45, 192, v23","v_lshl_add_u32 v45, v17, 4, v45",f"v_add_u32 v45, {XS}, v45",
     "v_cmp_gt_u32 vcc, 4, v16","v_cmp_gt_u32 s[52:53], 16, v0","s_cmp_eq_u32 s54, 0","s_cselect_b64 vcc, vcc, s[52:53]","s_nop 1","v_cndmask_b32 v46, v18, v20, vcc",
     "s_lshr_b32 s56, s2, 3","s_mul_i32 s56, s56, 12288","s_bfe_u32 s57, s2, 0x10002","s_and_b32 s58, s2, 3"]
wj+=stamp(1)+["s_waitcnt vmcnt(18)"]
for nt in range(6):
    for s_ in range(3):
        for h in range(2): wj.append(f"ds_read_b64_tr_b16 {R(W1(3*nt+s_)+2*h,2)}, v44 offset:{(32*s_+4*h)*192+base(nt)*2}")
D1=8; XSF=XF+24; KB=32
wj+=["s_waitcnt lgkmcnt(0)"]+stamp(2)+["s_cmp_eq_u32 s54, 0","s_cbranch_scc0 L_vp"]
def step1(rd):
    o=["s_barrier"]+[f"ds_read_b128 {R(XSF+4*s_,4)}, v45 offset:{64*s_}" for s_ in range(3)]+["s_waitcnt vmcnt(0)","s_waitcnt lgkmcnt(0)"]+(stamp(1) if os.environ.get('P1') else [])
    per=len(rd)//18
    for nt in range(6):
        for s_ in range(3):
            o.append(M16(D1+4*nt, W1(3*nt+s_), XSF+4*s_, "0" if s_==0 else None))
            o+=rd[per*(3*nt+s_):per*(3*nt+s_+1)]
    for u in range(3):
        if u==2: o.append("s_nop 1")
        for e in range(2):
            for z in range(2): o.append(f"v_cvt_pk_bf16_f32 v{KB+4*u+2*e+z}, v{D1+8*u+4*e+2*z}, v{D1+8*u+4*e+2*z+1}")
    return o+["s_waitcnt lgkmcnt(0)","v_mov_b32 v47, 0",f"buffer_load_dword v45, v47, {SR(sD)}, 0 offen sc1"]
wq=[f"ds_read_b128 {R(W2(3*ct+u),4)}, v47 offset:{18432+base(ct)*192+64*u}" for ct in range(6) for u in range(3)]
wtr=[f"ds_read_b64_tr_b16 {R(W2(3*ct+u)+2*h,2)}, v44 offset:{18432+(32*u+4*h)*192+base(ct)*2}" for ct in range(6) for u in range(3) for h in range(2)]
sc=f32(96**-0.5*math.log2(math.e))
kp=step1(wq)+[M16(D1+4*ct, W2(3*ct+u), KB+4*u, "0" if u==0 else None) for ct in range(6) for u in range(3)]
kp+=[f"s_mov_b32 s50, {sc}",f"s_mov_b32 s51, {sc}","s_mul_i32 s57, s57, 3072","s_add_u32 s56, s56, s57","s_lshl_b32 s58, s58, 6","s_add_u32 s56, s56, s58"]
for u in range(3):
    if u==2: kp.append("s_nop 1")
    kp+=[f"v_pk_mul_f32 {R(D1+8*u+2*i,2)}, {R(D1+8*u+2*i,2)}, s[50:51]" for i in range(4)]
    kp+=[f"v_cvt_pk_bf16_f32 v{KB+4*u+i}, v{D1+8*u+2*i}, v{D1+8*u+2*i+1}" for i in range(4)]
    kp.append(f"buffer_store_dwordx4 {R(KB+4*u,4)}, v46, {SR(sW)}, s56 offen offset:{1024*u} {KVMOD}")
kp+=["s_mov_b32 s94, 1","s_branch L_pj"]
vp=step1(wtr)+[M16(D1+4*ct, KB+4*u, W2(3*ct+u), "0" if u==0 else None) for ct in range(6) for u in range(3)]
vp+=["s_lshl_b32 s57, s57, 3","s_add_u32 s56, s56, s57","s_lshl_b32 s58, s58, 8","s_add_u32 s56, s56, s58","s_add_u32 s56, s56, 6144","s_add_u32 s57, s56, 4096"]
for ct in range(6):
    vp+=[f"v_cvt_pk_bf16_f32 v{D1+4*ct}, v{D1+4*ct}, v{D1+4*ct+1}",f"v_cvt_pk_bf16_f32 v{D1+4*ct+1}, v{D1+4*ct+2}, v{D1+4*ct+3}",
         f"buffer_store_dwordx2 {R(D1+4*ct,2)}, v46, {SR(sW)}, s{56 if ct<4 else 57} offen offset:{1024*(ct%4)} {KVMOD}"]
if os.environ.get('MOCK'):
    keep=lambda L: [x for x in L if not (x.startswith('v_mfma') or x.startswith('ds_read_b64_tr') or (x.startswith('ds_read_b128') and 'v47' in x) or x=="s_waitcnt vmcnt(0)" or x.startswith('v_pk_mul') or x.startswith('v_cvt'))]
    kp=keep(kp); vp=keep(vp); wj=[x for x in keep(wj) if x!="s_waitcnt vmcnt(18)"]
    wp=stamp(0)
vp+=["s_mov_b32 s50, 0x7fff7fff"]+[f"v_and_b32 v{KB+2*ct+h}, s50, v{D1+4*ct+h}" for ct in range(6) for h in range(2)]
vp+=[f"v_pk_max_u16 v{KB+i}, v{KB+i}, v{KB+6+i}" for i in range(6)]+[f"v_pk_max_u16 v{KB+i}, v{KB+i}, v{KB+3+i}" for i in range(3)]
vp+=[f"v_pk_max_u16 v{KB}, v{KB}, v{KB+1}",f"v_pk_max_u16 v{KB}, v{KB}, v{KB+2}",f"v_lshrrev_b32 v{KB+1}, 16, v{KB}",f"v_and_b32 v{KB}, 0xffff, v{KB}",f"v_max_u32 v{KB}, v{KB}, v{KB+1}",
     f"v_cmp_lt_u32 vcc, {(127+30)<<7}, v{KB}","s_mov_b32 s94, 1","s_cmp_lg_u64 vcc, 0","s_cselect_b32 s94, 0x10001, s94"]
PRE=srd(sO,12,OUTSZ)+common_setup()+xreads()
EARLY=int(os.environ.get('EARLY','1'))
pj=(stamp(5) if os.environ.get('P1') else [])+(PRE if EARLY else [])+["s_lshr_b32 s48, s2, 4","s_lshl_b32 s48, s48, 7",f"s_add_u32 s48, s48, {FLG}","v_mov_b32 v44, 1","s_mov_b32 s49, 0x200000",
    f"s_lshl_b32 s57, s2, {FSH-2}","s_add_u32 s57, s57, s54","s_lshl_b32 s57, s57, 2",f"s_add_u32 s57, s57, {FLG+8192}",
    "s_mov_b64 exec, 1","s_waitcnt vmcnt(0)"]+(stamp(6) if os.environ.get('P1') else [])
wr_=["v_cmp_ne_u32 vcc, 0, v45","s_sub_u32 s49, s49, 1","s_cbranch_scc1 L_arr","s_cbranch_vccnz L_arr",f"buffer_load_dword v45, v47, {SR(sD)}, 0 offen sc1","s_waitcnt vmcnt(0)","s_branch L_wr"]
NSH=int(os.environ.get('NSH','224'))
DIRECT=int(os.environ.get('DIRECT','1'))
arr=([f"s_cmp_ge_u32 s2, {NE}","s_cbranch_scc1 L_nd",f"buffer_store_dword v44, v47, {SR(sW)}, s57 offen sc1","L_nd:"] if DIRECT else [])
PL=f"buffer_load_dwordx2 v[12:13], v10, {SR(sW)}, 0 offen sc1"
INIT=init_const()+[f'v_accvgpr_write_b32 a{252+h}, 0' for h in range(4)]+([f"s_cmp_ge_u32 s2, {NE}","s_cbranch_scc1 L_ni"]+init_acc()+["L_ni:"] if EI else [])
LP=int(os.environ.get('LP','999'))
NP=int(os.environ.get('NP','999'))
arr+=["v_mov_b32 v43, s94",f"buffer_atomic_add v43, v47, {SR(sW)}, s48 offen sc0 sc1","s_mov_b64 exec, -1","s_add_u32 s58, s48, 4096"]
arr+=[f"v_and_b32 v10, {NE-1}, v0",f"v_lshlrev_b32 v10, {FSH}, v10",f"v_add_u32 v10, {FLG+8192}, v10","v_mov_b32 v12, 1","v_mov_b32 v13, 1"]+(INIT[:NP]+["s_cmp_lg_u32 s54, 0","s_cbranch_scc1 L_np",PL,"L_np:"]+xshared()+INIT[NP:] if NP<999 else
   (["v_mov_b32 v12, s54","s_and_b32 s50, s2, 3","s_or_b32 s50, s50, s54"]+INIT[:LP]+["s_cmp_lg_u32 s50, 0","s_cbranch_scc1 L_np",PL,"L_np:"]+xshared()+INIT[LP:] if LP<999 else ["v_mov_b32 v12, s54"]+xshared()+INIT))
arr+=["s_mov_b64 exec, 1","s_waitcnt vmcnt(3)",
  "v_add_u32 v43, s94, v43","v_and_b32 v44, 0xffff, v43","v_lshrrev_b32 v45, 16, v43","v_cmp_eq_u32 vcc, 32, v44","v_add_u32 v45, 1, v45","s_and_b64 exec, exec, vcc","s_cbranch_execz L_nl",
  f"buffer_store_dword v45, v47, {SR(sW)}, s58 offen sc1","L_nl:","s_mov_b64 exec, -1"]+(stamp(3) if not os.environ.get('P2') else [])
WARM=int(os.environ.get('WARM','1'))
warm=["s_lshr_b32 s50, s2, 3","s_mul_i32 s50, s50, 1536",f"buffer_load_dwordx4 v[16:19], v3, {SR(sW)}, s50 offen sc1",f"buffer_load_dwordx4 v[20:23], v3, {SR(sW)}, s50 offen offset:512 sc1"]
if WARM==1: arr+=["; wave 3: pull a slice of the first key steps into this die's L2 (values unused; L1 bypassed)","s_cmp_eq_u32 s54, 0","s_cbranch_scc1 L_nw"]+warm+["L_nw:"]
if WARM==2:
    i=arr.index("s_waitcnt vmcnt(3)"); arr[i]="s_waitcnt vmcnt(5)"; arr[i-1:i-1]=warm
arr+=["s_mov_b32 s49, 0x200000"]+(["s_cmp_eq_u32 s54, 0","s_cbranch_scc1 L_poll1","s_branch L_go"] if NP>=999 and LP>=999 else ["s_branch L_chk"])
SLEEP=int(os.environ.get('SLEEP','6'))
poll=([f"s_sleep {SLEEP}"] if SLEEP else [])+["L_poll1:",PL,"s_sub_u32 s49, s49, 1","s_cbranch_scc1 L_go","s_waitcnt vmcnt(0)",
  "L_chk:","v_and_b32 v12, v12, v13","v_cmp_ne_u32 vcc, 1, v12","s_nop 1","s_cbranch_vccnz L_poll"]
CONSTS=["v_and_b32 v8, 1, v0","v_mul_u32_u24 v8, 0xaaaa, v8",f"v_add_u32 v{IDX}, 0x4444, v8",f"v_mov_b32 v{FV}, 1"]+[f"v_mov_b32 v{ONES+r}, 0x3f803f80" for r in range(4)]
go=(CONSTS if not int(os.environ.get('CG','0')) else [])+["s_waitcnt lgkmcnt(0)","s_barrier"]+stamp(4)
PRO=int(os.environ.get('PRO','2'))
q0=qk(0,0,0); q1=qk(1,0,1); ev=[x for y in expgaps(0,0,0) for x in y]
K1=[kload(1,f) for f in range(6)]
pas=["s_mov_b32 s60, s63"]+[kload(0,f) for f in range(6)]+[vload(0,c) for c in range(6)]+["s_add_u32 s60, s60, 12288","s_mov_b32 s61, 7"]
if PRO==1:
    pas+=["s_waitcnt vmcnt(9)"]+q0[:3]+["s_waitcnt vmcnt(6)"]
    for i in range(3): pas+=[q0[3+i],K1[i]]
    for i in range(3): pas+=[q1[i],K1[3+i]]
elif PRO==2:
    pas+=["s_waitcnt vmcnt(11)",q0[0],"s_waitcnt vmcnt(10)",q0[1],"s_waitcnt vmcnt(9)",q0[2],q1[0],q1[1],q1[2],"s_waitcnt vmcnt(6)"]
    for i in range(3): pas+=[q0[3+i],K1[2*i],K1[2*i+1]]
pas+=stamp(5)+["s_and_b32 s48, s2, 3"]+(["s_nop 0"] if PRO==2 else [])+ev[0:2]+[q1[3]]+ev[2:4]+[q1[4]]+(["s_nop 1"] if PRO==2 else [])+ev[4:6]+[q1[5]]+ev[6:]+["s_waitcnt vmcnt(6)","s_cbranch_scc1 L_s2_2","s_cmp_eq_u32 s45, 0","s_cbranch_scc0 L_s2_1","s_branch L_s2_0"]
def chk(reg): return [f"v_cmp_nle_f32 vcc, s48, v{reg}","s_or_b64 s[64:65], s[64:65], vcc",f"v_cmp_nge_f32 vcc, s49, v{reg}","s_or_b64 s[64:65], s[64:65], vcc"]
LR=LRCV
epi=(stamp(6) if not os.environ.get('P1') else [])+[f"s_mov_b32 s48, {f32(2.0**-20)}",f"s_mov_b32 s49, {f32(2.0**90)}","s_mov_b64 s[64:65], 0","s_waitcnt lgkmcnt(6)"]
XP=P0
epi+=[f"v_add_u32 v28, {2*REG}, v{XA}",f"v_add_u32 v29, {2*REG}, v3"]
late=[f"ds_read_b128 {R(RB(2)+4*q,4)}, v7 offset:{(12+q)*1024}" for q in range(6)]+[None]*3
late+=[f"ds_read_b32 v{24+w}, v{3 if w<2 else 29} offset:{(w%2)*REG+27648}" for w in range(4)]
late+=[f"ds_read_b128 {R(XP+8*w+4*e,4)}, v{XA if w<2 else 28} offset:{(w%2)*REG+18432+1024*e}" for w in range(4) for e in range(2)]
def lsum(t):
    r=LR+4*t
    return [f"v_accvgpr_read_b32 v{r+2}, {R(LL+12+4*t)}",f"v_accvgpr_read_b32 v{r+3}, {R(LL+13+4*t)}",f"v_add_f32 v{r}, v{r}, v{r+1}",f"v_add_f32 v{r+2}, v{r+2}, v{r+3}",
            f"v_add_f32 v{r+2}, v{r+2}, v{r}",f"v_rcp_f32 v{r+3}, v{r+2}"]+(["s_nop 0",f"v_mul_f32 v{r+3}, {f32(float(os.environ['EPS']))}, v{r+3}"] if os.environ.get('EPS') else [])
epi+=lsum(0)
issued=12; nan=[]
for t in range(3):
    for u in range(3):
        need=6*t+2*u+2
        if t==1: epi.append(f"s_waitcnt lgkmcnt({min(15,issued-need)})")
        o=OK+24*t+8*u; rb=RB(t)+8*u
        epi+=[f"v_pk_add_f32 {R(o+2*i,2)}, {R(o+2*i,2)}, {R(rb+2*i,2)}" for i in range(4)]
        for _ in range(3 if t<1 else 4):
            if late:
                x=late.pop(0)
                if x: epi.append(x); issued+=1
        if t<2 and u==1: epi+=lsum(t+1)
        epi+=[f"v_pk_mul_f32 {R(o+2*i,2)}, {R(o+2*i,2)}, {R(LR+4*t+2,2)} op_sel:[0,1] op_sel_hi:[1,1]" for i in range(4)]
        epi+=[f"v_cvt_pk_bf16_f32 v{o+i}, v{o+2*i}, v{o+2*i+1}" for i in range(4)]
        epi.append(f"buffer_store_dwordx4 {R(o,4)}, v{XO+t}, {SR(sO)}, s47 offen offset:{64*u} {OUTMOD}")
        if os.environ.get('NOST'): epi.pop()
        if (t,u)==(1,2):
            epi+=["s_and_b32 s50, s2, 3","s_cselect_b64 vcc, -1, 0","s_waitcnt lgkmcnt(8)","v_add_f32 v24, v24, v25","v_add_f32 v26, v26, v27","v_add_f32 v24, v24, v26",
                  f"v_mov_b32 v20, {FLAG}","v_mov_b32 v21, 1","v_cndmask_b32 v24, v24, 1.0, vcc"]
            epi+=chk(LR+2)+chk(LR+6)+chk(LR+10)+chk(24)+[f"v_cmp_lt_u32 vcc, 1, v{FV}","s_or_b64 s[64:65], s[64:65], vcc","v_rcp_f32 v26, v24",
                  "s_cmp_eq_u64 s[64:65], 0","s_cbranch_scc1 L_ok","ds_write_b32 v20, v21","L_ok:","s_waitcnt lgkmcnt(0)","s_barrier","ds_read_b32 v21, v20"]
            issued=18; fixed=True
assert not late
epi+=["s_and_b32 s50, s2, 3","s_lshr_b32 s51, s44, 1","s_and_b32 s51, s51, s44","s_or_b32 s50, s50, s51","s_cbranch_scc1 L_nx"]
xe=["s_lshl_b32 s50, s44, 6","s_add_u32 s50, s50, s47"]
xe+=[f"v_pk_add_f32 {R(XP+2*i,2)}, {R(XP+2*i,2)}, {R(XP+8+2*i,2)}" for i in range(4)]
xe+=[f"v_pk_add_f32 {R(XP+16+2*i,2)}, {R(XP+16+2*i,2)}, {R(XP+24+2*i,2)}" for i in range(4)]
xe+=[f"v_pk_add_f32 {R(XP+2*i,2)}, {R(XP+2*i,2)}, {R(XP+16+2*i,2)}" for i in range(4)]
xe+=[f"v_pk_mul_f32 {R(XP+2*i,2)}, {R(XP+2*i,2)}, v[26:27] op_sel_hi:[1,0]" for i in range(4)]
xe+=[f"v_cvt_pk_bf16_f32 v{8+i}, v{XP+2*i}, v{XP+2*i+1}" for i in range(4)]+[f"buffer_store_dwordx4 v[8:11], v{XOUT}, {SR(sO)}, s50 offen","L_nx:"]
epi+=xe
epi+=stamp(7)+(["s_mov_b32 s82, s96"] if os.environ.get('P4') else [])+(["s_getreg_b32 s75, hwreg(HW_REG_XCC_ID)"] if DIAG else [])+stampdump()
ok=["s_waitcnt lgkmcnt(0)","v_readfirstlane_b32 s48, v21","s_nop 3","s_andn2_b32 s48, s48, s62","s_cbranch_scc0 L_done"]
fb=["s_waitcnt vmcnt(0)"]+[f"v_mov_b32 v{MM+4*t}, 0xff800000" for t in range(7)]+["s_mov_b32 s60, s63","s_mov_b32 s61, 16"]
fbl=[kload(0,f) for f in range(6)]+["s_waitcnt vmcnt(0)"]
for t in range(7):
    fbl+=[M16(S0+4*k, KF+4*(3*k+j), XF+12*t+4*j, "0" if j==0 else None) for k in range(2) for j in range(3)]
    fbl+=["s_nop 7"]+[f"v_max3_f32 v{MM+4*t}, v{S0+2*i}, v{S0+2*i+1}, v{MM+4*t}" for i in range(4)]
fbl+=["s_bitcmp1_b32 s61, 0","s_cselect_b32 s48, 24576, 0","s_add_u32 s60, s60, s48","s_add_u32 s60, s60, 12288","s_sub_u32 s61, s61, 1","s_cmp_lg_u32 s61, 0","s_cbranch_scc1 L_fb"]
fb2=[f"ds_write_b32 v6, v{MM+4*t} offset:{1024*t}" for t in range(7)]
fb2+=["v_and_b32 v8, 0x300, v3","v_sub_u32 v9, v6, v8","v_sub_u32 v10, v7, v8","s_waitcnt lgkmcnt(0)","s_barrier"]
for t in range(7):
    tp=(t+3)%6 if t<6 else 6
    for G in range(4): fb2+=[f"ds_read_b32 v{12+G}, v9 offset:{1024*t+256*G}",f"ds_read_b32 v{16+G}, v10 offset:{1024*tp+256*G}"]
    fb2+=["s_waitcnt lgkmcnt(0)","v_max3_f32 v12, v12, v13, v14","v_max3_f32 v12, v12, v15, v16","v_max3_f32 v12, v12, v17, v18","v_max_f32 v12, v12, v19"]
    fb2+=[f"v_sub_f32 v{MM+4*t+i}, 0, v12" for i in range(4)]
fb2+=init_acc()+["s_barrier","s_mov_b32 s62, 1","s_branch L_pass"]


DOC=""";
; ---------------------------------------------------------------------------------------------
; Twins global sub-sampled attention, one fused launch, 256 workgroups x 4 waves (one per SIMD).
;
; Math (c = 96^-0.5 * log2(e)):  xs = bf16(mean7x7(x)),  [k|v] = bf16(xs wkv),
;   K' = bf16(c * k wq^T),  V' = bf16(v wo),  S = x K'^T (base-2 logits),  out = (exp2(S-m) V') / sum(exp2(S-m)).
;   wq and wo are folded into the 1024 keys instead of being applied to the 50176 queries.
;
; Phase 1  workgroup b owns windows 4b..4b+3 (7 rows x 28 pixels).  Waves 0,1 stream x into LDS and pool it with
;          one-hot MFMAs; waves 2,3 load the weights and compute K' / V' for the 4 keys, store them write-through
;          to d_ws in MFMA-fragment order, and signal (flag words in d_ws, cleared by workgroup 254 at the start of
;          every launch; d_debug[0] says "flags are cleared").
; Phase 2  flash-style sweep over 32-key steps.  wave = (query group, key half): 6 query tiles of 16 x 512 keys,
;          fragments straight from L2 into registers, 16x16x32 MFMAs, row sums by a sparse MFMA against ones.
;          The 4 left-over queries of workgroups 4j..4j+3 form one more tile, done by workgroup 4j.
; Phase 3  key halves are merged through LDS, normalised, stored.
;
; Softmax guard: pass 1 uses the stand-in m = 0 (the M registers, fed in as the accumulator of the QK MFMAs).
;   A run-time check decides whether that was safe: every row sum must lie in [2^-20, 2^90] and |V'| < 2^30, so no
;   exp2, product or sum overflowed and nothing that matters underflowed.  Otherwise the workgroup computes the true
;   row maxima (L_fb) and repeats phases 2 and 3 with m = true max.
; ---------------------------------------------------------------------------------------------""".split("\n")
flat=lambda x: [l for y in x for l in y]
B=[body(0),body(1),body(None)]; T=[tail(0),tail(1),tail(None)]
out=[]
HDR=open('standalone__window_attn_twins__vision.s.ref').read().split('\n')
out+=HDR[:10]
out.append(f"; @launch grid=(256,1,1) block=(256,1,1) lds={LDSB}")
out+=DOC
out+=['.amdgcn_target "amdgcn-amd-amdhsa--gfx950"',".text",f".globl {N}",".p2align 8",f".type {N},@function",f"{N}:"]
def E(lines,label=None,align=False):
    if align: out.append(".p2align 6")
    if label: out.append(label+":")
    out.extend(l if l.endswith(':') else "    "+l for l in lines)
E(["; entry: kernel arguments, ids, one load per wave that pulls this kernel's code into L2"]); E(entry); E(['; waves 0,1: x rows -> LDS (workgroups >= 64 let half of their first weight matrix go first, so that the']); E(["; keys needed first are ready first)"]); E(pool0); E(pz); E(pool1); E(['; waves 2 (K path), 3 (V path): weights -> LDS, fragments, two small GEMMs, write-through stores, arrival']); E(wp0,"L_wpath"); E(wp); E(wj); E(kp); E(vp,"L_vp"); E(pj,"L_pj"); E(wr_,"L_wr"); E(arr,"L_arr")
E(['; pooling by MFMA, xs -> LDS, then address set-up, x fragments and accumulator init']); E(pool,"L_pool")
E(['; wave 2 waits for the keys of the first two iterations (workgroups 0..63)']); E(poll,"L_poll"); E(go,"L_go"); E(['; first fragments, pipeline fill, jump into the loop variant (0/1: with the shared tile, 2: without)']); E(pas,"L_pass"); E(flat([[f"L_fv{q}:",f"buffer_load_dword v{FV}, v{FA}, {SR(sW)}, 0 offen sc1",f"s_branch L_fvb{q}"] for q in (0,1,None)]))
for q in range(3):
    E(flat(B[q][:2]),f"L_loop{q}",True); E(flat(B[q][2:]),f"L_s2_{q}"); E([f"s_cbranch_scc1 L_loop{q}"]); E(stamp(3) if os.environ.get('P2') else []); E(T[q])
    if q<2: E(["s_branch L_epi"])
def slow(q): return [f"L_slow{q}:","s_mov_b32 s49, 0x200000"]+(["s_mov_b32 s77, 1"] if DIAG else [])+[f"L_slowp{q}:",f"buffer_load_dword v{FV}, v{FA}, {SR(sW)}, 0 offen sc1","s_sub_u32 s49, s49, 1",f"s_cbranch_scc1 L_back{q}",
    "s_waitcnt vmcnt(0)",f"v_cmp_eq_u32 vcc, 0, v{FV}","s_nop 1",f"s_cbranch_vccnz L_slowp{q}",f"s_branch L_back{q}"]
E(['; merge key halves, normalise, store; safety check and workgroup-wide decision half-way']); E(epi,"L_epi"); E(ok); E(['; rare path: true row maxima, then repeat']); E(fb); E(fbl,"L_fb"); E(fb2); E(slow(0)+slow(1)+slow(None)); E(["s_endpgm","L_end:"],"L_done")
out+=['.section .rodata,"a"',".p2align 6",f".amdhsa_kernel {N}","  .amdhsa_next_free_vgpr 512","  .amdhsa_next_free_sgpr 100","  .amdhsa_accum_offset 256",
 "  .amdhsa_group_segment_fixed_size 0","  .amdhsa_kernarg_size 56","  .amdhsa_user_sgpr_count 2","  .amdhsa_user_sgpr_kernarg_segment_ptr 1",
 "  .amdhsa_system_sgpr_workgroup_id_x 1",".end_amdhsa_kernel"]
open(sys.argv[1],'w').write("\n".join(out)+"\n")
bad=0
bad+=hz.check(entry+pool0+pz+pool1+pool+go+pas,'pool')
bad+=hz.check(entry+wp0+wp+wj+kp+pj+wr_+arr+poll+go+pas,'kpath')
bad+=hz.check(entry+wp0+wp+wj+vp+pj+wr_+arr,'vpath')
for q in range(3):
    bad+=hz.check(pas+flat(B[q][2:])+["s_cbranch x"]+flat(B[q])+["s_cbranch x"]+T[q]+epi+ok+fb+fbl+fbl+fb2+pas,f'main{q}')
print("hazards:",bad)
```

```python
import sys, struct, math, os
import hz
DIAG=int(os.environ.get('DIAG','0'))
OUTMOD=os.environ.get('OUTMOD','sc1 nt')
PMOD=os.environ.get('PMOD','nt')
KVMOD=os.environ.get('KVMOD','sc1')
XMOD=os.environ.get('XMOD','')
OUTSZ=int(os.environ.get('OUTSZ','9633792'))
def R(x,n=1):
    if x>=256: return f"a{x-256}" if n==1 else f"a[{x-256}:{x-256+n-1}]"
    return f"v{x}" if n==1 else f"v[{x}:{x+n-1}]"
def M16(d,a,b,c=None):
    c = R(d,4) if c is None else (c if isinstance(c,str) else R(c,4))
    return f"v_mfma_f32_16x16x32_bf16 {R(d,4)}, {R(a,4)}, {R(b,4)}, {c}"
def f32(x): return "0x%08x"%struct.unpack("<I",struct.pack("<f",x))[0]
def base(ct): return 32*(ct//2)+4*(ct%2)
XB=9633792; WSB=0x10000000; OOB=0x40000000
FLG=0x80000
REG=28672; XI=73728; XS=116736; FLAG=XS+768; LDSB=FLAG+64
assert all((q*2341)>>16==q//28 for q in range(208))
assert all((c*5462)>>16==c//12 for c in range(192))
S0=8; P0=32; P6=80; ONES=84; IDX=88; MM=92; OK=120; VF=192; XO=240; T2=56; LL=256+228
OS=256; OX=256+72; XF=256+96; KF=256+180; ASP=256+228
FV=89; FA=90
XA=1; XL=2; XOUT=243; LRCV=MM
sX=20; sO=24; sW=28; sA=32; sB=36; sD=40
def SR(d): return f"s[{d}:{d+3}]"
def srd(d, lo, size): return [f"s_mov_b32 s{d}, s{lo}", f"s_mov_b32 s{d+1}, s{lo+1}", f"s_mov_b32 s{d+2}, {size}", f"s_mov_b32 s{d+3}, 0x00020000"]
def Oreg(t): return OS+24*t if t<3 else (OK+24*(t-3) if t<6 else OX)
def RB(t): return [P0,VF,VF+24][t]
def Preg(st,t): return P0+8*t+4*st if t<6 else P6
def W1(i): return KF+4*i if i<12 else XF+4*(i-12)
def W2(i): return VF+4*i if i<12 else T2+4*(i-12)
nst=[0]
def stamp(idx):
    if not DIAG: return []
    return ["s_memrealtime s[66:67]","s_memtime s[68:69]","s_waitcnt lgkmcnt(0)",f"s_mov_b32 s{72+2*idx}, s66",f"s_mov_b32 s{73+2*idx}, s68"]
def stampdump():
    if not DIAG: return []
    o=["s_lshl_b32 s66, s2, 2","s_add_u32 s66, s66, s44","s_lshl_b32 s66, s66, 6",f"s_add_u32 s66, s66, {0x100000}","v_mov_b32 v20, 0"]
    for i in range(8):
        o+=[f"v_mov_b32 v22, s{72+2*i}",f"v_mov_b32 v23, s{73+2*i}",f"buffer_store_dwordx2 v[22:23], v20, {SR(sW)}, s66 offen offset:{8*i}","s_nop 1"]
    return o

def kload(stage,f):
    v,o=(3,f*1024) if f<4 else (4,(f-4)*1024)
    return f"buffer_load_dwordx4 {R(KF+24*stage+4*f,4)}, v{v}, {SR(sW)}, s60 offen offset:{o}"
def vload(stage,ct):
    v,o=(4,2048+ct*1024) if ct<2 else (5,(ct-2)*1024)
    return f"buffer_load_dwordx4 {R(VF+24*stage+4*ct,4)}, v{v}, {SR(sW)}, s60 offen offset:{o}"
def slots_of(qg):
    a=[(0,t) for t in range(6)]+([(0,6)] if qg==0 else [])
    b=[(1,t) for t in range(6)]+([(1,6)] if qg==1 else [])
    return a+b
def colorf(N): return (lambda n: (n%13)%2 if n%13<12 else 2) if N==13 else (lambda n: n%2)
def qk(c,st,t):
    S=S0+8*c
    return [M16(S+4*k, KF+24*st+4*(3*k+j), XF+12*t+4*j, MM+4*t if j==0 else None) for k in range(2) for j in range(3)]
def pv(st,t):
    P=Preg(st,t)
    o=[M16(Oreg(t)+4*q, VF+24*st+4*q, P) for q in range(6)]
    if t==6: o.append(M16(LL+4*t, ONES, P))
    elif st==1: o.append(f"v_smfmac_f32_16x16x64_bf16 {R(LL+4*t,4)}, {R(ONES,4)}, {R(P0+8*t,8)}, v{IDX}")
    return o
def expgaps(c,st,t,n=13):
    S=S0+8*c; P=Preg(st,t)
    E=lambda j: f"v_exp_f32 v{S+j}, v{S+j}"
    C=lambda j: f"v_cvt_pk_bf16_f32 v{P+j}, v{S+2*j}, v{S+2*j+1}"
    return [[E(0)],[E(1)],[E(2)],[E(3)],[E(4)],[C(0),C(1)],[E(5)],[E(6)],[E(7)],[],[C(2),C(3)],[],[]][:n]
def body(qg):
    sl=slots_of(qg); out=[]; NS=len(sl); color=colorf(NS)
    for n,(st,t) in enumerate(sl):
        idx=[i for i,(s2,_) in enumerate(sl) if s2==st]
        pos=n-idx[0]; last=len(idx)-1
        mm=qk(color(n),st,t)+pv(*sl[(n-2)%NS])
        g=expgaps(color(n-1),*sl[(n-1)%NS],n=len(mm)); fr=(9,11); e=len(mm)-1
        if pos in (0,1):
            for i in range(2): g[fr[i]].append(kload(1-st,2+2*pos+i))
        if pos==1: g[e].append("s_waitcnt vmcnt(6)")
        if pos in (2,3,4):
            for i in range(2): g[fr[i]].append(vload(1-st,2*(pos-2)+i))
        if pos==last-1:
            g[e if last==5 else 9].append(f"s_add_u32 s60, s60, {36864 if st==0 else 12288}")
            g[e].append("s_waitcnt vmcnt(6)")
        if pos==last and st==0:
            g[5].append(f"v_cmp_eq_u32 vcc, 0, v{FV}"); g[7]+=[f"s_cbranch_vccnz L_slow{qg}",f"L_back{qg}:"]
        if pos==2 and st==1: g[e].append("s_sub_u32 s61, s61, 1")
        if pos==3 and st==1: g[e]+=["s_cmp_eq_u32 s61, 6",f"s_cbranch_scc1 L_fv{qg}",f"L_fvb{qg}:"]
        if pos==last:
            for i in range(2): g[fr[i]].append(kload(st,i))
        if pos==last and st==1: g[10].append("s_cmp_lg_u32 s61, 0")
        if os.environ.get('NOLD'): g=[[x for x in y if not x.startswith('buffer_load')] for y in g]
        o=[f"; slot {n}: stage {st} tile {t}"]
        for i in range(len(mm)): o.append(mm[i]); o+=g[i]
        out.append(o)
    return out
def tail(qg):
    sl=slots_of(qg)
    order=[(0,0),(0,1),(0,2),(0,3),(1,0),(1,1),(1,2)]+([(qg,6)] if qg is not None else [])+[(0,4),(0,5),(1,3),(1,4),(1,5)]
    NS=len(sl); color=colorf(NS)
    seq=[sl[-2],sl[-1]]+order
    col=[color(NS-2),color(NS-1)]+[color(n) for n in range(NS)]
    out=[]; pend=[]
    def states_since(i): return sum((int(l.split()[1])+1 if l.startswith('s_nop') else 1) for l in out[i+1:] if not l.startswith(';'))
    def place(n):
        for _ in range(n):
            if pend and states_since(pend[0][0])>=8:
                out.append(pend.pop(0)[1])
                if pend and 'b128' not in pend[0][1] and states_since(pend[0][0])>=8: out.append(pend.pop(0)[1])
    def wr(t,q):
        if q<6: return f"ds_write_b128 v6, {R(Oreg(t)+4*q,4)} offset:{(6*t+q)*1024 if t<3 else (18+q)*1024}"
        if t==6: return f"ds_write_b32 v6, {R(LL+4*t)} offset:{24576+3072}"
        return f"ds_write_b64 v6, {R(LL+4*t,2)} offset:{24576+1024*t}"
    rd0=[f"ds_read_b64 {R(LRCV+4*t,2)}, v7 offset:{24576+1024*t}" for t in range(3)]+[f"ds_read_b128 {R(RB(0)+4*q,4)}, v7 offset:{q*1024}" for q in range(6)]
    rd1=[f"ds_read_b128 {R(RB(1)+4*q,4)}, v7 offset:{(6+q)*1024}" for q in range(6)]
    rds=[]
    nb=NS
    for k in range(nb+2):
        out.append(f"; tail slot {k}")
        mm=[]
        if k<nb: mm+=[(m,None) for m in qk(col[k+2],*seq[k+2])]
        st,t=seq[k]
        final = k>=2 and (t==6 or (t<3 and st==1))
        mm+=[(m,(t,q) if final else None) for q,m in enumerate(pv(st,t))]
        if k<nb: g=expgaps(col[k+1],*seq[k+1],n=len(mm))
        elif k==nb:
            f=[x for y in expgaps(col[k+1],*seq[k+1]) for x in y]; g=[f[2*i:2*i+2] for i in range(7)]
        else: g=[[] for _ in range(7)]
        fr=(9,11); e=len(mm)-1
        if k in (0,1):
            for i in range(2): g[fr[i]].append(kload(1,2+2*k+i))
        if k==1: g[e].append("s_waitcnt vmcnt(6)")
        if k in (2,3):
            for i in range(3): g[(7,9,11)[i]].append(vload(1,3*(k-2)+i))
        if k==3: g[e].append("s_waitcnt vmcnt(6)")
        if k==6: g[5].append("s_waitcnt vmcnt(0)")
        BS,BG=NS-1,8
        if k==BS: g[BG]+=["s_waitcnt lgkmcnt(0)","s_barrier"]
        for i,(m,w) in enumerate(mm):
            out.append(m)
            if w: pend.append((len(out)-1, wr(*w)))
            out+=g[i]
            if k==BS and i==BG: assert not pend; rds=rd0+rd1
            if k<BS or (k==BS and i<4):
                if i in ((2,5,9,11,12) if k<BS else (0,1,2,3)): place(1)
            elif not g[i]:
                for _ in range(3):
                    if rds: out.append(rds.pop(0))
    assert not pend and not rds, (pend,rds)
    return out

XR=MM
def common_setup():
    o=["v_and_b32 v8, 15, v0","v_lshrrev_b32 v9, 4, v0","v_lshlrev_b32 v9, 4, v9",
       f"v_lshlrev_b32 v{FA}, 7, v8",f"v_add_u32 v{FA}, {FLG+4096}, v{FA}",
       "v_lshlrev_b32 v3, 4, v0","v_add_u32 v4, 4096, v3","v_add_u32 v5, 8192, v3",
       f"s_mul_i32 s48, s44, {REG}","v_add_u32 v6, s48, v3","s_xor_b32 s48, s44, 2",f"s_mul_i32 s48, s48, {REG}","v_add_u32 v7, s48, v3",
       "s_mul_i32 s48, s45, 96","s_mul_i32 s49, s46, 48","s_add_u32 s50, s48, s49",
       "s_sub_u32 s49, 48, s49","s_add_u32 s49, s48, s49",
       "s_mov_b32 s51, 37632",f"s_mov_b32 s52, {-2304}",f"s_mov_b32 s53, {21504-2688}",f"v_add_u32 v13, {XI}, v9"]
    for t in range(6):
        o+=[f"s_add_u32 s48, s{49 if t<3 else 50}, {16*(t%3)}","v_add_u32 v10, s48, v8"]
        o+=["v_mul_u32_u24 v11, 4682, v10","v_mul_u32_u24 v10, 192, v10","v_lshrrev_b32 v12, 17, v11","v_bfe_u32 v11, v11, 16, 1"]
        if 3<=t<6: o+=[f"v_mad_u32_u24 v14, v12, s51, v10",f"v_add_u32 v{XO+t-3}, v14, v9"]
        o+=["v_mad_i32_i24 v10, v12, s52, v10","v_mad_u32_u24 v10, v11, s53, v10",f"v_add_u32 v{XR+t}, v10, v13"]
    o+=["v_lshrrev_b32 v10, 2, v8","v_and_b32 v11, 3, v8","v_mul_u32_u24 v10, 5376, v10","v_mul_u32_u24 v11, 192, v11","v_add3_u32 v10, v10, v11, v9",
        f"v_add_u32 v{XOUT}, {6*43008+24*192}, v10","s_min_u32 s48, s44, 2","s_lshl_b32 s48, s48, 11",f"v_add_u32 v{XA}, s48, v3"]
    return o
assert all((q*4682)>>16==q//14 and (q*4682)>>17==q//28 for q in range(208))
assert all((c*5462)>>16==c//12 for c in range(192))
def xreads(): return [f"ds_read_b128 {R(XF+12*t+4*s,4)}, v{XR+t} offset:{64*s}" for t in range(6) for s in range(3)]
def xshared(): return srd(sX,4,XB)+[f"buffer_load_dwordx4 {R(XF+72+4*s,4)}, v{XOUT}, {SR(sX)}, s47 offen offset:{64*s}" for s in range(3)]
def init_acc():
    return [f"v_accvgpr_write_b32 a{r}, 0" for r in range(96)]+[f"v_accvgpr_write_b32 {R(LL+r)}, 0" for r in range(28)]+[f"v_mov_b32 v{r}, 0" for r in range(OK,OK+72)]
def init_const():
    return [f"v_mov_b32 v{MM+r}, 0" for r in range(28)]
def dma_loop(label, vs, srdreg, step, mod=""):
    return [label+":","s_mov_b32 m0, s49","s_add_u32 s49, s49, 3072"]+\
           [f"buffer_load_dwordx4 v{vs[j]}, {SR(srdreg)}, s48 offen offset:{1024*j} {mod} lds" for j in range(3)]+\
           [f"s_add_u32 s48, s48, {step}","s_cmp_lt_u32 s49, s50",f"s_cbranch_scc1 {label}"]

ZWG=int(os.environ.get('ZWG','254'))
ORD=int(os.environ.get('ORD','1'))
EB=int(os.environ.get('EB','1'))
SPLIT=int(os.environ.get('SPLIT','3'))
FSH=int(os.environ.get('FSH','5'))
NE=int(os.environ.get('NE','64'))
N="standalone__window_attn_twins__vision_kernel"
PF="buffer_load_dwordx4 a[252:255], v9, s[88:91], 0 offen" if int(os.environ.get("PF","1")) else "s_nop 0"
entry=(["s_memrealtime s[96:97]"] if os.environ.get('P4') else [])+["s_cmp_ge_u32 s2, 256","s_cbranch_scc1 L_done",
  "s_load_dwordx8 s[4:11], s[0:1], 0","s_load_dwordx4 s[12:15], s[0:1], 32","s_load_dwordx2 s[16:17], s[0:1], 48",
  "s_getpc_b64 s[88:89]","L_pc:","s_lshr_b32 s47, s2, 3","s_lshl_b32 s48, s47, 12","v_lshl_add_u32 v9, v0, 4, s48","s_mov_b32 s90, L_end-L_pc","s_mov_b32 s91, 0x00020000",
  "v_and_b32 v9, 0x7fff, v9","v_lshrrev_b32 v8, 6, v0","v_and_b32 v0, 63, v0",
  PF,"v_lshlrev_b32 v20, 4, v0","v_readfirstlane_b32 s44, v8",f"v_mov_b32 v18, {OOB}",
  "s_and_b32 s48, s2, 7","s_mul_i32 s47, s47, 301056","s_mul_i32 s48, s48, 5376","s_add_u32 s47, s47, s48",
  f"s_mov_b32 s{sA+3}, 0x00020000",
  "s_cmp_ge_u32 s44, 2","s_cbranch_scc1 L_wpath"]
ids=["s_and_b32 s45, s44, 1","s_lshr_b32 s46, s44, 1","s_mul_i32 s63, s46, 24576","s_mov_b32 s62, 0","v_and_b32 v16, 15, v0","v_lshrrev_b32 v17, 4, v0"]
pool0=["v_cmp_gt_u32 vcc, 40, v0","s_mul_i32 s48, s44, 2688","s_add_u32 s48, s48, s47","s_mul_i32 s49, s44, 21504",f"s_add_u32 s49, s49, {XI}","s_add_u32 s50, s49, 21504",
  "v_cndmask_b32 v21, v18, v20, vcc",f"s_mov_b32 s{sA+2}, {XB}","s_waitcnt lgkmcnt(0)",f"s_mov_b32 s{sA}, s4",f"s_mov_b32 s{sA+1}, s5"]+stamp(0)
pool0+=([f"s_sleep {os.environ['PDELAY']}"] if os.environ.get('PDELAY') else [])+([f"s_setprio {os.environ.get('PRIO','1')}"])+srd(sW,16,WSB)+["s_lshl_b32 s59, s2, 2","s_add_u32 s59, s59, s44",f"s_cmp_lg_u32 s59, {4*ZWG+1}","s_cbranch_scc1 L_nz0"]
pz=["v_lshlrev_b32 v29, 7, v0"]+[f"v_mov_b32 v{32+i}, 0" for i in range(4)]+[f"s_mov_b32 s51, {FLG}",f"buffer_store_dwordx4 v[32:35], v29, {SR(sW)}, s51 offen sc1",
    f"s_mov_b32 s51, {FLG+8192}",f"v_lshlrev_b32 v29, {max(FSH,4)}, v0",f"buffer_store_dwordx4 v[32:35], v29, {SR(sW)}, s51 offen sc1"]
pool1=["L_nz0:"]+([f"s_cmp_lt_u32 s2, {NE}","s_cbranch_scc1 L_xdma","s_barrier"] if ORD else [])+dma_loop("L_xdma",[20,20,21],sA,43008,PMOD)+([f"s_cmp_ge_u32 s2, {NE}","s_cbranch_scc1 L_pool","s_barrier"] if ORD and EB else [])+["s_branch L_pool"]
PX=VF
pool=["s_setprio 0"]+srd(sD,14,256)+[f"s_cmp_lg_u32 s59, {4*ZWG+1}","s_cbranch_scc1 L_nrd","v_mov_b32 v32, 1","v_mov_b32 v33, 0","s_waitcnt vmcnt(21)","s_mov_b64 exec, 1",
     f"buffer_store_dword v32, v33, {SR(sD)}, 0 offen sc1","s_mov_b64 exec, -1","L_nrd:"]+ids+srd(sO,12,OUTSZ)
pool+=["v_and_b32 v21, 1, v16","v_lshlrev_b32 v21, 4, v21","v_mov_b32 v22, 0x3f80","v_lshlrev_b32 v21, v21, v22","v_lshrrev_b32 v22, 1, v16"]
for d in range(8): pool+=[f"v_cmp_eq_u32 vcc, {d}, v22","s_nop 1",f"v_cndmask_b32 v{24+d}, 0, v21, vcc"]
pool+=[f"v_mov_b32 v8, {FLAG}","v_mov_b32 v9, 0","ds_write_b32 v8, v9"]
pool+=["v_lshrrev_b32 v21, 1, v17","v_mul_u32_u24 v21, 192, v21","v_lshl_add_u32 v21, v16, 4, v21","v_and_b32 v22, 1, v17","v_lshl_add_u32 v21, v22, 3, v21",
       "s_mul_i32 s48, s44, 384",f"s_add_u32 s48, s48, {XS}","v_add_u32 v21, s48, v21","v_cmp_gt_u32 s[54:55], 12, v16",
       "s_sub_u32 s50, s50, 21504","v_lshl_add_u32 v39, v16, 4, s50","v_mul_u32_u24 v36, 192, v17","v_add_u32 v36, v36, v39","v_cmp_gt_u32 vcc, 3, v17",
       "v_add_u32 v39, 2688, v39","v_add_u32 v37, 768, v36",f"v_add_u32 v38, {768+1344}, v36","v_cndmask_b32 v37, v39, v37, vcc","v_cndmask_b32 v38, v39, v38, vcc"]
pool+=stamp(1)
PX=OK
def prd(r):
    b=PX+16*r
    return [f"ds_read_b128 {R(b,4)}, v36 offset:{3072*r}",f"ds_read_b128 {R(b+4,4)}, v37 offset:{3072*r}",
            f"ds_read_b128 {R(b+8,4)}, v36 offset:{3072*r+1344}",f"ds_read_b128 {R(b+12,4)}, v38 offset:{3072*r}"]
def pmm(r): return [M16(32, 24+4*(j//2), PX+16*r+4*j, "0" if (r,j)==(0,0) else None) for j in range(4)]
for r in range(7):
    pool+=[f"s_waitcnt vmcnt({3*(6-r)})"]+prd(r)
    if r>=2: pool+=["s_waitcnt lgkmcnt(8)"]+pmm(r-2)
pool+=["s_waitcnt lgkmcnt(4)"]+pmm(5)
m=pmm(6)
for j in range(4): pool+=[f"s_waitcnt lgkmcnt({3-j})",m[j]]
pool+=["s_nop 7"]+[f"v_mul_f32 v{32+i}, {f32(1/49)}, v{32+i}" for i in range(4)]
pool+=["v_cvt_pk_bf16_f32 v32, v32, v33","v_cvt_pk_bf16_f32 v33, v34, v35","s_mov_b64 exec, s[54:55]","ds_write_b64 v21, v[32:33]","s_mov_b64 exec, -1",
       "s_waitcnt lgkmcnt(0)"]+stamp(2)+["s_barrier"]
pool+=common_setup()+xshared()+xreads()+init_const()+init_acc()
pool+=(stamp(3) if not os.environ.get('P2') else [])+["s_branch L_go"]
wp0=["s_sub_u32 s54, s44, 2"]
for j in range(3):
    wp0+=[f"v_add_u32 v19, {64*j}, v0","v_mul_u32_u24 v24, 5462, v19","v_lshlrev_b32 v19, 4, v19","v_lshrrev_b32 v24, 16, v24",
          "v_mul_u32_u24 v24, 192, v24",f"v_add3_u32 v{21+j}, v24, v19, s{[92,93,94][j]}"]
wp0=[f"s_mov_b32 s92, 0","s_mov_b32 s93, -1024","s_mov_b32 s94, -2048"]+wp0
wp0+=["s_mul_i32 s48, s54, 192","s_mul_i32 s49, s54, 36864","s_add_u32 s50, s49, 18432",f"s_mov_b32 s{sA+2}, 36864",
     "s_waitcnt lgkmcnt(0)",f"s_mov_b32 s{sA}, s8",f"s_mov_b32 s{sA+1}, s9"]
TLB=int(os.environ.get('TLB','0'))
tlb=srd(sW,16,WSB)+srd(sD,14,256)+srd(sO,12,OUTSZ)+["v_mov_b32 v25, 0",f"s_mov_b32 s51, {0x70000}","s_mov_b64 exec, 1",f"buffer_load_dword v26, v25, {SR(sW)}, s51 offen sc1",
     f"buffer_load_dword v27, v25, {SR(sD)}, 0 offen offset:128 sc1",f"buffer_load_dword v28, v25, {SR(sO)}, s47 offen","s_add_u32 s51, s47, 290000",f"buffer_load_dword v29, v25, {SR(sO)}, s51 offen","s_mov_b64 exec, -1"]
wp=stamp(0)+(tlb if TLB else [])+([f"s_sleep {os.environ['WDELAY']}"] if os.environ.get('WDELAY') else [])
if ORD:
    wp+=([f"s_cmp_ge_u32 s2, {NE}","s_cbranch_scc1 L_nb1","s_barrier","L_nb1:"] if EB else [])+[f"s_add_u32 s50, s49, {3072*SPLIT}"]+dma_loop("L_w1a",[21,22,23],sA,6144)
    wp+=[f"s_cmp_lt_u32 s2, {NE}","s_cbranch_scc1 L_nb2","s_barrier","L_nb2:",f"s_add_u32 s50, s49, {3072*(6-SPLIT)}"]+dma_loop("L_w1b",[21,22,23],sA,6144)
else: wp+=dma_loop("L_w1dma",[21,22,23],sA,6144)
wp+=["s_cmp_eq_u32 s54, 0",f"s_cselect_b32 s{sB}, s6, s10",f"s_cselect_b32 s{sB+1}, s7, s11",f"s_mov_b32 s{sB+2}, 18432",f"s_mov_b32 s{sB+3}, 0x00020000",
     "s_mov_b32 s48, 0"]
IA=init_acc()
EI=int(os.environ.get('EI','1'))
if EI: wp+=[f"s_cmp_ge_u32 s2, {NE}","s_cbranch_scc1 L_w2u","s_add_u32 s50, s49, 18432"]+dma_loop("L_w2dma",[20,20,20],sB,3072)+["s_branch L_w2e","L_w2u:"]
for i in range(18):
    if i%3==0: wp+=["s_mov_b32 m0, s49","s_add_u32 s49, s49, 3072"]
    wp.append(f"buffer_load_dwordx4 v20, {SR(sB)}, s48 offen offset:{1024*(i%3)} lds")
    if i%3==2: wp.append("s_add_u32 s48, s48, 3072")
    wp+=IA[len(IA)*i//17:len(IA)*(i+1)//17] if i<17 else []
wj=(["L_w2e:"] if EI else [])+ids+(srd(sW,16,WSB)+srd(sD,14,256) if not TLB else [])
wj+=["s_mul_i32 s55, s54, 36864","v_lshrrev_b32 v22, 2, v16","v_and_b32 v23, 3, v16",
     "v_lshl_add_u32 v44, v17, 3, v22","v_mul_u32_u24 v44, 192, v44","v_lshl_add_u32 v44, v23, 4, v44","v_add_u32 v44, s55, v44",
     "v_lshl_add_u32 v47, v22, 3, v23","v_mul_u32_u24 v47, 192, v47","v_lshl_add_u32 v47, v17, 4, v47",
     "v_mul_u32_u24 v45, 192, v23","v_lshl_add_u32 v45, v17, 4, v45",f"v_add_u32 v45, {XS}, v45",
     "v_cmp_gt_u32 vcc, 4, v16","v_cmp_gt_u32 s[52:53], 16, v0","s_cmp_eq_u32 s54, 0","s_cselect_b64 vcc, vcc, s[52:53]","s_nop 1","v_cndmask_b32 v46, v18, v20, vcc",
     "s_lshr_b32 s56, s2, 3","s_mul_i32 s56, s56, 12288","s_bfe_u32 s57, s2, 0x10002","s_and_b32 s58, s2, 3"]
wj+=stamp(1)+["s_waitcnt vmcnt(18)"]
for nt in range(6):
    for s_ in range(3):
        for h in range(2): wj.append(f"ds_read_b64_tr_b16 {R(W1(3*nt+s_)+2*h,2)}, v44 offset:{(32*s_+4*h)*192+base(nt)*2}")
D1=8; XSF=XF+24; KB=32
wj+=["s_waitcnt lgkmcnt(0)"]+stamp(2)+["s_cmp_eq_u32 s54, 0","s_cbranch_scc0 L_vp"]
def step1(rd):
    o=["s_barrier"]+[f"ds_read_b128 {R(XSF+4*s_,4)}, v45 offset:{64*s_}" for s_ in range(3)]+["s_waitcnt vmcnt(0)","s_waitcnt lgkmcnt(0)"]+(stamp(1) if os.environ.get('P1') else [])
    per=len(rd)//18
    for nt in range(6):
        for s_ in range(3):
            o.append(M16(D1+4*nt, W1(3*nt+s_), XSF+4*s_, "0" if s_==0 else None))
            o+=rd[per*(3*nt+s_):per*(3*nt+s_+1)]
    for u in range(3):
        if u==2: o.append("s_nop 1")
        for e in range(2):
            for z in range(2): o.append(f"v_cvt_pk_bf16_f32 v{KB+4*u+2*e+z}, v{D1+8*u+4*e+2*z}, v{D1+8*u+4*e+2*z+1}")
    return o+["s_waitcnt lgkmcnt(0)","v_mov_b32 v47, 0",f"buffer_load_dword v45, v47, {SR(sD)}, 0 offen sc1"]
wq=[f"ds_read_b128 {R(W2(3*ct+u),4)}, v47 offset:{18432+base(ct)*192+64*u}" for ct in range(6) for u in range(3)]
wtr=[f"ds_read_b64_tr_b16 {R(W2(3*ct+u)+2*h,2)}, v44 offset:{18432+(32*u+4*h)*192+base(ct)*2}" for ct in range(6) for u in range(3) for h in range(2)]
sc=f32(96**-0.5*math.log2(math.e))
kp=step1(wq)+[M16(D1+4*ct, W2(3*ct+u), KB+4*u, "0" if u==0 else None) for ct in range(6) for u in range(3)]
kp+=[f"s_mov_b32 s50, {sc}",f"s_mov_b32 s51, {sc}","s_mul_i32 s57, s57, 3072","s_add_u32 s56, s56, s57","s_lshl_b32 s58, s58, 6","s_add_u32 s56, s56, s58"]
for u in range(3):
    if u==2: kp.append("s_nop 1")
    kp+=[f"v_pk_mul_f32 {R(D1+8*u+2*i,2)}, {R(D1+8*u+2*i,2)}, s[50:51]" for i in range(4)]
    kp+=[f"v_cvt_pk_bf16_f32 v{KB+4*u+i}, v{D1+8*u+2*i}, v{D1+8*u+2*i+1}" for i in range(4)]
    kp.append(f"buffer_store_dwordx4 {R(KB+4*u,4)}, v46, {SR(sW)}, s56 offen offset:{1024*u} {KVMOD}")
kp+=["s_mov_b32 s94, 1","s_branch L_pj"]
vp=step1(wtr)+[M16(D1+4*ct, KB+4*u, W2(3*ct+u), "0" if u==0 else None) for ct in range(6) for u in range(3)]
vp+=["s_lshl_b32 s57, s57, 3","s_add_u32 s56, s56, s57","s_lshl_b32 s58, s58, 8","s_add_u32 s56, s56, s58","s_add_u32 s56, s56, 6144","s_add_u32 s57, s56, 4096"]
for ct in range(6):
    vp+=[f"v_cvt_pk_bf16_f32 v{D1+4*ct}, v{D1+4*ct}, v{D1+4*ct+1}",f"v_cvt_pk_bf16_f32 v{D1+4*ct+1}, v{D1+4*ct+2}, v{D1+4*ct+3}",
         f"buffer_store_dwordx2 {R(D1+4*ct,2)}, v46, {SR(sW)}, s{56 if ct<4 else 57} offen offset:{1024*(ct%4)} {KVMOD}"]
if os.environ.get('MOCK'):
    keep=lambda L: [x for x in L if not (x.startswith('v_mfma') or x.startswith('ds_read_b64_tr') or (x.startswith('ds_read_b128') and 'v47' in x) or x=="s_waitcnt vmcnt(0)" or x.startswith('v_pk_mul') or x.startswith('v_cvt'))]
    kp=keep(kp); vp=keep(vp); wj=[x for x in keep(wj) if x!="s_waitcnt vmcnt(18)"]
    wp=stamp(0)
vp+=["s_mov_b32 s50, 0x7fff7fff"]+[f"v_and_b32 v{KB+2*ct+h}, s50, v{D1+4*ct+h}" for ct in range(6) for h in range(2)]
vp+=[f"v_pk_max_u16 v{KB+i}, v{KB+i}, v{KB+6+i}" for i in range(6)]+[f"v_pk_max_u16 v{KB+i}, v{KB+i}, v{KB+3+i}" for i in range(3)]
vp+=[f"v_pk_max_u16 v{KB}, v{KB}, v{KB+1}",f"v_pk_max_u16 v{KB}, v{KB}, v{KB+2}",f"v_lshrrev_b32 v{KB+1}, 16, v{KB}",f"v_and_b32 v{KB}, 0xffff, v{KB}",f"v_max_u32 v{KB}, v{KB}, v{KB+1}",
     f"v_cmp_lt_u32 vcc, {(127+30)<<7}, v{KB}","s_mov_b32 s94, 1","s_cmp_lg_u64 vcc, 0","s_cselect_b32 s94, 0x10001, s94"]
PRE=srd(sO,12,OUTSZ)+common_setup()+xreads()
EARLY=int(os.environ.get('EARLY','1'))
pj=(stamp(5) if os.environ.get('P1') else [])+(PRE if EARLY else [])+["s_lshr_b32 s48, s2, 4","s_lshl_b32 s48, s48, 7",f"s_add_u32 s48, s48, {FLG}","v_mov_b32 v44, 1","s_mov_b32 s49, 0x200000",
    f"s_lshl_b32 s57, s2, {FSH-2}","s_add_u32 s57, s57, s54","s_lshl_b32 s57, s57, 2",f"s_add_u32 s57, s57, {FLG+8192}",
    "s_mov_b64 exec, 1","s_waitcnt vmcnt(0)"]+(stamp(6) if os.environ.get('P1') else [])
wr_=["v_cmp_ne_u32 vcc, 0, v45","s_sub_u32 s49, s49, 1","s_cbranch_scc1 L_arr","s_cbranch_vccnz L_arr",f"buffer_load_dword v45, v47, {SR(sD)}, 0 offen sc1","s_waitcnt vmcnt(0)","s_branch L_wr"]
NSH=int(os.environ.get('NSH','224'))
DIRECT=int(os.environ.get('DIRECT','1'))
arr=([f"s_cmp_ge_u32 s2, {NE}","s_cbranch_scc1 L_nd",f"buffer_store_dword v44, v47, {SR(sW)}, s57 offen sc1","L_nd:"] if DIRECT else [])
PL=f"buffer_load_dwordx2 v[12:13], v10, {SR(sW)}, 0 offen sc1"
INIT=init_const()+[f'v_accvgpr_write_b32 a{252+h}, 0' for h in range(4)]+([f"s_cmp_ge_u32 s2, {NE}","s_cbranch_scc1 L_ni"]+init_acc()+["L_ni:"] if EI else [])
LP=int(os.environ.get('LP','999'))
NP=int(os.environ.get('NP','999'))
arr+=["v_mov_b32 v43, s94",f"buffer_atomic_add v43, v47, {SR(sW)}, s48 offen sc0 sc1","s_mov_b64 exec, -1","s_add_u32 s58, s48, 4096"]
arr+=[f"v_and_b32 v10, {NE-1}, v0",f"v_lshlrev_b32 v10, {FSH}, v10",f"v_add_u32 v10, {FLG+8192}, v10","v_mov_b32 v12, 1","v_mov_b32 v13, 1"]+(INIT[:NP]+["s_cmp_lg_u32 s54, 0","s_cbranch_scc1 L_np",PL,"L_np:"]+xshared()+INIT[NP:] if NP<999 else
   (["v_mov_b32 v12, s54","s_and_b32 s50, s2, 3","s_or_b32 s50, s50, s54"]+INIT[:LP]+["s_cmp_lg_u32 s50, 0","s_cbranch_scc1 L_np",PL,"L_np:"]+xshared()+INIT[LP:] if LP<999 else ["v_mov_b32 v12, s54"]+xshared()+INIT))
arr+=["s_mov_b64 exec, 1","s_waitcnt vmcnt(3)",
  "v_add_u32 v43, s94, v43","v_and_b32 v44, 0xffff, v43","v_lshrrev_b32 v45, 16, v43","v_cmp_eq_u32 vcc, 32, v44","v_add_u32 v45, 1, v45","s_and_b64 exec, exec, vcc","s_cbranch_execz L_nl",
  f"buffer_store_dword v45, v47, {SR(sW)}, s58 offen sc1","L_nl:","s_mov_b64 exec, -1"]+(stamp(3) if not os.environ.get('P2') else [])
WARM=int(os.environ.get('WARM','1'))
warm=["s_lshr_b32 s50, s2, 3","s_mul_i32 s50, s50, 1536",f"buffer_load_dwordx4 v[16:19], v3, {SR(sW)}, s50 offen sc1",f"buffer_load_dwordx4 v[20:23], v3, {SR(sW)}, s50 offen offset:512 sc1"]
if WARM==1: arr+=["; wave 3: pull a slice of the first key steps into this die's L2 (values unused; L1 bypassed)","s_cmp_eq_u32 s54, 0","s_cbranch_scc1 L_nw"]+warm+["L_nw:"]
if WARM==2:
    i=arr.index("s_waitcnt vmcnt(3)"); arr[i]="s_waitcnt vmcnt(5)"; arr[i-1:i-1]=warm
arr+=["s_mov_b32 s49, 0x200000"]+(["s_cmp_eq_u32 s54, 0","s_cbranch_scc1 L_poll1","s_branch L_go"] if NP>=999 and LP>=999 else ["s_branch L_chk"])
SLEEP=int(os.environ.get('SLEEP','6'))
poll=([f"s_sleep {SLEEP}"] if SLEEP else [])+["L_poll1:",PL,"s_sub_u32 s49, s49, 1","s_cbranch_scc1 L_go","s_waitcnt vmcnt(0)",
  "L_chk:","v_and_b32 v12, v12, v13","v_cmp_ne_u32 vcc, 1, v12","s_nop 1","s_cbranch_vccnz L_poll"]
CONSTS=["v_and_b32 v8, 1, v0","v_mul_u32_u24 v8, 0xaaaa, v8",f"v_add_u32 v{IDX}, 0x4444, v8",f"v_mov_b32 v{FV}, 1"]+[f"v_mov_b32 v{ONES+r}, 0x3f803f80" for r in range(4)]
go=(CONSTS if not int(os.environ.get('CG','0')) else [])+["s_waitcnt lgkmcnt(0)","s_barrier"]+stamp(4)
PRO=int(os.environ.get('PRO','2'))
q0=qk(0,0,0); q1=qk(1,0,1); ev=[x for y in expgaps(0,0,0) for x in y]
K1=[kload(1,f) for f in range(6)]
pas=["s_mov_b32 s60, s63"]+[kload(0,f) for f in range(6)]+[vload(0,c) for c in range(6)]+["s_add_u32 s60, s60, 12288","s_mov_b32 s61, 7"]
if PRO==1:
    pas+=["s_waitcnt vmcnt(9)"]+q0[:3]+["s_waitcnt vmcnt(6)"]
    for i in range(3): pas+=[q0[3+i],K1[i]]
    for i in range(3): pas+=[q1[i],K1[3+i]]
elif PRO==2:
    pas+=["s_waitcnt vmcnt(11)",q0[0],"s_waitcnt vmcnt(10)",q0[1],"s_waitcnt vmcnt(9)",q0[2],q1[0],q1[1],q1[2],"s_waitcnt vmcnt(6)"]
    for i in range(3): pas+=[q0[3+i],K1[2*i],K1[2*i+1]]
pas+=stamp(5)+["s_and_b32 s48, s2, 3"]+(["s_nop 0"] if PRO==2 else [])+ev[0:2]+[q1[3]]+ev[2:4]+[q1[4]]+(["s_nop 1"] if PRO==2 else [])+ev[4:6]+[q1[5]]+ev[6:]+["s_waitcnt vmcnt(6)","s_cbranch_scc1 L_s2_2","s_cmp_eq_u32 s45, 0","s_cbranch_scc0 L_s2_1","s_branch L_s2_0"]
def chk(reg): return [f"v_cmp_nle_f32 vcc, s48, v{reg}","s_or_b64 s[64:65], s[64:65], vcc",f"v_cmp_nge_f32 vcc, s49, v{reg}","s_or_b64 s[64:65], s[64:65], vcc"]
LR=LRCV
epi=(stamp(6) if not os.environ.get('P1') else [])+[f"s_mov_b32 s48, {f32(2.0**-20)}",f"s_mov_b32 s49, {f32(2.0**90)}","s_mov_b64 s[64:65], 0","s_waitcnt lgkmcnt(6)"]
XP=P0
epi+=[f"v_add_u32 v28, {2*REG}, v{XA}",f"v_add_u32 v29, {2*REG}, v3"]
late=[f"ds_read_b128 {R(RB(2)+4*q,4)}, v7 offset:{(12+q)*1024}" for q in range(6)]+[None]*3
late+=[f"ds_read_b32 v{24+w}, v{3 if w<2 else 29} offset:{(w%2)*REG+27648}" for w in range(4)]
late+=[f"ds_read_b128 {R(XP+8*w+4*e,4)}, v{XA if w<2 else 28} offset:{(w%2)*REG+18432+1024*e}" for w in range(4) for e in range(2)]
def lsum(t):
    r=LR+4*t
    return [f"v_accvgpr_read_b32 v{r+2}, {R(LL+12+4*t)}",f"v_accvgpr_read_b32 v{r+3}, {R(LL+13+4*t)}",f"v_add_f32 v{r}, v{r}, v{r+1}",f"v_add_f32 v{r+2}, v{r+2}, v{r+3}",
            f"v_add_f32 v{r+2}, v{r+2}, v{r}",f"v_rcp_f32 v{r+3}, v{r+2}"]+(["s_nop 0",f"v_mul_f32 v{r+3}, {f32(float(os.environ['EPS']))}, v{r+3}"] if os.environ.get('EPS') else [])
epi+=lsum(0)
issued=12; nan=[]
for t in range(3):
    for u in range(3):
        need=6*t+2*u+2
        if t==1: epi.append(f"s_waitcnt lgkmcnt({min(15,issued-need)})")
        o=OK+24*t+8*u; rb=RB(t)+8*u
        epi+=[f"v_pk_add_f32 {R(o+2*i,2)}, {R(o+2*i,2)}, {R(rb+2*i,2)}" for i in range(4)]
        for _ in range(3 if t<1 else 4):
            if late:
                x=late.pop(0)
                if x: epi.append(x); issued+=1
        if t<2 and u==1: epi+=lsum(t+1)
        epi+=[f"v_pk_mul_f32 {R(o+2*i,2)}, {R(o+2*i,2)}, {R(LR+4*t+2,2)} op_sel:[0,1] op_sel_hi:[1,1]" for i in range(4)]
        epi+=[f"v_cvt_pk_bf16_f32 v{o+i}, v{o+2*i}, v{o+2*i+1}" for i in range(4)]
        if os.environ.get('LINST'):
            epi+=["s_mul_i32 s50, s2, 37632","s_mul_i32 s51, s44, 9216","s_add_u32 s50, s50, s51",f"s_add_u32 s50, s50, {3072*t}",f"buffer_store_dwordx4 {R(o,4)}, v3, {SR(sO)}, s50 offen offset:{1024*u} {OUTMOD}"]
        else: epi.append(f"buffer_store_dwordx4 {R(o,4)}, v{XO+t}, {SR(sO)}, s47 offen offset:{64*u} {OUTMOD}")
        if os.environ.get('NOST'): epi.pop()
        if (t,u)==(1,2):
            epi+=["s_and_b32 s50, s2, 3","s_cselect_b64 vcc, -1, 0","s_waitcnt lgkmcnt(8)","v_add_f32 v24, v24, v25","v_add_f32 v26, v26, v27","v_add_f32 v24, v24, v26",
                  f"v_mov_b32 v20, {FLAG}","v_mov_b32 v21, 1","v_cndmask_b32 v24, v24, 1.0, vcc"]
            epi+=chk(LR+2)+chk(LR+6)+chk(LR+10)+chk(24)+[f"v_cmp_lt_u32 vcc, 1, v{FV}","s_or_b64 s[64:65], s[64:65], vcc","v_rcp_f32 v26, v24",
                  "s_cmp_eq_u64 s[64:65], 0","s_cbranch_scc1 L_ok","ds_write_b32 v20, v21","L_ok:","s_waitcnt lgkmcnt(0)","s_barrier","ds_read_b32 v21, v20"]
            issued=18; fixed=True
assert not late
epi+=["s_and_b32 s50, s2, 3","s_lshr_b32 s51, s44, 1","s_and_b32 s51, s51, s44","s_or_b32 s50, s50, s51","s_cbranch_scc1 L_nx"]
xe=["s_lshl_b32 s50, s44, 6","s_add_u32 s50, s50, s47"]
xe+=[f"v_pk_add_f32 {R(XP+2*i,2)}, {R(XP+2*i,2)}, {R(XP+8+2*i,2)}" for i in range(4)]
xe+=[f"v_pk_add_f32 {R(XP+16+2*i,2)}, {R(XP+16+2*i,2)}, {R(XP+24+2*i,2)}" for i in range(4)]
xe+=[f"v_pk_add_f32 {R(XP+2*i,2)}, {R(XP+2*i,2)}, {R(XP+16+2*i,2)}" for i in range(4)]
xe+=[f"v_pk_mul_f32 {R(XP+2*i,2)}, {R(XP+2*i,2)}, v[26:27] op_sel_hi:[1,0]" for i in range(4)]
xe+=[f"v_cvt_pk_bf16_f32 v{8+i}, v{XP+2*i}, v{XP+2*i+1}" for i in range(4)]+[f"buffer_store_dwordx4 v[8:11], v{XOUT}, {SR(sO)}, s50 offen {OUTMOD}","L_nx:"]
epi+=xe
epi+=stamp(7)+(["s_mov_b32 s82, s96"] if os.environ.get('P4') else [])+(["s_getreg_b32 s75, hwreg(HW_REG_XCC_ID)"] if DIAG else [])+stampdump()
ok=["s_waitcnt lgkmcnt(0)","v_readfirstlane_b32 s48, v21","s_nop 3","s_andn2_b32 s48, s48, s62","s_cbranch_scc0 L_done"]
fb=["s_waitcnt vmcnt(0)"]+[f"v_mov_b32 v{MM+4*t}, 0xff800000" for t in range(7)]+["s_mov_b32 s60, s63","s_mov_b32 s61, 16"]
fbl=[kload(0,f) for f in range(6)]+["s_waitcnt vmcnt(0)"]
for t in range(7):
    fbl+=[M16(S0+4*k, KF+4*(3*k+j), XF+12*t+4*j, "0" if j==0 else None) for k in range(2) for j in range(3)]
    fbl+=["s_nop 7"]+[f"v_max3_f32 v{MM+4*t}, v{S0+2*i}, v{S0+2*i+1}, v{MM+4*t}" for i in range(4)]
fbl+=["s_bitcmp1_b32 s61, 0","s_cselect_b32 s48, 24576, 0","s_add_u32 s60, s60, s48","s_add_u32 s60, s60, 12288","s_sub_u32 s61, s61, 1","s_cmp_lg_u32 s61, 0","s_cbranch_scc1 L_fb"]
fb2=[f"ds_write_b32 v6, v{MM+4*t} offset:{1024*t}" for t in range(7)]
fb2+=["v_and_b32 v8, 0x300, v3","v_sub_u32 v9, v6, v8","v_sub_u32 v10, v7, v8","s_waitcnt lgkmcnt(0)","s_barrier"]
for t in range(7):
    tp=(t+3)%6 if t<6 else 6
    for G in range(4): fb2+=[f"ds_read_b32 v{12+G}, v9 offset:{1024*t+256*G}",f"ds_read_b32 v{16+G}, v10 offset:{1024*tp+256*G}"]
    fb2+=["s_waitcnt lgkmcnt(0)","v_max3_f32 v12, v12, v13, v14","v_max3_f32 v12, v12, v15, v16","v_max3_f32 v12, v12, v17, v18","v_max_f32 v12, v12, v19"]
    fb2+=[f"v_sub_f32 v{MM+4*t+i}, 0, v12" for i in range(4)]
fb2+=init_acc()+["s_barrier","s_mov_b32 s62, 1","s_branch L_pass"]


DOC=""";
; ---------------------------------------------------------------------------------------------
; Twins global sub-sampled attention, one fused launch, 256 workgroups x 4 waves (one per SIMD).
;
; Math (c = 96^-0.5 * log2(e)):  xs = bf16(mean7x7(x)),  [k|v] = bf16(xs wkv),
;   K' = bf16(c * k wq^T),  V' = bf16(v wo),  S = x K'^T (base-2 logits),  out = (exp2(S-m) V') / sum(exp2(S-m)).
;   wq and wo are folded into the 1024 keys instead of being applied to the 50176 queries.
;
; Phase 1  workgroup b owns windows 4b..4b+3 (7 rows x 28 pixels).  Waves 0,1 stream x into LDS and pool it with
;          one-hot MFMAs; waves 2,3 load the weights and compute K' / V' for the 4 keys, store them write-through
;          to d_ws in MFMA-fragment order, and signal (flag words in d_ws, cleared by workgroup 254 at the start of
;          every launch; d_debug[0] says "flags are cleared").
; Phase 2  flash-style sweep over 32-key steps.  wave = (query group, key half): 6 query tiles of 16 x 512 keys,
;          fragments straight from L2 into registers, 16x16x32 MFMAs, row sums by a sparse MFMA against ones.
;          The 4 left-over queries of workgroups 4j..4j+3 form one more tile, done by workgroup 4j.
; Phase 3  key halves are merged through LDS, normalised, stored.
;
; Softmax guard: pass 1 uses the stand-in m = 0 (the M registers, fed in as the accumulator of the QK MFMAs).
;   A run-time check decides whether that was safe: every row sum must lie in [2^-20, 2^90] and |V'| < 2^30, so no
;   exp2, product or sum overflowed and nothing that matters underflowed.  Otherwise the workgroup computes the true
;   row maxima (L_fb) and repeats phases 2 and 3 with m = true max.
; ---------------------------------------------------------------------------------------------""".split("\n")
flat=lambda x: [l for y in x for l in y]
B=[body(0),body(1),body(None)]; T=[tail(0),tail(1),tail(None)]
out=[]
HDR=open('standalone__window_attn_twins__vision.s.ref').read().split('\n')
out+=HDR[:10]
out.append(f"; @launch grid=(256,1,1) block=(256,1,1) lds={LDSB}")
out+=DOC
out+=['.amdgcn_target "amdgcn-amd-amdhsa--gfx950"',".text",f".globl {N}",".p2align 8",f".type {N},@function",f"{N}:"]
def E(lines,label=None,align=False):
    if align: out.append(".p2align 6")
    if label: out.append(label+":")
    out.extend(l if l.endswith(':') else "    "+l for l in lines)
E(["; entry: kernel arguments, ids, one load per wave that pulls this kernel's code into L2"]); E(entry); E(['; waves 0,1: x rows -> LDS (workgroups >= 64 let half of their first weight matrix go first, so that the']); E(["; keys needed first are ready first)"]); E(pool0); E(pz); E(pool1); E(['; waves 2 (K path), 3 (V path): weights -> LDS, fragments, two small GEMMs, write-through stores, arrival']); E(wp0,"L_wpath"); E(wp); E(wj); E(kp); E(vp,"L_vp"); E(pj,"L_pj"); E(wr_,"L_wr"); E(arr,"L_arr")
E(['; pooling by MFMA, xs -> LDS, then address set-up, x fragments and accumulator init']); E(pool,"L_pool")
E(['; wave 2 waits for the keys of the first two iterations (workgroups 0..63)']); E(poll,"L_poll"); E(go,"L_go"); E(['; first fragments, pipeline fill, jump into the loop variant (0/1: with the shared tile, 2: without)']); E(pas,"L_pass"); E(flat([[f"L_fv{q}:",f"buffer_load_dword v{FV}, v{FA}, {SR(sW)}, 0 offen sc1",f"s_branch L_fvb{q}"] for q in (0,1,None)]))
for q in range(3):
    E(flat(B[q][:2]),f"L_loop{q}",True); E(flat(B[q][2:]),f"L_s2_{q}"); E([f"s_cbranch_scc1 L_loop{q}"]); E(stamp(3) if os.environ.get('P2') else []); E(T[q])
    if q<2: E(["s_branch L_epi"])
def slow(q): return [f"L_slow{q}:","s_mov_b32 s49, 0x200000"]+(["s_mov_b32 s77, 1"] if DIAG else [])+[f"L_slowp{q}:",f"buffer_load_dword v{FV}, v{FA}, {SR(sW)}, 0 offen sc1","s_sub_u32 s49, s49, 1",f"s_cbranch_scc1 L_back{q}",
    "s_waitcnt vmcnt(0)",f"v_cmp_eq_u32 vcc, 0, v{FV}","s_nop 1",f"s_cbranch_vccnz L_slowp{q}",f"s_branch L_back{q}"]
E(['; merge key halves, normalise, store; safety check and workgroup-wide decision half-way']); E(epi,"L_epi"); E(ok); E(['; rare path: true row maxima, then repeat']); E(fb); E(fbl,"L_fb"); E(fb2); E(slow(0)+slow(1)+slow(None)); E(["s_endpgm","L_end:"],"L_done")
out+=['.section .rodata,"a"',".p2align 6",f".amdhsa_kernel {N}","  .amdhsa_next_free_vgpr 512","  .amdhsa_next_free_sgpr 100","  .amdhsa_accum_offset 256",
 "  .amdhsa_group_segment_fixed_size 0","  .amdhsa_kernarg_size 56","  .amdhsa_user_sgpr_count 2","  .amdhsa_user_sgpr_kernarg_segment_ptr 1",
 "  .amdhsa_system_sgpr_workgroup_id_x 1",".end_amdhsa_kernel"]
open(sys.argv[1],'w').write("\n".join(out)+"\n")
bad=0
bad+=hz.check(entry+pool0+pz+pool1+pool+go+pas,'pool')
bad+=hz.check(entry+wp0+wp+wj+kp+pj+wr_+arr+poll+go+pas,'kpath')
bad+=hz.check(entry+wp0+wp+wj+vp+pj+wr_+arr,'vpath')
for q in range(3):
    bad+=hz.check(pas+flat(B[q][2:])+["s_cbranch x"]+flat(B[q])+["s_cbranch x"]+T[q]+epi+ok+fb+fbl+fbl+fb2+pas,f'main{q}')
print("hazards:",bad)
```

```python
import sys, struct, math, os
import hz
DIAG=int(os.environ.get('DIAG','0'))
OUTMOD=os.environ.get('OUTMOD','sc1 nt')
PMOD=os.environ.get('PMOD','nt')
KVMOD=os.environ.get('KVMOD','sc1')
XMOD=os.environ.get('XMOD','')
OUTSZ=int(os.environ.get('OUTSZ','9633792'))
def R(x,n=1):
    if x>=256: return f"a{x-256}" if n==1 else f"a[{x-256}:{x-256+n-1}]"
    return f"v{x}" if n==1 else f"v[{x}:{x+n-1}]"
def M16(d,a,b,c=None):
    c = R(d,4) if c is None else (c if isinstance(c,str) else R(c,4))
    return f"v_mfma_f32_16x16x32_bf16 {R(d,4)}, {R(a,4)}, {R(b,4)}, {c}"
def f32(x): return "0x%08x"%struct.unpack("<I",struct.pack("<f",x))[0]
def base(ct): return 32*(ct//2)+4*(ct%2)
XB=9633792; WSB=0x10000000; OOB=0x40000000
FLG=0x80000
REG=28672; XI=73728; XS=116736; FLAG=XS+768; LDSB=FLAG+64
assert all((q*2341)>>16==q//28 for q in range(208))
assert all((c*5462)>>16==c//12 for c in range(192))
S0=8; P0=32; P6=80; ONES=84; IDX=88; MM=92; OK=120; VF=192; XO=240; T2=56; LL=256+228
OS=256; OX=256+72; XF=256+96; KF=256+180; ASP=256+228
FV=89; FA=90
XA=1; XL=2; XOUT=243; LRCV=MM
sX=20; sO=24; sW=28; sA=32; sB=36; sD=40
def SR(d): return f"s[{d}:{d+3}]"
def srd(d, lo, size): return [f"s_mov_b32 s{d}, s{lo}", f"s_mov_b32 s{d+1}, s{lo+1}", f"s_mov_b32 s{d+2}, {size}", f"s_mov_b32 s{d+3}, 0x00020000"]
def Oreg(t): return OS+24*t if t<3 else (OK+24*(t-3) if t<6 else OX)
def RB(t): return [P0,VF,VF+24][t]
def Preg(st,t): return P0+8*t+4*st if t<6 else P6
def W1(i): return KF+4*i if i<12 else XF+4*(i-12)
def W2(i): return VF+4*i if i<12 else T2+4*(i-12)
nst=[0]
def stamp(idx):
    if not DIAG: return []
    return ["s_memrealtime s[66:67]","s_memtime s[68:69]","s_waitcnt lgkmcnt(0)",f"s_mov_b32 s{72+2*idx}, s66",f"s_mov_b32 s{73+2*idx}, s68"]
def stampdump():
    if not DIAG: return []
    o=["s_lshl_b32 s66, s2, 2","s_add_u32 s66, s66, s44","s_lshl_b32 s66, s66, 6",f"s_add_u32 s66, s66, {0x100000}","v_mov_b32 v20, 0"]
    for i in range(8):
        o+=[f"v_mov_b32 v22, s{72+2*i}",f"v_mov_b32 v23, s{73+2*i}",f"buffer_store_dwordx2 v[22:23], v20, {SR(sW)}, s66 offen offset:{8*i}","s_nop 1"]
    return o

def kload(stage,f):
    v,o=(3,f*1024) if f<4 else (4,(f-4)*1024)
    return f"buffer_load_dwordx4 {R(KF+24*stage+4*f,4)}, v{v}, {SR(sW)}, s60 offen offset:{o}"
def vload(stage,ct):
    v,o=(4,2048+ct*1024) if ct<2 else (5,(ct-2)*1024)
    return f"buffer_load_dwordx4 {R(VF+24*stage+4*ct,4)}, v{v}, {SR(sW)}, s60 offen offset:{o}"
def slots_of(qg):
    a=[(0,t) for t in range(6)]+([(0,6)] if qg==0 else [])
    b=[(1,t) for t in range(6)]+([(1,6)] if qg==1 else [])
    return a+b
def colorf(N): return (lambda n: (n%13)%2 if n%13<12 else 2) if N==13 else (lambda n: n%2)
def qk(c,st,t):
    S=S0+8*c
    return [M16(S+4*k, KF+24*st+4*(3*k+j), XF+12*t+4*j, MM+4*t if j==0 else None) for k in range(2) for j in range(3)]
def pv(st,t):
    P=Preg(st,t)
    o=[M16(Oreg(t)+4*q, VF+24*st+4*q, P) for q in range(6)]
    if t==6: o.append(M16(LL+4*t, ONES, P))
    elif st==1: o.append(f"v_smfmac_f32_16x16x64_bf16 {R(LL+4*t,4)}, {R(ONES,4)}, {R(P0+8*t,8)}, v{IDX}")
    return o
def expgaps(c,st,t,n=13):
    S=S0+8*c; P=Preg(st,t)
    E=lambda j: f"v_exp_f32 v{S+j}, v{S+j}"
    C=lambda j: f"v_cvt_pk_bf16_f32 v{P+j}, v{S+2*j}, v{S+2*j+1}"
    return [[E(0)],[E(1)],[E(2)],[E(3)],[E(4)],[C(0),C(1)],[E(5)],[E(6)],[E(7)],[],[C(2),C(3)],[],[]][:n]
def body(qg):
    sl=slots_of(qg); out=[]; NS=len(sl); color=colorf(NS)
    for n,(st,t) in enumerate(sl):
        idx=[i for i,(s2,_) in enumerate(sl) if s2==st]
        pos=n-idx[0]; last=len(idx)-1
        mm=qk(color(n),st,t)+pv(*sl[(n-2)%NS])
        g=expgaps(color(n-1),*sl[(n-1)%NS],n=len(mm)); fr=(9,11); e=len(mm)-1
        if pos in (0,1):
            for i in range(2): g[fr[i]].append(kload(1-st,2+2*pos+i))
        if pos==1: g[e].append("s_waitcnt vmcnt(6)")
        if pos in (2,3,4):
            for i in range(2): g[fr[i]].append(vload(1-st,2*(pos-2)+i))
        if pos==last-1:
            g[e if last==5 else 9].append(f"s_add_u32 s60, s60, {36864 if st==0 else 12288}")
            g[e].append("s_waitcnt vmcnt(6)")
        if pos==last and st==0:
            g[5].append(f"v_cmp_eq_u32 vcc, 0, v{FV}"); g[7]+=[f"s_cbranch_vccnz L_slow{qg}",f"L_back{qg}:"]
        if pos==2 and st==1: g[e].append("s_sub_u32 s61, s61, 1")
        if pos==3 and st==1: g[e]+=["s_cmp_eq_u32 s61, 6",f"s_cbranch_scc1 L_fv{qg}",f"L_fvb{qg}:"]
        if pos==last:
            for i in range(2): g[fr[i]].append(kload(st,i))
        if pos==last and st==1: g[10].append("s_cmp_lg_u32 s61, 0")
        if os.environ.get('NOLD'): g=[[x for x in y if not x.startswith('buffer_load')] for y in g]
        o=[f"; slot {n}: stage {st} tile {t}"]
        for i in range(len(mm)): o.append(mm[i]); o+=g[i]
        out.append(o)
    return out
def tail(qg):
    sl=slots_of(qg)
    order=[(0,0),(0,1),(0,2),(0,3),(1,0),(1,1),(1,2)]+([(qg,6)] if qg is not None else [])+[(0,4),(0,5),(1,3),(1,4),(1,5)]
    NS=len(sl); color=colorf(NS)
    seq=[sl[-2],sl[-1]]+order
    col=[color(NS-2),color(NS-1)]+[color(n) for n in range(NS)]
    out=[]; pend=[]
    def states_since(i): return sum((int(l.split()[1])+1 if l.startswith('s_nop') else 1) for l in out[i+1:] if not l.startswith(';'))
    def place(n):
        for _ in range(n):
            if pend and states_since(pend[0][0])>=8:
                out.append(pend.pop(0)[1])
                if pend and 'b128' not in pend[0][1] and states_since(pend[0][0])>=8: out.append(pend.pop(0)[1])
    def wr(t,q):
        if q<6: return f"ds_write_b128 v6, {R(Oreg(t)+4*q,4)} offset:{(6*t+q)*1024 if t<3 else (18+q)*1024}"
        if t==6: return f"ds_write_b32 v6, {R(LL+4*t)} offset:{24576+3072}"
        return f"ds_write_b64 v6, {R(LL+4*t,2)} offset:{24576+1024*t}"
    rd0=[f"ds_read_b64 {R(LRCV+4*t,2)}, v7 offset:{24576+1024*t}" for t in range(3)]+[f"ds_read_b128 {R(RB(0)+4*q,4)}, v7 offset:{q*1024}" for q in range(6)]
    rd1=[f"ds_read_b128 {R(RB(1)+4*q,4)}, v7 offset:{(6+q)*1024}" for q in range(6)]
    rds=[]
    nb=NS
    for k in range(nb+2):
        out.append(f"; tail slot {k}")
        mm=[]
        if k<nb: mm+=[(m,None) for m in qk(col[k+2],*seq[k+2])]
        st,t=seq[k]
        final = k>=2 and (t==6 or (t<3 and st==1))
        mm+=[(m,(t,q) if final else None) for q,m in enumerate(pv(st,t))]
        if k<nb: g=expgaps(col[k+1],*seq[k+1],n=len(mm))
        elif k==nb:
            f=[x for y in expgaps(col[k+1],*seq[k+1]) for x in y]; g=[f[2*i:2*i+2] for i in range(7)]
        else: g=[[] for _ in range(7)]
        fr=(9,11); e=len(mm)-1
        if k in (0,1):
            for i in range(2): g[fr[i]].append(kload(1,2+2*k+i))
        if k==1: g[e].append("s_waitcnt vmcnt(6)")
        if k in (2,3):
            for i in range(3): g[(7,9,11)[i]].append(vload(1,3*(k-2)+i))
        if k==3: g[e].append("s_waitcnt vmcnt(6)")
        if k==6: g[5].append("s_waitcnt vmcnt(0)")
        BS,BG=NS-1,8
        if k==BS: g[BG]+=["s_waitcnt lgkmcnt(0)","s_barrier"]
        for i,(m,w) in enumerate(mm):
            out.append(m)
            if w: pend.append((len(out)-1, wr(*w)))
            out+=g[i]
            if k==BS and i==BG: assert not pend; rds=rd0+rd1
            if k<BS or (k==BS and i<4):
                if i in ((2,5,9,11,12) if k<BS else (0,1,2,3)): place(1)
            elif not g[i]:
                for _ in range(3):
                    if rds: out.append(rds.pop(0))
    assert not pend and not rds, (pend,rds)
    return out

RBQ=[32,36,56,60,244,248]
LRG=[MM,MM+4,MM+12]
def ostore(t,u): return f"buffer_store_dwordx4 {R(OK+24*t+8*u,4)}, v{XO+t}, {SR(sO)}, s47 offen offset:{64*u} {OUTMOD}"
def wre(t):
    o=[f"ds_write_b128 v6, {R(Oreg(t)+4*q,4)} offset:{(6*t+q)*1024 if t<3 else (18+q)*1024}" for q in range(6)]
    return o+[f"ds_write_b32 v6, {R(LL+24)} offset:{24576+3072}" if t==6 else f"ds_write_b64 v6, {R(LL+4*t,2)} offset:{24576+1024*t}"]
def rd(t,Q): return [f"ds_read_b64 {R(LRG[t],2)}, v7 offset:{24576+1024*t}"]+[f"ds_read_b128 {R(Q[q],4)}, v7 offset:{(6*t+q)*1024}" for q in range(6)]
def lsume(t):
    r=LRG[t]
    return [f"v_accvgpr_read_b32 v{r+2}, {R(LL+12+4*t)}",f"v_accvgpr_read_b32 v{r+3}, {R(LL+13+4*t)}",f"v_add_f32 v{r}, v{r}, v{r+1}",f"v_add_f32 v{r+2}, v{r+2}, v{r+3}",
            f"v_add_f32 v{r+2}, v{r+2}, v{r}",f"v_rcp_f32 v{r+3}, v{r+2}"]
BAR=["s_waitcnt lgkmcnt(0)","s_barrier"]
TV=int(os.environ.get('TV','2'))
def tail_early(qg):
    sl=slots_of(qg); NS=len(sl); color=colorf(NS); X=[(qg,6)] if qg is not None else []
    order=[(0,0),(0,3),(0,1),(0,4),(1,0),(1,3),(1,1),(1,4),(0,2),(1,2)]+X+[(0,5),(1,5)]
    seq=[sl[-2],sl[-1]]+order
    col=[color(NS-2),color(NS-1)]+[color(n) for n in range(NS)]
    def adds(t):
        o=["s_waitcnt lgkmcnt(4)"]+lsume(t)
        for i in range(24):
            if i==8: o.append("s_waitcnt lgkmcnt(0)")
            o.append(f"v_add_f32 v{OK+24*t+i}, v{OK+24*t+i}, v{RBQ[i//4]+i%4}")
        return o
    def fin(t,u):
        o_=OK+24*t+8*u
        return [f"v_mul_f32 v{o_+i}, v{o_+i}, v{LRG[t]+3}" for i in range(8)]+[f"v_cvt_pk_bf16_f32 v{o_+i}, v{o_+2*i}, v{o_+2*i+1}" for i in range(4)]+[ostore(t,u)]
    plan={7:[(2,8,wre(0)),(12,12,BAR)],
          8:[(0,3,rd(0,RBQ)),(6,12,adds(0))],
          9:[(2,8,wre(1)),(0,12,fin(0,0)+fin(0,1)),(12,12,BAR)],
          10:[(0,3,rd(1,RBQ)),(0,5,fin(0,2)),(6,12,adds(1))],
          11:[(0,12,fin(1,0)+fin(1,1))]}
    if X:
        plan.update({12:[(2,8,wre(2)),(0,12,fin(1,2)),(12,12,BAR)],13:[(0,6,rd(2,RBQ)),(2,6,wre(6))],14:[(6,6,BAR)]})
    else:
        plan.update({12:[(1,5,wre(2)),(0,6,fin(1,2))],13:[(2,2,BAR),(3,6,rd(2,RBQ))]})
    out=[]
    for k in range(NS+2):
        out.append(f"; tail slot {k}")
        mm=(qk(col[k+2],*seq[k+2]) if k<NS else [])+pv(*seq[k])
        if k<NS: g=expgaps(col[k+1],*seq[k+1],n=len(mm))
        elif k==NS:
            f=[x for y in expgaps(col[k+1],*seq[k+1]) for x in y]; g=[f[2*i:2*i+2] for i in range(len(mm))]; g[-1]+=["s_nop 0"]
        else: g=[[] for _ in range(7)]
        fr=(9,11); e=len(mm)-1
        if k in (0,1):
            for i in range(2): g[fr[i]].append(kload(1,2+2*k+i))
        if k==1: g[e].append("s_waitcnt vmcnt(6)")
        if k in (2,3):
            for i in range(3): g[(7,9,11)[i]].append(vload(1,3*(k-2)+i))
        if k==3: g[e].append("s_waitcnt vmcnt(6)")
        if k==6: g[5].append("s_waitcnt vmcnt(0)")
        for (g0,g1,items) in plan.get(k,[]):
            g1=min(g1,e); g0=min(g0,e)
            cost=lambda x: 8 if x.startswith('v_exp') else 4
            load=[sum(cost(x) for x in g[i]) for i in range(len(g))]
            tot=sum(load[g0:g1+1])+4*len(items); n=g1-g0+1
            acc=0; j=0
            for i in range(g0,g1+1):
                acc+=load[i]
                while j<len(items) and (acc+2<=tot*(i-g0+1)/n or i==g1):
                    g[i].append(items[j]); acc+=4; j+=1
        for i,m in enumerate(mm): out.append(m); out+=g[i]
    return out

XR=MM
def common_setup():
    o=["v_and_b32 v8, 15, v0","v_lshrrev_b32 v9, 4, v0","v_lshlrev_b32 v9, 4, v9",
       f"v_lshlrev_b32 v{FA}, 7, v8",f"v_add_u32 v{FA}, {FLG+4096}, v{FA}",
       "v_lshlrev_b32 v3, 4, v0","v_add_u32 v4, 4096, v3","v_add_u32 v5, 8192, v3",
       f"s_mul_i32 s48, s44, {REG}","v_add_u32 v6, s48, v3","s_xor_b32 s48, s44, 2",f"s_mul_i32 s48, s48, {REG}","v_add_u32 v7, s48, v3",
       "s_mul_i32 s48, s45, 96","s_mul_i32 s49, s46, 48","s_add_u32 s50, s48, s49",
       "s_sub_u32 s49, 48, s49","s_add_u32 s49, s48, s49",
       "s_mov_b32 s51, 37632",f"s_mov_b32 s52, {-2304}",f"s_mov_b32 s53, {21504-2688}",f"v_add_u32 v13, {XI}, v9"]
    for t in range(6):
        o+=[f"s_add_u32 s48, s{49 if t<3 else 50}, {16*(t%3)}","v_add_u32 v10, s48, v8"]
        o+=["v_mul_u32_u24 v11, 4682, v10","v_mul_u32_u24 v10, 192, v10","v_lshrrev_b32 v12, 17, v11","v_bfe_u32 v11, v11, 16, 1"]
        if 3<=t<6: o+=[f"v_mad_u32_u24 v14, v12, s51, v10",f"v_add_u32 v{XO+t-3}, v14, v9"]
        o+=["v_mad_i32_i24 v10, v12, s52, v10","v_mad_u32_u24 v10, v11, s53, v10",f"v_add_u32 v{XR+t}, v10, v13"]
    o+=["v_lshrrev_b32 v10, 2, v8","v_and_b32 v11, 3, v8","v_mul_u32_u24 v10, 5376, v10","v_mul_u32_u24 v11, 192, v11","v_add3_u32 v10, v10, v11, v9",
        f"v_add_u32 v{XOUT}, {6*43008+24*192}, v10","s_min_u32 s48, s44, 2","s_lshl_b32 s48, s48, 11",f"v_add_u32 v{XA}, s48, v3"]
    return o
assert all((q*4682)>>16==q//14 and (q*4682)>>17==q//28 for q in range(208))
assert all((c*5462)>>16==c//12 for c in range(192))
def xreads(): return [f"ds_read_b128 {R(XF+12*t+4*s,4)}, v{XR+t} offset:{64*s}" for t in range(6) for s in range(3)]
def xshared(): return srd(sX,4,XB)+[f"buffer_load_dwordx4 {R(XF+72+4*s,4)}, v{XOUT}, {SR(sX)}, s3 offen offset:{64*s}" for s in range(3)]
def init_acc():
    return [f"v_accvgpr_write_b32 a{r}, 0" for r in range(96)]+[f"v_accvgpr_write_b32 {R(LL+r)}, 0" for r in range(28)]+[f"v_mov_b32 v{r}, 0" for r in range(OK,OK+72)]
def init_const():
    return [f"v_mov_b32 v{MM+r}, 0" for r in range(28)]
def dma_loop(label, vs, srdreg, step, mod=""):
    return [label+":","s_mov_b32 m0, s49","s_add_u32 s49, s49, 3072"]+\
           [f"buffer_load_dwordx4 v{vs[j]}, {SR(srdreg)}, s48 offen offset:{1024*j} {mod} lds" for j in range(3)]+\
           [f"s_add_u32 s48, s48, {step}","s_cmp_lt_u32 s49, s50",f"s_cbranch_scc1 {label}"]

ZWG=int(os.environ.get('ZWG','254'))
ORD=int(os.environ.get('ORD','1'))
EB=int(os.environ.get('EB','1'))
SPLIT=int(os.environ.get('SPLIT','3'))
FSH=int(os.environ.get('FSH','5'))
NE=int(os.environ.get('NE','64'))
N="standalone__window_attn_twins__vision_kernel"
PF="buffer_load_dwordx4 a[252:255], v9, s[88:91], 0 offen" if int(os.environ.get("PF","1")) else "s_nop 0"
entry=(["s_memrealtime s[96:97]"] if os.environ.get('P4') else [])+["s_cmp_ge_u32 s2, 256","s_cbranch_scc1 L_done",
  "s_load_dwordx8 s[4:11], s[0:1], 0","s_load_dwordx4 s[12:15], s[0:1], 32","s_load_dwordx2 s[16:17], s[0:1], 48",
  "s_getpc_b64 s[88:89]","L_pc:","s_lshr_b32 s47, s2, 3","s_lshl_b32 s48, s47, 12","v_lshl_add_u32 v9, v0, 4, s48","s_mov_b32 s90, L_end-L_pc","s_mov_b32 s91, 0x00020000",
  "v_and_b32 v9, 0x7fff, v9","v_lshrrev_b32 v8, 6, v0","v_and_b32 v0, 63, v0",
  PF,"v_lshlrev_b32 v20, 4, v0","v_readfirstlane_b32 s44, v8",f"v_mov_b32 v18, {OOB}",
  "s_and_b32 s48, s2, 7","s_mul_i32 s47, s47, 301056","s_mul_i32 s48, s48, 5376","s_add_u32 s47, s47, s48",
  f"s_mov_b32 s{sA+3}, 0x00020000",
  "s_cmp_ge_u32 s44, 2","s_cbranch_scc1 L_wpath"]
LM=int(os.environ.get('LM','1'))
ids=["s_and_b32 s95, s2, 3","s_mul_i32 s3, s95, 5376","s_sub_u32 s3, s47, s3"]+({0:[],1:["s_lshr_b32 s45, s2, 2","s_and_b32 s45, s45, 2","s_xor_b32 s95, s95, s45"],2:["s_lshr_b32 s45, s2, 3","s_and_b32 s45, s45, 3","s_xor_b32 s95, s95, s45"]}[LM])+["s_and_b32 s45, s44, 1","s_lshr_b32 s46, s44, 1","s_mul_i32 s63, s46, 24576","s_mov_b32 s62, 0","v_and_b32 v16, 15, v0","v_lshrrev_b32 v17, 4, v0"]
pool0=["v_cmp_gt_u32 vcc, 40, v0","s_mul_i32 s48, s44, 2688","s_add_u32 s48, s48, s47","s_mul_i32 s49, s44, 21504",f"s_add_u32 s49, s49, {XI}","s_add_u32 s50, s49, 21504",
  "v_cndmask_b32 v21, v18, v20, vcc",f"s_mov_b32 s{sA+2}, {XB}","s_waitcnt lgkmcnt(0)",f"s_mov_b32 s{sA}, s4",f"s_mov_b32 s{sA+1}, s5"]+stamp(0)
pool0+=([f"s_sleep {os.environ['PDELAY']}"] if os.environ.get('PDELAY') else [])+([f"s_setprio {os.environ.get('PRIO','1')}"])+srd(sW,16,WSB)+["s_lshl_b32 s59, s2, 2","s_add_u32 s59, s59, s44",f"s_cmp_lg_u32 s59, {4*ZWG+1}","s_cbranch_scc1 L_nz0"]
pz=["v_lshlrev_b32 v29, 7, v0"]+[f"v_mov_b32 v{32+i}, 0" for i in range(4)]+[f"s_mov_b32 s51, {FLG}",f"buffer_store_dwordx4 v[32:35], v29, {SR(sW)}, s51 offen sc1",
    f"s_mov_b32 s51, {FLG+8192}",f"v_lshlrev_b32 v29, {max(FSH,4)}, v0",f"buffer_store_dwordx4 v[32:35], v29, {SR(sW)}, s51 offen sc1"]
pool1=["L_nz0:"]+([f"s_cmp_lt_u32 s2, {NE}","s_cbranch_scc1 L_xdma","s_barrier"] if ORD else [])+dma_loop("L_xdma",[20,20,21],sA,43008,PMOD)+([f"s_cmp_ge_u32 s2, {NE}","s_cbranch_scc1 L_pool","s_barrier"] if ORD and EB else [])+["s_branch L_pool"]
PX=VF
pool=["s_setprio 0"]+srd(sD,14,256)+[f"s_cmp_lg_u32 s59, {4*ZWG+1}","s_cbranch_scc1 L_nrd","v_mov_b32 v32, 1","v_mov_b32 v33, 0","s_waitcnt vmcnt(21)","s_mov_b64 exec, 1",
     f"buffer_store_dword v32, v33, {SR(sD)}, 0 offen sc1","s_mov_b64 exec, -1","L_nrd:"]+ids+srd(sO,12,OUTSZ)
pool+=["v_and_b32 v21, 1, v16","v_lshlrev_b32 v21, 4, v21","v_mov_b32 v22, 0x3f80","v_lshlrev_b32 v21, v21, v22","v_lshrrev_b32 v22, 1, v16"]
for d in range(8): pool+=[f"v_cmp_eq_u32 vcc, {d}, v22","s_nop 1",f"v_cndmask_b32 v{24+d}, 0, v21, vcc"]
pool+=[f"v_mov_b32 v8, {FLAG}","v_mov_b32 v9, 0","ds_write_b32 v8, v9"]
pool+=["v_lshrrev_b32 v21, 1, v17","v_mul_u32_u24 v21, 192, v21","v_lshl_add_u32 v21, v16, 4, v21","v_and_b32 v22, 1, v17","v_lshl_add_u32 v21, v22, 3, v21",
       "s_mul_i32 s48, s44, 384",f"s_add_u32 s48, s48, {XS}","v_add_u32 v21, s48, v21","v_cmp_gt_u32 s[54:55], 12, v16",
       "s_sub_u32 s50, s50, 21504","v_lshl_add_u32 v39, v16, 4, s50","v_mul_u32_u24 v36, 192, v17","v_add_u32 v36, v36, v39","v_cmp_gt_u32 vcc, 3, v17",
       "v_add_u32 v39, 2688, v39","v_add_u32 v37, 768, v36",f"v_add_u32 v38, {768+1344}, v36","v_cndmask_b32 v37, v39, v37, vcc","v_cndmask_b32 v38, v39, v38, vcc"]
pool+=stamp(1)
PX=OK
def prd(r):
    b=PX+16*r
    return [f"ds_read_b128 {R(b,4)}, v36 offset:{3072*r}",f"ds_read_b128 {R(b+4,4)}, v37 offset:{3072*r}",
            f"ds_read_b128 {R(b+8,4)}, v36 offset:{3072*r+1344}",f"ds_read_b128 {R(b+12,4)}, v38 offset:{3072*r}"]
def pmm(r): return [M16(32, 24+4*(j//2), PX+16*r+4*j, "0" if (r,j)==(0,0) else None) for j in range(4)]
for r in range(7):
    pool+=[f"s_waitcnt vmcnt({3*(6-r)})"]+prd(r)
    if r>=2: pool+=["s_waitcnt lgkmcnt(8)"]+pmm(r-2)
pool+=["s_waitcnt lgkmcnt(4)"]+pmm(5)
m=pmm(6)
for j in range(4): pool+=[f"s_waitcnt lgkmcnt({3-j})",m[j]]
pool+=["s_nop 7"]+[f"v_mul_f32 v{32+i}, {f32(1/49)}, v{32+i}" for i in range(4)]
pool+=["v_cvt_pk_bf16_f32 v32, v32, v33","v_cvt_pk_bf16_f32 v33, v34, v35","s_mov_b64 exec, s[54:55]","ds_write_b64 v21, v[32:33]","s_mov_b64 exec, -1",
       "s_waitcnt lgkmcnt(0)"]+stamp(2)+["s_barrier"]
pool+=common_setup()+xshared()+xreads()+init_const()+init_acc()
pool+=(stamp(3) if not os.environ.get('P2') else [])+["s_branch L_go"]
wp0=["s_sub_u32 s54, s44, 2"]
for j in range(3):
    wp0+=[f"v_add_u32 v19, {64*j}, v0","v_mul_u32_u24 v24, 5462, v19","v_lshlrev_b32 v19, 4, v19","v_lshrrev_b32 v24, 16, v24",
          "v_mul_u32_u24 v24, 192, v24",f"v_add3_u32 v{21+j}, v24, v19, s{[92,93,94][j]}"]
wp0=[f"s_mov_b32 s92, 0","s_mov_b32 s93, -1024","s_mov_b32 s94, -2048"]+wp0
wp0+=["s_mul_i32 s48, s54, 192","s_mul_i32 s49, s54, 36864","s_add_u32 s50, s49, 18432",f"s_mov_b32 s{sA+2}, 36864",
     "s_waitcnt lgkmcnt(0)",f"s_mov_b32 s{sA}, s8",f"s_mov_b32 s{sA+1}, s9"]
TLB=int(os.environ.get('TLB','0'))
tlb=srd(sW,16,WSB)+srd(sD,14,256)+srd(sO,12,OUTSZ)+["v_mov_b32 v25, 0",f"s_mov_b32 s51, {0x70000}","s_mov_b64 exec, 1",f"buffer_load_dword v26, v25, {SR(sW)}, s51 offen sc1",
     f"buffer_load_dword v27, v25, {SR(sD)}, 0 offen offset:128 sc1",f"buffer_load_dword v28, v25, {SR(sO)}, s47 offen","s_add_u32 s51, s47, 290000",f"buffer_load_dword v29, v25, {SR(sO)}, s51 offen","s_mov_b64 exec, -1"]
wp=stamp(0)+(tlb if TLB else [])+([f"s_sleep {os.environ['WDELAY']}"] if os.environ.get('WDELAY') else [])
if ORD:
    wp+=([f"s_cmp_ge_u32 s2, {NE}","s_cbranch_scc1 L_nb1","s_barrier","L_nb1:"] if EB else [])+[f"s_add_u32 s50, s49, {3072*SPLIT}"]+dma_loop("L_w1a",[21,22,23],sA,6144)
    wp+=[f"s_cmp_lt_u32 s2, {NE}","s_cbranch_scc1 L_nb2","s_barrier","L_nb2:",f"s_add_u32 s50, s49, {3072*(6-SPLIT)}"]+dma_loop("L_w1b",[21,22,23],sA,6144)
else: wp+=dma_loop("L_w1dma",[21,22,23],sA,6144)
wp+=["s_cmp_eq_u32 s54, 0",f"s_cselect_b32 s{sB}, s6, s10",f"s_cselect_b32 s{sB+1}, s7, s11",f"s_mov_b32 s{sB+2}, 18432",f"s_mov_b32 s{sB+3}, 0x00020000",
     "s_mov_b32 s48, 0"]
IA=init_acc()
EI=int(os.environ.get('EI','1'))
if EI: wp+=[f"s_cmp_ge_u32 s2, {NE}","s_cbranch_scc1 L_w2u","s_add_u32 s50, s49, 18432"]+dma_loop("L_w2dma",[20,20,20],sB,3072)+["s_branch L_w2e","L_w2u:"]
for i in range(18):
    if i%3==0: wp+=["s_mov_b32 m0, s49","s_add_u32 s49, s49, 3072"]
    wp.append(f"buffer_load_dwordx4 v20, {SR(sB)}, s48 offen offset:{1024*(i%3)} lds")
    if i%3==2: wp.append("s_add_u32 s48, s48, 3072")
    wp+=IA[len(IA)*i//17:len(IA)*(i+1)//17] if i<17 else []
wj=(["L_w2e:"] if EI else [])+ids+(srd(sW,16,WSB)+srd(sD,14,256) if not TLB else [])
wj+=["s_mul_i32 s55, s54, 36864","v_lshrrev_b32 v22, 2, v16","v_and_b32 v23, 3, v16",
     "v_lshl_add_u32 v44, v17, 3, v22","v_mul_u32_u24 v44, 192, v44","v_lshl_add_u32 v44, v23, 4, v44","v_add_u32 v44, s55, v44",
     "v_lshl_add_u32 v47, v22, 3, v23","v_mul_u32_u24 v47, 192, v47","v_lshl_add_u32 v47, v17, 4, v47",
     "v_mul_u32_u24 v45, 192, v23","v_lshl_add_u32 v45, v17, 4, v45",f"v_add_u32 v45, {XS}, v45",
     "v_cmp_gt_u32 vcc, 4, v16","v_cmp_gt_u32 s[52:53], 16, v0","s_cmp_eq_u32 s54, 0","s_cselect_b64 vcc, vcc, s[52:53]","s_nop 1","v_cndmask_b32 v46, v18, v20, vcc",
     "s_lshr_b32 s56, s2, 3","s_mul_i32 s56, s56, 12288","s_bfe_u32 s57, s2, 0x10002","s_and_b32 s58, s2, 3"]
wj+=stamp(1)+["s_waitcnt vmcnt(18)"]
for nt in range(6):
    for s_ in range(3):
        for h in range(2): wj.append(f"ds_read_b64_tr_b16 {R(W1(3*nt+s_)+2*h,2)}, v44 offset:{(32*s_+4*h)*192+base(nt)*2}")
D1=8; XSF=XF+24; KB=32
wj+=["s_waitcnt lgkmcnt(0)"]+stamp(2)+["s_cmp_eq_u32 s54, 0","s_cbranch_scc0 L_vp"]
def step1(rd):
    o=["s_barrier"]+[f"ds_read_b128 {R(XSF+4*s_,4)}, v45 offset:{64*s_}" for s_ in range(3)]+["s_waitcnt vmcnt(0)","s_waitcnt lgkmcnt(0)"]+(stamp(1) if os.environ.get('P1') else [])
    per=len(rd)//18
    for nt in range(6):
        for s_ in range(3):
            o.append(M16(D1+4*nt, W1(3*nt+s_), XSF+4*s_, "0" if s_==0 else None))
            o+=rd[per*(3*nt+s_):per*(3*nt+s_+1)]
    for u in range(3):
        if u==2: o.append("s_nop 1")
        for e in range(2):
            for z in range(2): o.append(f"v_cvt_pk_bf16_f32 v{KB+4*u+2*e+z}, v{D1+8*u+4*e+2*z}, v{D1+8*u+4*e+2*z+1}")
    return o+["s_waitcnt lgkmcnt(0)","v_mov_b32 v47, 0",f"buffer_load_dword v45, v47, {SR(sD)}, 0 offen sc1"]
wq=[f"ds_read_b128 {R(W2(3*ct+u),4)}, v47 offset:{18432+base(ct)*192+64*u}" for ct in range(6) for u in range(3)]
wtr=[f"ds_read_b64_tr_b16 {R(W2(3*ct+u)+2*h,2)}, v44 offset:{18432+(32*u+4*h)*192+base(ct)*2}" for ct in range(6) for u in range(3) for h in range(2)]
sc=f32(96**-0.5*math.log2(math.e))
kp=step1(wq)+[M16(D1+4*ct, W2(3*ct+u), KB+4*u, "0" if u==0 else None) for ct in range(6) for u in range(3)]
kp+=[f"s_mov_b32 s50, {sc}",f"s_mov_b32 s51, {sc}","s_mul_i32 s57, s57, 3072","s_add_u32 s56, s56, s57","s_lshl_b32 s58, s58, 6","s_add_u32 s56, s56, s58"]
for u in range(3):
    if u==2: kp.append("s_nop 1")
    kp+=[f"v_pk_mul_f32 {R(D1+8*u+2*i,2)}, {R(D1+8*u+2*i,2)}, s[50:51]" for i in range(4)]
    kp+=[f"v_cvt_pk_bf16_f32 v{KB+4*u+i}, v{D1+8*u+2*i}, v{D1+8*u+2*i+1}" for i in range(4)]
    kp.append(f"buffer_store_dwordx4 {R(KB+4*u,4)}, v46, {SR(sW)}, s56 offen offset:{1024*u} {KVMOD}")
kp+=["s_mov_b32 s94, 1","s_branch L_pj"]
vp=step1(wtr)+[M16(D1+4*ct, KB+4*u, W2(3*ct+u), "0" if u==0 else None) for ct in range(6) for u in range(3)]
vp+=["s_lshl_b32 s57, s57, 3","s_add_u32 s56, s56, s57","s_lshl_b32 s58, s58, 8","s_add_u32 s56, s56, s58","s_add_u32 s56, s56, 6144","s_add_u32 s57, s56, 4096"]
for ct in range(6):
    vp+=[f"v_cvt_pk_bf16_f32 v{D1+4*ct}, v{D1+4*ct}, v{D1+4*ct+1}",f"v_cvt_pk_bf16_f32 v{D1+4*ct+1}, v{D1+4*ct+2}, v{D1+4*ct+3}",
         f"buffer_store_dwordx2 {R(D1+4*ct,2)}, v46, {SR(sW)}, s{56 if ct<4 else 57} offen offset:{1024*(ct%4)} {KVMOD}"]
if os.environ.get('MOCK'):
    keep=lambda L: [x for x in L if not (x.startswith('v_mfma') or x.startswith('ds_read_b64_tr') or (x.startswith('ds_read_b128') and 'v47' in x) or x=="s_waitcnt vmcnt(0)" or x.startswith('v_pk_mul') or x.startswith('v_cvt'))]
    kp=keep(kp); vp=keep(vp); wj=[x for x in keep(wj) if x!="s_waitcnt vmcnt(18)"]
    wp=stamp(0)
vp+=["s_mov_b32 s50, 0x7fff7fff"]+[f"v_and_b32 v{KB+2*ct+h}, s50, v{D1+4*ct+h}" for ct in range(6) for h in range(2)]
vp+=[f"v_pk_max_u16 v{KB+i}, v{KB+i}, v{KB+6+i}" for i in range(6)]+[f"v_pk_max_u16 v{KB+i}, v{KB+i}, v{KB+3+i}" for i in range(3)]
vp+=[f"v_pk_max_u16 v{KB}, v{KB}, v{KB+1}",f"v_pk_max_u16 v{KB}, v{KB}, v{KB+2}",f"v_lshrrev_b32 v{KB+1}, 16, v{KB}",f"v_and_b32 v{KB}, 0xffff, v{KB}",f"v_max_u32 v{KB}, v{KB}, v{KB+1}",
     f"v_cmp_lt_u32 vcc, {(127+30)<<7}, v{KB}","s_mov_b32 s94, 1","s_cmp_lg_u64 vcc, 0","s_cselect_b32 s94, 0x10001, s94"]
PRE=srd(sO,12,OUTSZ)+common_setup()+xreads()
EARLY=int(os.environ.get('EARLY','1'))
pj=(stamp(5) if os.environ.get('P1') else [])+(PRE if EARLY else [])+["s_lshr_b32 s48, s2, 4","s_lshl_b32 s48, s48, 7",f"s_add_u32 s48, s48, {FLG}","v_mov_b32 v44, 1","s_mov_b32 s49, 0x200000",
    f"s_lshl_b32 s57, s2, {FSH-2}","s_add_u32 s57, s57, s54","s_lshl_b32 s57, s57, 2",f"s_add_u32 s57, s57, {FLG+8192}",
    "s_mov_b64 exec, 1","s_waitcnt vmcnt(0)"]+(stamp(6) if os.environ.get('P1') else [])
wr_=["v_cmp_ne_u32 vcc, 0, v45","s_sub_u32 s49, s49, 1","s_cbranch_scc1 L_arr","s_cbranch_vccnz L_arr",f"buffer_load_dword v45, v47, {SR(sD)}, 0 offen sc1","s_waitcnt vmcnt(0)","s_branch L_wr"]
NSH=int(os.environ.get('NSH','224'))
DIRECT=int(os.environ.get('DIRECT','1'))
arr=([f"s_cmp_ge_u32 s2, {NE}","s_cbranch_scc1 L_nd",f"buffer_store_dword v44, v47, {SR(sW)}, s57 offen sc1","L_nd:"] if DIRECT else [])
PL=f"buffer_load_dwordx2 v[12:13], v10, {SR(sW)}, 0 offen sc1"
INIT=init_const()+[f'v_accvgpr_write_b32 a{252+h}, 0' for h in range(4)]+([f"s_cmp_ge_u32 s2, {NE}","s_cbranch_scc1 L_ni"]+init_acc()+["L_ni:"] if EI else [])
LP=int(os.environ.get('LP','999'))
NP=int(os.environ.get('NP','999'))
arr+=["v_mov_b32 v43, s94",f"buffer_atomic_add v43, v47, {SR(sW)}, s48 offen sc0 sc1","s_mov_b64 exec, -1","s_add_u32 s58, s48, 4096"]
arr+=[f"v_and_b32 v10, {NE-1}, v0",f"v_lshlrev_b32 v10, {FSH}, v10",f"v_add_u32 v10, {FLG+8192}, v10","v_mov_b32 v12, 1","v_mov_b32 v13, 1"]+(INIT[:NP]+["s_cmp_lg_u32 s54, 0","s_cbranch_scc1 L_np",PL,"L_np:"]+xshared()+INIT[NP:] if NP<999 else
   (["v_mov_b32 v12, s54","s_and_b32 s50, s2, 3","s_or_b32 s50, s50, s54"]+INIT[:LP]+["s_cmp_lg_u32 s50, 0","s_cbranch_scc1 L_np",PL,"L_np:"]+xshared()+INIT[LP:] if LP<999 else ["v_mov_b32 v12, s54"]+xshared()+INIT))
arr+=["s_mov_b64 exec, 1","s_waitcnt vmcnt(3)",
  "v_add_u32 v43, s94, v43","v_and_b32 v44, 0xffff, v43","v_lshrrev_b32 v45, 16, v43","v_cmp_eq_u32 vcc, 32, v44","v_add_u32 v45, 1, v45","s_and_b64 exec, exec, vcc","s_cbranch_execz L_nl",
  f"buffer_store_dword v45, v47, {SR(sW)}, s58 offen sc1","L_nl:","s_mov_b64 exec, -1"]+(stamp(3) if not os.environ.get('P2') else [])
WARM=int(os.environ.get('WARM','1'))
warm=["s_lshr_b32 s50, s2, 3","s_mul_i32 s50, s50, 1536",f"buffer_load_dwordx4 v[16:19], v3, {SR(sW)}, s50 offen sc1",f"buffer_load_dwordx4 v[20:23], v3, {SR(sW)}, s50 offen offset:512 sc1"]
if WARM==1: arr+=["; wave 3: pull a slice of the first key steps into this die's L2 (values unused; L1 bypassed)","s_cmp_eq_u32 s54, 0","s_cbranch_scc1 L_nw"]+warm+["L_nw:"]
if WARM==2:
    i=arr.index("s_waitcnt vmcnt(3)"); arr[i]="s_waitcnt vmcnt(5)"; arr[i-1:i-1]=warm
arr+=["s_mov_b32 s49, 0x200000"]+(["s_cmp_eq_u32 s54, 0","s_cbranch_scc1 L_poll1","s_branch L_go"] if NP>=999 and LP>=999 else ["s_branch L_chk"])
SLEEP=int(os.environ.get('SLEEP','6'))
poll=([f"s_sleep {SLEEP}"] if SLEEP else [])+["L_poll1:",PL,"s_sub_u32 s49, s49, 1","s_cbranch_scc1 L_go","s_waitcnt vmcnt(0)",
  "L_chk:","v_and_b32 v12, v12, v13","v_cmp_ne_u32 vcc, 1, v12","s_nop 1","s_cbranch_vccnz L_poll"]
CONSTS=["v_and_b32 v8, 1, v0","v_mul_u32_u24 v8, 0xaaaa, v8",f"v_add_u32 v{IDX}, 0x4444, v8",f"v_mov_b32 v{FV}, 1"]+[f"v_mov_b32 v{ONES+r}, 0x3f803f80" for r in range(4)]
go=(CONSTS if not int(os.environ.get('CG','0')) else [])+["s_waitcnt lgkmcnt(0)","s_barrier"]+stamp(4)
PRO=int(os.environ.get('PRO','2'))
q0=qk(0,0,0); q1=qk(1,0,1); ev=[x for y in expgaps(0,0,0) for x in y]
K1=[kload(1,f) for f in range(6)]
pas=["s_mov_b32 s60, s63"]+[kload(0,f) for f in range(6)]+[vload(0,c) for c in range(6)]+["s_add_u32 s60, s60, 12288","s_mov_b32 s61, 7"]
if PRO==1:
    pas+=["s_waitcnt vmcnt(9)"]+q0[:3]+["s_waitcnt vmcnt(6)"]
    for i in range(3): pas+=[q0[3+i],K1[i]]
    for i in range(3): pas+=[q1[i],K1[3+i]]
elif PRO==2:
    pas+=["s_waitcnt vmcnt(11)",q0[0],"s_waitcnt vmcnt(10)",q0[1],"s_waitcnt vmcnt(9)",q0[2],q1[0],q1[1],q1[2],"s_waitcnt vmcnt(6)"]
    for i in range(3): pas+=[q0[3+i],K1[2*i],K1[2*i+1]]
pas+=stamp(5)+["s_cmp_lg_u32 s95, 0"]+(["s_nop 0"] if PRO==2 else [])+ev[0:2]+[q1[3]]+ev[2:4]+[q1[4]]+(["s_nop 1"] if PRO==2 else [])+ev[4:6]+[q1[5]]+ev[6:]+["s_waitcnt vmcnt(6)","s_cbranch_scc1 L_s2_2","s_cmp_eq_u32 s45, 0","s_cbranch_scc0 L_s2_1","s_branch L_s2_0"]
def chk(reg): return [f"v_cmp_nle_f32 vcc, s48, v{reg}","s_or_b64 s[64:65], s[64:65], vcc",f"v_cmp_nge_f32 vcc, s49, v{reg}","s_or_b64 s[64:65], s[64:65], vcc"]
LR=LRCV
epi=(stamp(6) if not os.environ.get('P1') else [])+[f"s_mov_b32 s48, {f32(2.0**-20)}",f"s_mov_b32 s49, {f32(2.0**90)}","s_mov_b64 s[64:65], 0","s_waitcnt lgkmcnt(6)"]
XP=P0
epi+=[f"v_add_u32 v28, {2*REG}, v{XA}",f"v_add_u32 v29, {2*REG}, v3"]
late=[f"ds_read_b128 {R(RB(2)+4*q,4)}, v7 offset:{(12+q)*1024}" for q in range(6)]+[None]*3
late+=[f"ds_read_b32 v{24+w}, v{3 if w<2 else 29} offset:{(w%2)*REG+27648}" for w in range(4)]
late+=[f"ds_read_b128 {R(XP+8*w+4*e,4)}, v{XA if w<2 else 28} offset:{(w%2)*REG+18432+1024*e}" for w in range(4) for e in range(2)]
def lsum(t):
    r=LR+4*t
    return [f"v_accvgpr_read_b32 v{r+2}, {R(LL+12+4*t)}",f"v_accvgpr_read_b32 v{r+3}, {R(LL+13+4*t)}",f"v_add_f32 v{r}, v{r}, v{r+1}",f"v_add_f32 v{r+2}, v{r+2}, v{r+3}",
            f"v_add_f32 v{r+2}, v{r+2}, v{r}",f"v_rcp_f32 v{r+3}, v{r+2}"]+(["s_nop 0",f"v_mul_f32 v{r+3}, {f32(float(os.environ['EPS']))}, v{r+3}"] if os.environ.get('EPS') else [])
epi+=lsum(0)
OMS=[{'s':'sc1 nt','n':'nt','p':'','c':'sc1'}[c] for c in os.environ.get('OMS','sssssssss')]
issued=12; nan=[]
for t in range(3):
    for u in range(3):
        need=6*t+2*u+2
        if t>0: epi.append(f"s_waitcnt lgkmcnt({min(15,issued-need)})")
        o=OK+24*t+8*u; rb=RB(t)+8*u
        epi+=[f"v_pk_add_f32 {R(o+2*i,2)}, {R(o+2*i,2)}, {R(rb+2*i,2)}" for i in range(4)]
        for _ in range(3 if t<1 else 4):
            if late:
                x=late.pop(0)
                if x: epi.append(x); issued+=1
        if t<2 and u==1: epi+=lsum(t+1)
        epi+=[f"v_pk_mul_f32 {R(o+2*i,2)}, {R(o+2*i,2)}, {R(LR+4*t+2,2)} op_sel:[0,1] op_sel_hi:[1,1]" for i in range(4)]
        epi+=[f"v_cvt_pk_bf16_f32 v{o+i}, v{o+2*i}, v{o+2*i+1}" for i in range(4)]
        if os.environ.get('LINST'):
            epi+=["s_mul_i32 s50, s2, 37632","s_mul_i32 s51, s44, 9216","s_add_u32 s50, s50, s51",f"s_add_u32 s50, s50, {3072*t}",f"buffer_store_dwordx4 {R(o,4)}, v3, {SR(sO)}, s50 offen offset:{1024*u} {OUTMOD}"]
        else: epi.append(f"buffer_store_dwordx4 {R(o,4)}, v{XO+t}, {SR(sO)}, s47 offen offset:{64*u} {OMS[3*t+u]}")
        if os.environ.get('NOST'): epi.pop()
assert not late
epi+=["s_waitcnt lgkmcnt(0)","v_add_f32 v24, v24, v25","v_add_f32 v26, v26, v27","s_lshr_b32 s51, s44, 1","s_and_b32 s51, s51, s44","v_add_f32 v24, v24, v26","s_or_b32 s50, s95, s51","s_cbranch_scc1 L_nx"]
xe=["v_rcp_f32 v26, v24","s_lshl_b32 s50, s44, 6","s_add_u32 s50, s50, s3"]
xe+=[f"v_pk_add_f32 {R(XP+2*i,2)}, {R(XP+2*i,2)}, {R(XP+8+2*i,2)}" for i in range(4)]
xe+=[f"v_pk_add_f32 {R(XP+16+2*i,2)}, {R(XP+16+2*i,2)}, {R(XP+24+2*i,2)}" for i in range(4)]
xe+=[f"v_pk_add_f32 {R(XP+2*i,2)}, {R(XP+2*i,2)}, {R(XP+16+2*i,2)}" for i in range(4)]
xe+=[f"v_pk_mul_f32 {R(XP+2*i,2)}, {R(XP+2*i,2)}, v[26:27] op_sel_hi:[1,0]" for i in range(4)]
xe+=[f"v_cvt_pk_bf16_f32 v{8+i}, v{XP+2*i}, v{XP+2*i+1}" for i in range(4)]+[f"buffer_store_dwordx4 v[8:11], v{XOUT}, {SR(sO)}, s50 offen {OUTMOD}","L_nx:"]
epi+=xe
epi+=(["s_waitcnt vmcnt(0)"] if os.environ.get('P7') else [])+stamp(7)+(["s_mov_b32 s82, s96"] if os.environ.get('P4') else [])+(["s_getreg_b32 s75, hwreg(HW_REG_XCC_ID)"] if DIAG else [])+stampdump()
def pfin(t,u,Q):
    o=OK+24*t+8*u
    return [f"v_pk_add_f32 {R(o+2*i,2)}, {R(o+2*i,2)}, {R(Q[2*u+i//2]+2*(i%2),2)}" for i in range(4)]+\
           [f"v_pk_mul_f32 {R(o+2*i,2)}, {R(o+2*i,2)}, {R(LRG[t]+2,2)} op_sel:[0,1] op_sel_hi:[1,1]" for i in range(4)]+\
           [f"v_cvt_pk_bf16_f32 v{o+i}, v{o+2*i}, v{o+2*i+1}" for i in range(4)]+[ostore(t,u)]
epi2=stamp(6)+[f"s_mov_b32 s48, {f32(2.0**-20)}",f"s_mov_b32 s49, {f32(2.0**90)}","s_mov_b64 s[64:65], 0","s_waitcnt lgkmcnt(0)","s_nop 3"]+lsume(2)+pfin(2,0,RBQ)+pfin(2,1,RBQ)+pfin(2,2,RBQ)
epi2+=[f"v_mov_b32 v{LR+10}, v{LRG[2]+2}","s_branch L_nx"]
ok=["s_cmp_lg_u32 s62, 0","s_cbranch_scc1 L_done","s_cmp_lg_u32 s95, 0","s_cselect_b64 vcc, -1, 0",f"v_mov_b32 v20, {FLAG}","v_mov_b32 v21, 1","v_cndmask_b32 v24, v24, 1.0, vcc"]
ok+=chk(LR+2)+chk(LR+6)+chk(LR+10)+chk(24)+[f"v_cmp_lt_u32 vcc, 1, v{FV}","s_or_b64 s[64:65], s[64:65], vcc",
    "s_cmp_eq_u64 s[64:65], 0","s_cbranch_scc1 L_ok","ds_write_b32 v20, v21","L_ok:","s_waitcnt lgkmcnt(0)","s_barrier","ds_read_b32 v21, v20",
    "s_waitcnt lgkmcnt(0)","v_readfirstlane_b32 s48, v21","s_nop 3","s_cmp_eq_u32 s48, 0","s_cbranch_scc1 L_done"]
fb=["s_waitcnt vmcnt(0)"]+[f"v_mov_b32 v{MM+4*t}, 0xff800000" for t in range(7)]+["s_mov_b32 s60, s63","s_mov_b32 s61, 16"]
fbl=[kload(0,f) for f in range(6)]+["s_waitcnt vmcnt(0)"]
for t in range(7):
    fbl+=[M16(S0+4*k, KF+4*(3*k+j), XF+12*t+4*j, "0" if j==0 else None) for k in range(2) for j in range(3)]
    fbl+=["s_nop 7"]+[f"v_max3_f32 v{MM+4*t}, v{S0+2*i}, v{S0+2*i+1}, v{MM+4*t}" for i in range(4)]
fbl+=["s_bitcmp1_b32 s61, 0","s_cselect_b32 s48, 24576, 0","s_add_u32 s60, s60, s48","s_add_u32 s60, s60, 12288","s_sub_u32 s61, s61, 1","s_cmp_lg_u32 s61, 0","s_cbranch_scc1 L_fb"]
fb2=[f"ds_write_b32 v6, v{MM+4*t} offset:{1024*t}" for t in range(7)]
fb2+=["v_and_b32 v8, 0x300, v3","v_sub_u32 v9, v6, v8","v_sub_u32 v10, v7, v8","s_waitcnt lgkmcnt(0)","s_barrier"]
for t in range(7):
    tp=(t+3)%6 if t<6 else 6
    for G in range(4): fb2+=[f"ds_read_b32 v{12+G}, v9 offset:{1024*t+256*G}",f"ds_read_b32 v{16+G}, v10 offset:{1024*tp+256*G}"]
    fb2+=["s_waitcnt lgkmcnt(0)","v_max3_f32 v12, v12, v13, v14","v_max3_f32 v12, v12, v15, v16","v_max3_f32 v12, v12, v17, v18","v_max_f32 v12, v12, v19"]
    fb2+=[f"v_sub_f32 v{MM+4*t+i}, 0, v12" for i in range(4)]
fb2+=init_acc()+["s_barrier","s_mov_b32 s62, 1","s_branch L_pass"]


DOC=""";
; ---------------------------------------------------------------------------------------------
; Twins global sub-sampled attention, one fused launch, 256 workgroups x 4 waves (one per SIMD).
;
; Math (c = 96^-0.5 * log2(e)):  xs = bf16(mean7x7(x)),  [k|v] = bf16(xs wkv),
;   K' = bf16(c * k wq^T),  V' = bf16(v wo),  S = x K'^T (base-2 logits),  out = (exp2(S-m) V') / sum(exp2(S-m)).
;   wq and wo are folded into the 1024 keys instead of being applied to the 50176 queries.
;
; Phase 1  workgroup b owns windows 4b..4b+3 (7 rows x 28 pixels).  Waves 0,1 stream x into LDS and pool it with
;          one-hot MFMAs; waves 2,3 load the weights and compute K' / V' for the 4 keys, store them write-through
;          to d_ws in MFMA-fragment order, and signal (flag words in d_ws, cleared by workgroup 254 at the start of
;          every launch; d_debug[0] says "flags are cleared").
; Phase 2  flash-style sweep over 32-key steps.  wave = (query group, key half): 6 query tiles of 16 x 512 keys,
;          fragments straight from L2 into registers, 16x16x32 MFMAs, row sums by a sparse MFMA against ones.
;          The 4 left-over queries of workgroups 4j..4j+3 form one more tile, done by workgroup 4j + (j & 2).
; Phase 3  key halves are merged through LDS, normalised, stored.
;
; Softmax guard: pass 1 uses the stand-in m = 0 (the M registers, fed in as the accumulator of the QK MFMAs).
;   A run-time check decides whether that was safe: every row sum must lie in [2^-20, 2^90] and |V'| < 2^30, so no
;   exp2, product or sum overflowed and nothing that matters underflowed.  Otherwise the workgroup computes the true
;   row maxima (L_fb) and repeats phases 2 and 3 with m = true max.
; ---------------------------------------------------------------------------------------------""".split("\n")
flat=lambda x: [l for y in x for l in y]
B=[body(0),body(1),body(None)]; T=[tail(0),tail(1),tail_early(None)]
out=[]
HDR=open('standalone__window_attn_twins__vision.s.ref').read().split('\n')
out+=HDR[:10]
out.append(f"; @launch grid=(256,1,1) block=(256,1,1) lds={LDSB}")
out+=DOC
out+=['.amdgcn_target "amdgcn-amd-amdhsa--gfx950"',".text",f".globl {N}",".p2align 8",f".type {N},@function",f"{N}:"]
def E(lines,label=None,align=False):
    if align: out.append(".p2align 6")
    if label: out.append(label+":")
    out.extend(l if l.endswith(':') else "    "+l for l in lines)
E(["; entry: kernel arguments, ids, one load per wave that pulls this kernel's code into L2"]); E(entry); E(['; waves 0,1: x rows -> LDS (workgroups >= 64 let half of their first weight matrix go first, so that the']); E(["; keys needed first are ready first)"]); E(pool0); E(pz); E(pool1); E(['; waves 2 (K path), 3 (V path): weights -> LDS, fragments, two small GEMMs, write-through stores, arrival']); E(wp0,"L_wpath"); E(wp); E(wj); E(kp); E(vp,"L_vp"); E(pj,"L_pj"); E(wr_,"L_wr"); E(arr,"L_arr")
E(['; pooling by MFMA, xs -> LDS, then address set-up, x fragments and accumulator init']); E(pool,"L_pool")
E(['; wave 2 waits for the keys of the first two iterations (workgroups 0..63)']); E(poll,"L_poll"); E(go,"L_go"); E(['; first fragments, pipeline fill, jump into the loop variant (0/1: with the shared tile, 2: without)']); E(pas,"L_pass"); E(flat([[f"L_fv{q}:",f"buffer_load_dword v{FV}, v{FA}, {SR(sW)}, 0 offen sc1",f"s_branch L_fvb{q}"] for q in (0,1,None)]))
for q in (2,0,1):
    E(flat(B[q][:2]),f"L_loop{q}",True); E(flat(B[q][2:]),f"L_s2_{q}"); E([f"s_cbranch_scc1 L_loop{q}"]); E(stamp(3) if os.environ.get('P2') else []); E(T[q])
    if q==0: E(["s_branch L_epi"])
    if q==2: E(epi2)
def slow(q): return [f"L_slow{q}:","s_mov_b32 s49, 0x200000"]+(["s_mov_b32 s77, 1"] if DIAG else [])+[f"L_slowp{q}:",f"buffer_load_dword v{FV}, v{FA}, {SR(sW)}, 0 offen sc1","s_sub_u32 s49, s49, 1",f"s_cbranch_scc1 L_back{q}",
    "s_waitcnt vmcnt(0)",f"v_cmp_eq_u32 vcc, 0, v{FV}","s_nop 1",f"s_cbranch_vccnz L_slowp{q}",f"s_branch L_back{q}"]
E(['; merge key halves, normalise, store (write-through, so nothing is left to flush at the end); then the safety check']); E(epi,"L_epi"); E(ok); E(['; rare path: true row maxima, then repeat']); E(fb); E(fbl,"L_fb"); E(fb2); E(slow(0)+slow(1)+slow(None)); E(["s_endpgm","L_end:"],"L_done")
out+=['.section .rodata,"a"',".p2align 6",f".amdhsa_kernel {N}","  .amdhsa_next_free_vgpr 512","  .amdhsa_next_free_sgpr 100","  .amdhsa_accum_offset 256",
 "  .amdhsa_group_segment_fixed_size 0","  .amdhsa_kernarg_size 56","  .amdhsa_user_sgpr_count 2","  .amdhsa_user_sgpr_kernarg_segment_ptr 1",
 "  .amdhsa_system_sgpr_workgroup_id_x 1",".end_amdhsa_kernel"]
open(sys.argv[1],'w').write("\n".join(out)+"\n")
bad=0
bad+=hz.check(entry+pool0+pz+pool1+pool+go+pas,'pool')
bad+=hz.check(entry+wp0+wp+wj+kp+pj+wr_+arr+poll+go+pas,'kpath')
bad+=hz.check(entry+wp0+wp+wj+vp+pj+wr_+arr,'vpath')
for q in range(3):
    bad+=hz.check(pas+flat(B[q][2:])+["s_cbranch x"]+flat(B[q])+["s_cbranch x"]+T[q]+(epi if q<2 else epi2)+ok+fb+fbl+fbl+fb2+pas,f'main{q}')
print("hazards:",bad)
```

```python
import sys, struct, math, os
import hz
DIAG=int(os.environ.get('DIAG','0'))
OUTMOD=os.environ.get('OUTMOD','sc1 nt')
PMOD=os.environ.get('PMOD','nt')
KVMOD=os.environ.get('KVMOD','sc1')
XMOD=os.environ.get('XMOD','')
OUTSZ=int(os.environ.get('OUTSZ','9633792'))
def R(x,n=1):
    if x>=256: return f"a{x-256}" if n==1 else f"a[{x-256}:{x-256+n-1}]"
    return f"v{x}" if n==1 else f"v[{x}:{x+n-1}]"
def M16(d,a,b,c=None):
    c = R(d,4) if c is None else (c if isinstance(c,str) else R(c,4))
    return f"v_mfma_f32_16x16x32_bf16 {R(d,4)}, {R(a,4)}, {R(b,4)}, {c}"
def f32(x): return "0x%08x"%struct.unpack("<I",struct.pack("<f",x))[0]
def base(ct): return 32*(ct//2)+4*(ct%2)
XB=9633792; WSB=0x10000000; OOB=0x40000000
FLG=0x80000
REG=28672; XI=73728; XS=116736; FLAG=XS+768; LDSB=FLAG+64
assert all((q*2341)>>16==q//28 for q in range(208))
assert all((c*5462)>>16==c//12 for c in range(192))
S0=8; P0=32; P6=80; ONES=84; IDX=88; MM=92; OK=120; VF=192; XO=240; T2=56; LL=256+228
OS=256; OX=256+72; XF=256+96; KF=256+180; ASP=256+228
FV=89; FA=90
XA=1; XL=2; XOUT=243; LRCV=MM
sX=20; sO=24; sW=28; sA=32; sB=36; sD=40
def SR(d): return f"s[{d}:{d+3}]"
def srd(d, lo, size): return [f"s_mov_b32 s{d}, s{lo}", f"s_mov_b32 s{d+1}, s{lo+1}", f"s_mov_b32 s{d+2}, {size}", f"s_mov_b32 s{d+3}, 0x00020000"]
def Oreg(t): return OS+24*t if t<3 else (OK+24*(t-3) if t<6 else OX)
def RB(t): return [P0,VF,VF+24][t]
def Preg(st,t): return P0+8*t+4*st if t<6 else P6
def W1(i): return KF+4*i if i<12 else XF+4*(i-12)
def W2(i): return VF+4*i if i<12 else T2+4*(i-12)
nst=[0]
def stamp(idx):
    if not DIAG: return []
    return ["s_memrealtime s[66:67]","s_memtime s[68:69]","s_waitcnt lgkmcnt(0)",f"s_mov_b32 s{72+2*idx}, s66",f"s_mov_b32 s{73+2*idx}, s68"]
def stampdump():
    if not DIAG: return []
    o=["s_lshl_b32 s66, s2, 2","s_add_u32 s66, s66, s44","s_lshl_b32 s66, s66, 6",f"s_add_u32 s66, s66, {0x100000}","v_mov_b32 v20, 0"]
    for i in range(8):
        o+=[f"v_mov_b32 v22, s{72+2*i}",f"v_mov_b32 v23, s{73+2*i}",f"buffer_store_dwordx2 v[22:23], v20, {SR(sW)}, s66 offen offset:{8*i}","s_nop 1"]
    return o

def kload(stage,f):
    v,o=(3,f*1024) if f<4 else (4,(f-4)*1024)
    return f"buffer_load_dwordx4 {R(KF+24*stage+4*f,4)}, v{v}, {SR(sW)}, s60 offen offset:{o}"
def vload(stage,ct):
    v,o=(4,2048+ct*1024) if ct<2 else (5,(ct-2)*1024)
    return f"buffer_load_dwordx4 {R(VF+24*stage+4*ct,4)}, v{v}, {SR(sW)}, s60 offen offset:{o}"
def slots_of(qg):
    a=[(0,t) for t in range(6)]+([(0,6)] if qg==0 else [])
    b=[(1,t) for t in range(6)]+([(1,6)] if qg==1 else [])
    return a+b
def colorf(N): return (lambda n: (n%13)%2 if n%13<12 else 2) if N==13 else (lambda n: n%2)
def qk(c,st,t):
    S=S0+8*c
    return [M16(S+4*k, KF+24*st+4*(3*k+j), XF+12*t+4*j, MM+4*t if j==0 else None) for k in range(2) for j in range(3)]
def pv(st,t):
    P=Preg(st,t)
    o=[M16(Oreg(t)+4*q, VF+24*st+4*q, P) for q in range(6)]
    if t==6: o.append(M16(LL+4*t, ONES, P))
    elif st==1: o.append(f"v_smfmac_f32_16x16x64_bf16 {R(LL+4*t,4)}, {R(ONES,4)}, {R(P0+8*t,8)}, v{IDX}")
    return o
def expgaps(c,st,t,n=13):
    S=S0+8*c; P=Preg(st,t)
    E=lambda j: f"v_exp_f32 v{S+j}, v{S+j}"
    C=lambda j: f"v_cvt_pk_bf16_f32 v{P+j}, v{S+2*j}, v{S+2*j+1}"
    return [[E(0)],[E(1)],[E(2)],[E(3)],[E(4)],[C(0),C(1)],[E(5)],[E(6)],[E(7)],[],[C(2),C(3)],[],[]][:n]
def body(qg):
    sl=slots_of(qg); out=[]; NS=len(sl); color=colorf(NS)
    for n,(st,t) in enumerate(sl):
        idx=[i for i,(s2,_) in enumerate(sl) if s2==st]
        pos=n-idx[0]; last=len(idx)-1
        mm=qk(color(n),st,t)+pv(*sl[(n-2)%NS])
        g=expgaps(color(n-1),*sl[(n-1)%NS],n=len(mm)); fr=(9,11); e=len(mm)-1
        if pos in (0,1):
            for i in range(2): g[fr[i]].append(kload(1-st,2+2*pos+i))
        if pos==1: g[e].append("s_waitcnt vmcnt(6)")
        if pos in (2,3,4):
            for i in range(2): g[fr[i]].append(vload(1-st,2*(pos-2)+i))
        if pos==last-1:
            g[e if last==5 else 9].append(f"s_add_u32 s60, s60, {36864 if st==0 else 12288}")
            g[e].append("s_waitcnt vmcnt(6)")
        if pos==last and st==0:
            g[5].append(f"v_cmp_eq_u32 vcc, 0, v{FV}"); g[7]+=[f"s_cbranch_vccnz L_slow{qg}",f"L_back{qg}:"]
        if pos==2 and st==1: g[e].append("s_sub_u32 s61, s61, 1")
        if pos==3 and st==1: g[e]+=["s_cmp_eq_u32 s61, 6",f"s_cbranch_scc1 L_fv{qg}",f"L_fvb{qg}:"]
        if pos==last:
            for i in range(2): g[fr[i]].append(kload(st,i))
        if pos==last and st==1: g[10].append("s_cmp_lg_u32 s61, 0")
        if os.environ.get('NOLD'): g=[[x for x in y if not x.startswith('buffer_load')] for y in g]
        o=[f"; slot {n}: stage {st} tile {t}"]
        for i in range(len(mm)): o.append(mm[i]); o+=g[i]
        out.append(o)
    return out
LR=LRCV
def lsum(t):
    r=LR+4*t
    return [f"v_accvgpr_read_b32 v{r+2}, {R(LL+12+4*t)}",f"v_accvgpr_read_b32 v{r+3}, {R(LL+13+4*t)}",f"v_add_f32 v{r}, v{r}, v{r+1}",f"v_add_f32 v{r+2}, v{r+2}, v{r+3}",
            f"v_add_f32 v{r+2}, v{r+2}, v{r}",f"v_rcp_f32 v{r+3}, v{r+2}"]+(["s_nop 0",f"v_mul_f32 v{r+3}, {f32(float(os.environ['EPS']))}, v{r+3}"] if os.environ.get('EPS') else [])
def tail(qg):
    sl=slots_of(qg)
    order=[(0,0),(0,1),(0,2),(0,3),(1,0),(1,1),(1,2)]+([(qg,6)] if qg is not None else [])+[(0,4),(0,5),(1,3),(1,4),(1,5)]
    NS=len(sl); color=colorf(NS)
    seq=[sl[-2],sl[-1]]+order
    col=[color(NS-2),color(NS-1)]+[color(n) for n in range(NS)]
    out=[]; pend=[]
    def states_since(i): return sum((int(l.split()[1])+1 if l.startswith('s_nop') else 1) for l in out[i+1:] if not l.startswith(';'))
    def place(n):
        for _ in range(n):
            if pend and states_since(pend[0][0])>=8:
                out.append(pend.pop(0)[1])
                if pend and 'b128' not in pend[0][1] and states_since(pend[0][0])>=8: out.append(pend.pop(0)[1])
    def wr(t,q):
        if q<6: return f"ds_write_b128 v6, {R(Oreg(t)+4*q,4)} offset:{(6*t+q)*1024 if t<3 else (18+q)*1024}"
        if t==6: return f"ds_write_b32 v6, {R(LL+4*t)} offset:{24576+3072}"
        return f"ds_write_b64 v6, {R(LL+4*t,2)} offset:{24576+1024*t}"
    rd0=[f"ds_read_b64 {R(LRCV+4*t,2)}, v7 offset:{24576+1024*t}" for t in range(3)]+[f"ds_read_b128 {R(RB(0)+4*q,4)}, v7 offset:{q*1024}" for q in range(6)]
    rd1=[f"ds_read_b128 {R(RB(1)+4*q,4)}, v7 offset:{(6+q)*1024}" for q in range(6)]
    rds=[]
    nb=NS
    for k in range(nb+2):
        out.append(f"; tail slot {k}")
        mm=[]
        if k<nb: mm+=[(m,None) for m in qk(col[k+2],*seq[k+2])]
        st,t=seq[k]
        final = k>=2 and (t==6 or (t<3 and st==1))
        mm+=[(m,(t,q) if final else None) for q,m in enumerate(pv(st,t))]
        if k<nb: g=expgaps(col[k+1],*seq[k+1],n=len(mm))
        elif k==nb:
            f=[x for y in expgaps(col[k+1],*seq[k+1]) for x in y]; g=[f[2*i:2*i+2] for i in range(7)]
        else: g=[[] for _ in range(7)]
        fr=(9,11); e=len(mm)-1
        if k in (0,1):
            for i in range(2): g[fr[i]].append(kload(1,2+2*k+i))
        if k==1: g[e].append("s_waitcnt vmcnt(6)")
        if k in (2,3):
            for i in range(3): g[(7,9,11)[i]].append(vload(1,3*(k-2)+i))
        if k==3: g[e].append("s_waitcnt vmcnt(6)")
        if k==6: g[5].append("s_waitcnt vmcnt(0)")
        BS,BG=NS-1,8
        if k==BS: g[BG]+=["s_waitcnt lgkmcnt(0)","s_barrier"]
        for i,(m,w) in enumerate(mm):
            out.append(m)
            if w: pend.append((len(out)-1, wr(*w)))
            out+=g[i]
            if k==BS and i==BG: assert not pend; rds=rd0+rd1
            if k<BS or (k==BS and i<4):
                if i in ((2,5,9,11,12) if k<BS else (0,1,2,3)): place(1)
            elif not g[i]:
                for _ in range(3):
                    if rds: out.append(rds.pop(0))
            if k==nb+1 and i>=1:
                E0=["s_waitcnt lgkmcnt(10)"]+lsum(0)+[f"v_add_f32 v{OK+j}, v{OK+j}, v{RB(0)+j}" for j in range(8)]+[f"v_mul_f32 v{OK+j}, v{OK+j}, v{LR+3}" for j in range(int(os.environ.get('E0M','0')))]
                n=len(E0); out+=E0[n*(i-1)//6:n*i//6]
    assert not pend and not rds, (pend,rds)
    return out

XR=MM
def common_setup():
    o=["v_and_b32 v8, 15, v0","v_lshrrev_b32 v9, 4, v0","v_lshlrev_b32 v9, 4, v9",
       f"v_lshlrev_b32 v{FA}, 7, v8",f"v_add_u32 v{FA}, {FLG+4096}, v{FA}",
       "v_lshlrev_b32 v3, 4, v0","v_add_u32 v4, 4096, v3","v_add_u32 v5, 8192, v3",
       f"s_mul_i32 s48, s44, {REG}","v_add_u32 v6, s48, v3","s_xor_b32 s48, s44, 2",f"s_mul_i32 s48, s48, {REG}","v_add_u32 v7, s48, v3",
       "s_mul_i32 s48, s45, 96","s_mul_i32 s49, s46, 48","s_add_u32 s50, s48, s49",
       "s_sub_u32 s49, 48, s49","s_add_u32 s49, s48, s49",
       "s_mov_b32 s51, 37632",f"s_mov_b32 s52, {-2304}",f"s_mov_b32 s53, {21504-2688}",f"v_add_u32 v13, {XI}, v9"]
    for t in range(6):
        o+=[f"s_add_u32 s48, s{49 if t<3 else 50}, {16*(t%3)}","v_add_u32 v10, s48, v8"]
        o+=["v_mul_u32_u24 v11, 4682, v10","v_mul_u32_u24 v10, 192, v10","v_lshrrev_b32 v12, 17, v11","v_bfe_u32 v11, v11, 16, 1"]
        if 3<=t<6: o+=[f"v_mad_u32_u24 v14, v12, s51, v10",f"v_add_u32 v{XO+t-3}, v14, v9"]
        o+=["v_mad_i32_i24 v10, v12, s52, v10","v_mad_u32_u24 v10, v11, s53, v10",f"v_add_u32 v{XR+t}, v10, v13"]
    o+=["v_lshrrev_b32 v10, 2, v8","v_and_b32 v11, 3, v8","v_mul_u32_u24 v10, 5376, v10","v_mul_u32_u24 v11, 192, v11","v_add3_u32 v10, v10, v11, v9",
        f"v_add_u32 v{XOUT}, {6*43008+24*192}, v10","s_min_u32 s48, s44, 2","s_lshl_b32 s48, s48, 11",f"v_add_u32 v{XA}, s48, v3"]
    return o
assert all((q*4682)>>16==q//14 and (q*4682)>>17==q//28 for q in range(208))
assert all((c*5462)>>16==c//12 for c in range(192))
def xreads(): return [f"ds_read_b128 {R(XF+12*t+4*s,4)}, v{XR+t} offset:{64*s}" for t in range(6) for s in range(3)]
def xshared(): return srd(sX,4,XB)+[f"buffer_load_dwordx4 {R(XF+72+4*s,4)}, v{XOUT}, {SR(sX)}, s3 offen offset:{64*s}" for s in range(3)]
def init_acc():
    return [f"v_accvgpr_write_b32 a{r}, 0" for r in range(96)]+[f"v_accvgpr_write_b32 {R(LL+r)}, 0" for r in range(28)]+[f"v_mov_b32 v{r}, 0" for r in range(OK,OK+72)]
def init_const():
    return [f"v_mov_b32 v{MM+r}, 0" for r in range(28)]
def dma_loop(label, vs, srdreg, step, mod=""):
    return [label+":","s_mov_b32 m0, s49","s_add_u32 s49, s49, 3072"]+\
           [f"buffer_load_dwordx4 v{vs[j]}, {SR(srdreg)}, s48 offen offset:{1024*j} {mod} lds" for j in range(3)]+\
           [f"s_add_u32 s48, s48, {step}","s_cmp_lt_u32 s49, s50",f"s_cbranch_scc1 {label}"]

ZWG=int(os.environ.get('ZWG','252'))
ORD=int(os.environ.get('ORD','1'))
EB=int(os.environ.get('EB','1'))
SPLIT=int(os.environ.get('SPLIT','3'))
FSH=int(os.environ.get('FSH','5'))
NE=int(os.environ.get('NE','64'))
N="standalone__window_attn_twins__vision_kernel"
PF="buffer_load_dwordx4 a[252:255], v9, s[88:91], 0 offen" if int(os.environ.get("PF","1")) else "s_nop 0"
entry=(["s_memrealtime s[96:97]"] if os.environ.get('P4') else [])+["s_cmp_ge_u32 s2, 256","s_cbranch_scc1 L_done",
  "s_load_dwordx8 s[4:11], s[0:1], 0","s_load_dwordx4 s[12:15], s[0:1], 32","s_load_dwordx2 s[16:17], s[0:1], 48",
  "s_getpc_b64 s[88:89]","L_pc:","s_lshr_b32 s47, s2, 3","s_lshl_b32 s48, s47, 12","v_lshl_add_u32 v9, v0, 4, s48","s_mov_b32 s90, L_end-L_pc","s_mov_b32 s91, 0x00020000",
  "v_and_b32 v9, 0x7fff, v9","v_lshrrev_b32 v8, 6, v0","v_and_b32 v0, 63, v0",
  PF,"v_lshlrev_b32 v20, 4, v0","v_readfirstlane_b32 s44, v8",f"v_mov_b32 v18, {OOB}",
  "s_and_b32 s48, s2, 7","s_mul_i32 s47, s47, 301056","s_mul_i32 s48, s48, 5376","s_add_u32 s47, s47, s48",
  f"s_mov_b32 s{sA+3}, 0x00020000",
  "s_cmp_ge_u32 s44, 2","s_cbranch_scc1 L_wpath"]
LM=int(os.environ.get('LM','1'))
ids=["s_and_b32 s95, s2, 3","s_mul_i32 s3, s95, 5376","s_sub_u32 s3, s47, s3"]+({0:[],1:["s_lshr_b32 s45, s2, 2","s_and_b32 s45, s45, 2","s_xor_b32 s95, s95, s45"],2:["s_lshr_b32 s45, s2, 3","s_and_b32 s45, s45, 3","s_xor_b32 s95, s95, s45"]}[LM])+["s_and_b32 s45, s44, 1","s_lshr_b32 s46, s44, 1","s_mul_i32 s63, s46, 24576","s_mov_b32 s62, 0","v_and_b32 v16, 15, v0","v_lshrrev_b32 v17, 4, v0"]
pool0=["v_cmp_gt_u32 vcc, 40, v0","s_mul_i32 s48, s44, 2688","s_add_u32 s48, s48, s47","s_mul_i32 s49, s44, 21504",f"s_add_u32 s49, s49, {XI}","s_add_u32 s50, s49, 21504",
  "v_cndmask_b32 v21, v18, v20, vcc",f"s_mov_b32 s{sA+2}, {XB}","s_waitcnt lgkmcnt(0)",f"s_mov_b32 s{sA}, s4",f"s_mov_b32 s{sA+1}, s5"]+stamp(0)
pool0+=([f"s_sleep {os.environ['PDELAY']}"] if os.environ.get('PDELAY') else [])+([f"s_setprio {os.environ.get('PRIO','1')}"])+srd(sW,16,WSB)+["s_lshl_b32 s59, s2, 2","s_add_u32 s59, s59, s44",f"s_cmp_lg_u32 s59, {4*ZWG+1}","s_cbranch_scc1 L_nz0"]
pz=["v_lshlrev_b32 v29, 7, v0"]+[f"v_mov_b32 v{32+i}, 0" for i in range(4)]+[f"s_mov_b32 s51, {FLG}",f"buffer_store_dwordx4 v[32:35], v29, {SR(sW)}, s51 offen sc1",
    f"s_mov_b32 s51, {FLG+8192}",f"v_lshlrev_b32 v29, {max(FSH,4)}, v0",f"buffer_store_dwordx4 v[32:35], v29, {SR(sW)}, s51 offen sc1"]
pool1=["L_nz0:"]+([f"s_cmp_lt_u32 s2, {NE}","s_cbranch_scc1 L_xdma","s_barrier"] if ORD else [])+dma_loop("L_xdma",[20,20,21],sA,43008,PMOD)+([f"s_cmp_ge_u32 s2, {NE}","s_cbranch_scc1 L_pool","s_barrier"] if ORD and EB else [])+["s_branch L_pool"]
PX=VF
pool=["s_setprio 0"]+srd(sD,14,256)+[f"s_cmp_lg_u32 s59, {4*ZWG+1}","s_cbranch_scc1 L_nrd","v_mov_b32 v32, 1","v_mov_b32 v33, 0","s_waitcnt vmcnt(21)","s_mov_b64 exec, 1",
     f"buffer_store_dword v32, v33, {SR(sD)}, 0 offen sc1","s_mov_b64 exec, -1","L_nrd:"]+ids+srd(sO,12,OUTSZ)
pool+=["v_and_b32 v21, 1, v16","v_lshlrev_b32 v21, 4, v21","v_mov_b32 v22, 0x3f80","v_lshlrev_b32 v21, v21, v22","v_lshrrev_b32 v22, 1, v16"]
for d in range(8): pool+=[f"v_cmp_eq_u32 vcc, {d}, v22","s_nop 1",f"v_cndmask_b32 v{24+d}, 0, v21, vcc"]
pool+=[f"v_mov_b32 v8, {FLAG}","v_mov_b32 v9, 0","ds_write_b32 v8, v9"]
pool+=["v_lshrrev_b32 v21, 1, v17","v_mul_u32_u24 v21, 192, v21","v_lshl_add_u32 v21, v16, 4, v21","v_and_b32 v22, 1, v17","v_lshl_add_u32 v21, v22, 3, v21",
       "s_mul_i32 s48, s44, 384",f"s_add_u32 s48, s48, {XS}","v_add_u32 v21, s48, v21","v_cmp_gt_u32 s[54:55], 12, v16",
       "s_sub_u32 s50, s50, 21504","v_lshl_add_u32 v39, v16, 4, s50","v_mul_u32_u24 v36, 192, v17","v_add_u32 v36, v36, v39","v_cmp_gt_u32 vcc, 3, v17",
       "v_add_u32 v39, 2688, v39","v_add_u32 v37, 768, v36",f"v_add_u32 v38, {768+1344}, v36","v_cndmask_b32 v37, v39, v37, vcc","v_cndmask_b32 v38, v39, v38, vcc"]
pool+=stamp(1)
PX=OK
def prd(r):
    b=PX+16*r
    return [f"ds_read_b128 {R(b,4)}, v36 offset:{3072*r}",f"ds_read_b128 {R(b+4,4)}, v37 offset:{3072*r}",
            f"ds_read_b128 {R(b+8,4)}, v36 offset:{3072*r+1344}",f"ds_read_b128 {R(b+12,4)}, v38 offset:{3072*r}"]
def pmm(r): return [M16(32, 24+4*(j//2), PX+16*r+4*j, "0" if (r,j)==(0,0) else None) for j in range(4)]
for r in range(7):
    pool+=[f"s_waitcnt vmcnt({3*(6-r)})"]+prd(r)
    if r>=2: pool+=["s_waitcnt lgkmcnt(8)"]+pmm(r-2)
pool+=["s_waitcnt lgkmcnt(4)"]+pmm(5)
m=pmm(6)
for j in range(4): pool+=[f"s_waitcnt lgkmcnt({3-j})",m[j]]
pool+=["s_nop 7"]+[f"v_mul_f32 v{32+i}, {f32(1/49)}, v{32+i}" for i in range(4)]
pool+=["v_cvt_pk_bf16_f32 v32, v32, v33","v_cvt_pk_bf16_f32 v33, v34, v35","s_mov_b64 exec, s[54:55]","ds_write_b64 v21, v[32:33]","s_mov_b64 exec, -1",
       "s_waitcnt lgkmcnt(0)"]+stamp(2)+["s_barrier"]
pool+=common_setup()+xshared()+xreads()+init_const()+init_acc()
pool+=(stamp(3) if not os.environ.get('P2') else [])+["s_branch L_go"]
wp0=["s_sub_u32 s54, s44, 2"]
for j in range(3):
    wp0+=[f"v_add_u32 v19, {64*j}, v0","v_mul_u32_u24 v24, 5462, v19","v_lshlrev_b32 v19, 4, v19","v_lshrrev_b32 v24, 16, v24",
          "v_mul_u32_u24 v24, 192, v24",f"v_add3_u32 v{21+j}, v24, v19, s{[92,93,94][j]}"]
wp0=[f"s_mov_b32 s92, 0","s_mov_b32 s93, -1024","s_mov_b32 s94, -2048"]+wp0
wp0+=["s_mul_i32 s48, s54, 192","s_mul_i32 s49, s54, 36864","s_add_u32 s50, s49, 18432",f"s_mov_b32 s{sA+2}, 36864",
     "s_waitcnt lgkmcnt(0)",f"s_mov_b32 s{sA}, s8",f"s_mov_b32 s{sA+1}, s9"]
TLB=int(os.environ.get('TLB','0'))
tlb=srd(sW,16,WSB)+srd(sD,14,256)+srd(sO,12,OUTSZ)+["v_mov_b32 v25, 0",f"s_mov_b32 s51, {0x70000}","s_mov_b64 exec, 1",f"buffer_load_dword v26, v25, {SR(sW)}, s51 offen sc1",
     f"buffer_load_dword v27, v25, {SR(sD)}, 0 offen offset:128 sc1",f"buffer_load_dword v28, v25, {SR(sO)}, s47 offen","s_add_u32 s51, s47, 290000",f"buffer_load_dword v29, v25, {SR(sO)}, s51 offen","s_mov_b64 exec, -1"]
wp=stamp(0)+(tlb if TLB else [])+([f"s_sleep {os.environ['WDELAY']}"] if os.environ.get('WDELAY') else [])
if ORD:
    wp+=([f"s_cmp_ge_u32 s2, {NE}","s_cbranch_scc1 L_nb1","s_barrier","L_nb1:"] if EB else [])+[f"s_add_u32 s50, s49, {3072*SPLIT}"]+dma_loop("L_w1a",[21,22,23],sA,6144)
    wp+=[f"s_cmp_lt_u32 s2, {NE}","s_cbranch_scc1 L_nb2","s_barrier","L_nb2:",f"s_add_u32 s50, s49, {3072*(6-SPLIT)}"]+dma_loop("L_w1b",[21,22,23],sA,6144)
else: wp+=dma_loop("L_w1dma",[21,22,23],sA,6144)
wp+=["s_cmp_eq_u32 s54, 0",f"s_cselect_b32 s{sB}, s6, s10",f"s_cselect_b32 s{sB+1}, s7, s11",f"s_mov_b32 s{sB+2}, 18432",f"s_mov_b32 s{sB+3}, 0x00020000",
     "s_mov_b32 s48, 0"]
IA=init_acc()
EI=int(os.environ.get('EI','1'))
if EI: wp+=[f"s_cmp_ge_u32 s2, {NE}","s_cbranch_scc1 L_w2u","s_add_u32 s50, s49, 18432"]+dma_loop("L_w2dma",[20,20,20],sB,3072)+["s_branch L_w2e","L_w2u:"]
for i in range(18):
    if i%3==0: wp+=["s_mov_b32 m0, s49","s_add_u32 s49, s49, 3072"]
    wp.append(f"buffer_load_dwordx4 v20, {SR(sB)}, s48 offen offset:{1024*(i%3)} lds")
    if i%3==2: wp.append("s_add_u32 s48, s48, 3072")
    wp+=IA[len(IA)*i//17:len(IA)*(i+1)//17] if i<17 else []
wj=(["L_w2e:"] if EI else [])+ids+(srd(sW,16,WSB)+srd(sD,14,256) if not TLB else [])
wj+=["s_mul_i32 s55, s54, 36864","v_lshrrev_b32 v22, 2, v16","v_and_b32 v23, 3, v16",
     "v_lshl_add_u32 v44, v17, 3, v22","v_mul_u32_u24 v44, 192, v44","v_lshl_add_u32 v44, v23, 4, v44","v_add_u32 v44, s55, v44",
     "v_lshl_add_u32 v47, v22, 3, v23","v_mul_u32_u24 v47, 192, v47","v_lshl_add_u32 v47, v17, 4, v47",
     "v_mul_u32_u24 v45, 192, v23","v_lshl_add_u32 v45, v17, 4, v45",f"v_add_u32 v45, {XS}, v45",
     "v_cmp_gt_u32 vcc, 4, v16","v_cmp_gt_u32 s[52:53], 16, v0","s_cmp_eq_u32 s54, 0","s_cselect_b64 vcc, vcc, s[52:53]","s_nop 1","v_cndmask_b32 v46, v18, v20, vcc",
     "s_lshr_b32 s56, s2, 3","s_mul_i32 s56, s56, 12288","s_bfe_u32 s57, s2, 0x10002","s_and_b32 s58, s2, 3"]
wj+=stamp(1)+["s_waitcnt vmcnt(18)"]
for nt in range(6):
    for s_ in range(3):
        for h in range(2): wj.append(f"ds_read_b64_tr_b16 {R(W1(3*nt+s_)+2*h,2)}, v44 offset:{(32*s_+4*h)*192+base(nt)*2}")
D1=8; XSF=XF+24; KB=32
wj+=["s_waitcnt lgkmcnt(0)"]+stamp(2)+["s_cmp_eq_u32 s54, 0","s_cbranch_scc0 L_vp"]
def step1(rd):
    o=["s_barrier"]+[f"ds_read_b128 {R(XSF+4*s_,4)}, v45 offset:{64*s_}" for s_ in range(3)]+["s_waitcnt vmcnt(0)","s_waitcnt lgkmcnt(0)"]+(stamp(1) if os.environ.get('P1') else [])
    per=len(rd)//18
    for nt in range(6):
        for s_ in range(3):
            o.append(M16(D1+4*nt, W1(3*nt+s_), XSF+4*s_, "0" if s_==0 else None))
            o+=rd[per*(3*nt+s_):per*(3*nt+s_+1)]
    for u in range(3):
        if u==2: o.append("s_nop 1")
        for e in range(2):
            for z in range(2): o.append(f"v_cvt_pk_bf16_f32 v{KB+4*u+2*e+z}, v{D1+8*u+4*e+2*z}, v{D1+8*u+4*e+2*z+1}")
    return o+["s_waitcnt lgkmcnt(0)","v_mov_b32 v47, 0",f"buffer_load_dword v45, v47, {SR(sD)}, 0 offen sc1"]
wq=[f"ds_read_b128 {R(W2(3*ct+u),4)}, v47 offset:{18432+base(ct)*192+64*u}" for ct in range(6) for u in range(3)]
wtr=[f"ds_read_b64_tr_b16 {R(W2(3*ct+u)+2*h,2)}, v44 offset:{18432+(32*u+4*h)*192+base(ct)*2}" for ct in range(6) for u in range(3) for h in range(2)]
sc=f32(96**-0.5*math.log2(math.e))
kp=step1(wq)+[M16(D1+4*ct, W2(3*ct+u), KB+4*u, "0" if u==0 else None) for ct in range(6) for u in range(3)]
kp+=[f"s_mov_b32 s50, {sc}",f"s_mov_b32 s51, {sc}","s_mul_i32 s57, s57, 3072","s_add_u32 s56, s56, s57","s_lshl_b32 s58, s58, 6","s_add_u32 s56, s56, s58"]
for u in range(3):
    if u==2: kp.append("s_nop 1")
    kp+=[f"v_pk_mul_f32 {R(D1+8*u+2*i,2)}, {R(D1+8*u+2*i,2)}, s[50:51]" for i in range(4)]
    kp+=[f"v_cvt_pk_bf16_f32 v{KB+4*u+i}, v{D1+8*u+2*i}, v{D1+8*u+2*i+1}" for i in range(4)]
    kp.append(f"buffer_store_dwordx4 {R(KB+4*u,4)}, v46, {SR(sW)}, s56 offen offset:{1024*u} {KVMOD}")
kp+=["s_mov_b32 s94, 1","s_branch L_pj"]
vp=step1(wtr)+[M16(D1+4*ct, KB+4*u, W2(3*ct+u), "0" if u==0 else None) for ct in range(6) for u in range(3)]
vp+=["s_lshl_b32 s57, s57, 3","s_add_u32 s56, s56, s57","s_lshl_b32 s58, s58, 8","s_add_u32 s56, s56, s58","s_add_u32 s56, s56, 6144","s_add_u32 s57, s56, 4096"]
for ct in range(6):
    vp+=[f"v_cvt_pk_bf16_f32 v{D1+4*ct}, v{D1+4*ct}, v{D1+4*ct+1}",f"v_cvt_pk_bf16_f32 v{D1+4*ct+1}, v{D1+4*ct+2}, v{D1+4*ct+3}",
         f"buffer_store_dwordx2 {R(D1+4*ct,2)}, v46, {SR(sW)}, s{56 if ct<4 else 57} offen offset:{1024*(ct%4)} {KVMOD}"]
if os.environ.get('MOCK'):
    keep=lambda L: [x for x in L if not (x.startswith('v_mfma') or x.startswith('ds_read_b64_tr') or (x.startswith('ds_read_b128') and 'v47' in x) or x=="s_waitcnt vmcnt(0)" or x.startswith('v_pk_mul') or x.startswith('v_cvt'))]
    kp=keep(kp); vp=keep(vp); wj=[x for x in keep(wj) if x!="s_waitcnt vmcnt(18)"]
    wp=stamp(0)
vp+=["s_mov_b32 s50, 0x7fff7fff"]+[f"v_and_b32 v{KB+2*ct+h}, s50, v{D1+4*ct+h}" for ct in range(6) for h in range(2)]
vp+=[f"v_pk_max_u16 v{KB+i}, v{KB+i}, v{KB+6+i}" for i in range(6)]+[f"v_pk_max_u16 v{KB+i}, v{KB+i}, v{KB+3+i}" for i in range(3)]
vp+=[f"v_pk_max_u16 v{KB}, v{KB}, v{KB+1}",f"v_pk_max_u16 v{KB}, v{KB}, v{KB+2}",f"v_lshrrev_b32 v{KB+1}, 16, v{KB}",f"v_and_b32 v{KB}, 0xffff, v{KB}",f"v_max_u32 v{KB}, v{KB}, v{KB+1}",
     f"v_cmp_lt_u32 vcc, {(127+30)<<7}, v{KB}","s_mov_b32 s94, 1","s_cmp_lg_u64 vcc, 0","s_cselect_b32 s94, 0x10001, s94"]
PRE=srd(sO,12,OUTSZ)+common_setup()+xreads()
EARLY=int(os.environ.get('EARLY','1'))
pj=(stamp(5) if os.environ.get('P1') else [])+(PRE if EARLY else [])+["s_lshr_b32 s48, s2, 4","s_lshl_b32 s48, s48, 7",f"s_add_u32 s48, s48, {FLG}","v_mov_b32 v44, 1","s_mov_b32 s49, 0x200000",
    f"s_lshl_b32 s57, s2, {FSH-2}","s_add_u32 s57, s57, s54","s_lshl_b32 s57, s57, 2",f"s_add_u32 s57, s57, {FLG+8192}",
    "s_mov_b64 exec, 1","s_waitcnt vmcnt(0)"]+(stamp(6) if os.environ.get('P1') else [])
wr_=["v_cmp_ne_u32 vcc, 0, v45","s_sub_u32 s49, s49, 1","s_cbranch_scc1 L_arr","s_cbranch_vccnz L_arr",f"buffer_load_dword v45, v47, {SR(sD)}, 0 offen sc1","s_waitcnt vmcnt(0)","s_branch L_wr"]
NSH=int(os.environ.get('NSH','224'))
DIRECT=int(os.environ.get('DIRECT','1'))
arr=([f"s_cmp_ge_u32 s2, {NE}","s_cbranch_scc1 L_nd",f"buffer_store_dword v44, v47, {SR(sW)}, s57 offen sc1","L_nd:"] if DIRECT else [])
PL=f"buffer_load_dwordx2 v[12:13], v10, {SR(sW)}, 0 offen sc1"
INIT=init_const()+[f'v_accvgpr_write_b32 a{252+h}, 0' for h in range(4)]+([f"s_cmp_ge_u32 s2, {NE}","s_cbranch_scc1 L_ni"]+init_acc()+["L_ni:"] if EI else [])
LP=int(os.environ.get('LP','999'))
NP=int(os.environ.get('NP','999'))
arr+=["v_mov_b32 v43, s94",f"buffer_atomic_add v43, v47, {SR(sW)}, s48 offen sc0 sc1","s_mov_b64 exec, -1","s_add_u32 s58, s48, 4096"]
arr+=[f"v_and_b32 v10, {NE-1}, v0",f"v_lshlrev_b32 v10, {FSH}, v10",f"v_add_u32 v10, {FLG+8192}, v10","v_mov_b32 v12, 1","v_mov_b32 v13, 1"]+(INIT[:NP]+["s_cmp_lg_u32 s54, 0","s_cbranch_scc1 L_np",PL,"L_np:"]+xshared()+INIT[NP:] if NP<999 else
   (["v_mov_b32 v12, s54","s_and_b32 s50, s2, 3","s_or_b32 s50, s50, s54"]+INIT[:LP]+["s_cmp_lg_u32 s50, 0","s_cbranch_scc1 L_np",PL,"L_np:"]+xshared()+INIT[LP:] if LP<999 else ["v_mov_b32 v12, s54"]+xshared()+INIT))
arr+=["s_mov_b64 exec, 1","s_waitcnt vmcnt(3)",
  "v_add_u32 v43, s94, v43","v_and_b32 v44, 0xffff, v43","v_lshrrev_b32 v45, 16, v43","v_cmp_eq_u32 vcc, 32, v44","v_add_u32 v45, 1, v45","s_and_b64 exec, exec, vcc","s_cbranch_execz L_nl",
  f"buffer_store_dword v45, v47, {SR(sW)}, s58 offen sc1","L_nl:","s_mov_b64 exec, -1"]+(stamp(3) if not os.environ.get('P2') else [])
WARM=int(os.environ.get('WARM','1'))
warm=["s_lshr_b32 s50, s2, 3","s_mul_i32 s50, s50, 1536",f"buffer_load_dwordx4 v[16:19], v3, {SR(sW)}, s50 offen sc1",f"buffer_load_dwordx4 v[20:23], v3, {SR(sW)}, s50 offen offset:512 sc1"]
if WARM==1: arr+=["; wave 3: pull a slice of the first key steps into this die's L2 (values unused; L1 bypassed)","s_cmp_eq_u32 s54, 0","s_cbranch_scc1 L_nw"]+warm+["L_nw:"]
if WARM==2:
    i=arr.index("s_waitcnt vmcnt(3)"); arr[i]="s_waitcnt vmcnt(5)"; arr[i-1:i-1]=warm
arr+=["s_mov_b32 s49, 0x200000"]+(["s_cmp_eq_u32 s54, 0","s_cbranch_scc1 L_poll1","s_branch L_go"] if NP>=999 and LP>=999 else ["s_branch L_chk"])
SLEEP=int(os.environ.get('SLEEP','6'))
poll=([f"s_sleep {SLEEP}"] if SLEEP else [])+["L_poll1:",PL,"s_sub_u32 s49, s49, 1","s_cbranch_scc1 L_go","s_waitcnt vmcnt(0)",
  "L_chk:","v_and_b32 v12, v12, v13","v_cmp_ne_u32 vcc, 1, v12","s_nop 1","s_cbranch_vccnz L_poll"]
CONSTS=["v_and_b32 v8, 1, v0","v_mul_u32_u24 v8, 0xaaaa, v8",f"v_add_u32 v{IDX}, 0x4444, v8",f"v_mov_b32 v{FV}, 1"]+[f"v_mov_b32 v{ONES+r}, 0x3f803f80" for r in range(4)]
go=(CONSTS if not int(os.environ.get('CG','0')) else [])+["s_waitcnt lgkmcnt(0)","s_barrier"]+stamp(4)
PRO=int(os.environ.get('PRO','2'))
q0=qk(0,0,0); q1=qk(1,0,1); ev=[x for y in expgaps(0,0,0) for x in y]
K1=[kload(1,f) for f in range(6)]
pas=["s_mov_b32 s60, s63"]+[kload(0,f) for f in range(6)]+[vload(0,c) for c in range(6)]+["s_add_u32 s60, s60, 12288","s_mov_b32 s61, 7"]
if PRO==1:
    pas+=["s_waitcnt vmcnt(9)"]+q0[:3]+["s_waitcnt vmcnt(6)"]
    for i in range(3): pas+=[q0[3+i],K1[i]]
    for i in range(3): pas+=[q1[i],K1[3+i]]
elif PRO==2:
    pas+=["s_waitcnt vmcnt(11)",q0[0],"s_waitcnt vmcnt(10)",q0[1],"s_waitcnt vmcnt(9)",q0[2],q1[0],q1[1],q1[2],"s_waitcnt vmcnt(6)"]
    for i in range(3): pas+=[q0[3+i],K1[2*i],K1[2*i+1]]
pas+=stamp(5)+["s_cmp_lg_u32 s95, 0"]+(["s_nop 0"] if PRO==2 else [])+ev[0:2]+[q1[3]]+ev[2:4]+[q1[4]]+(["s_nop 1"] if PRO==2 else [])+ev[4:6]+[q1[5]]+ev[6:]+["s_waitcnt vmcnt(6)","s_cbranch_scc1 L_s2_2","s_cmp_eq_u32 s45, 0","s_cbranch_scc0 L_s2_1","s_branch L_s2_0"]
def chk(reg): return [f"v_cmp_nle_f32 vcc, s48, v{reg}","s_or_b64 s[64:65], s[64:65], vcc",f"v_cmp_nge_f32 vcc, s49, v{reg}","s_or_b64 s[64:65], s[64:65], vcc"]
LR=LRCV
epi=(stamp(6) if not os.environ.get('P1') else [])
XP=P0
late=[f"ds_read_b128 {R(RB(2)+4*q,4)}, v7 offset:{(12+q)*1024}" for q in range(6)]+[None]*3
late+=[f"ds_read_b32 v{24+w}, v{3 if w<2 else 29} offset:{(w%2)*REG+27648}" for w in range(4)]
late+=[f"ds_read_b128 {R(XP+8*w+4*e,4)}, v{XA if w<2 else 28} offset:{(w%2)*REG+18432+1024*e}" for w in range(4) for e in range(2)]
OMS=[{'s':'sc1 nt','n':'nt','p':'','c':'sc1'}[c] for c in os.environ.get('OMS','sssssssss')]
issued=12; nan=[]
for t in range(3):
    for u in range(3):
        need=6*t+2*u+2
        if t>0: epi.append(f"s_waitcnt lgkmcnt({min(15,issued-need)})")
        o=OK+24*t+8*u; rb=RB(t)+8*u
        if (t,u)!=(0,0): epi+=[f"v_pk_add_f32 {R(o+2*i,2)}, {R(o+2*i,2)}, {R(rb+2*i,2)}" for i in range(4)]
        for _ in range(0 if (t,u)==(0,0) else (6 if (t,u)==(0,1) else (3 if t<1 else 4))):
            if late:
                x=late.pop(0)
                if x: epi.append(x); issued+=1
        if t<2 and u==1: epi+=lsum(t+1)
        epi+=[f"v_pk_mul_f32 {R(o+2*i,2)}, {R(o+2*i,2)}, {R(LR+4*t+2,2)} op_sel:[0,1] op_sel_hi:[1,1]" for i in range(4)]
        epi+=[f"v_cvt_pk_bf16_f32 v{o+i}, v{o+2*i}, v{o+2*i+1}" for i in range(4)]
        if os.environ.get('LINST'):
            epi+=["s_mul_i32 s50, s2, 37632","s_mul_i32 s51, s44, 9216","s_add_u32 s50, s50, s51",f"s_add_u32 s50, s50, {3072*t}",f"buffer_store_dwordx4 {R(o,4)}, v3, {SR(sO)}, s50 offen offset:{1024*u} {OUTMOD}"]
        else: epi.append(f"buffer_store_dwordx4 {R(o,4)}, v{XO+t}, {SR(sO)}, s47 offen offset:{64*u} {OMS[3*t+u]}")
        if (t,u)==(0,0): epi+=[f"s_mov_b32 s48, {f32(2.0**-20)}",f"s_mov_b32 s49, {f32(2.0**90)}","s_mov_b64 s[64:65], 0",f"v_add_u32 v28, {2*REG}, v{XA}",f"v_add_u32 v29, {2*REG}, v3","s_waitcnt lgkmcnt(6)"]
assert not late
epi+=["s_waitcnt lgkmcnt(0)","v_add_f32 v24, v24, v25","v_add_f32 v26, v26, v27","s_lshr_b32 s51, s44, 1","s_and_b32 s51, s51, s44","v_add_f32 v24, v24, v26","s_or_b32 s50, s95, s51","s_cbranch_scc1 L_nx"]
xe=["v_rcp_f32 v26, v24","s_lshl_b32 s50, s44, 6","s_add_u32 s50, s50, s3"]
xe+=[f"v_pk_add_f32 {R(XP+2*i,2)}, {R(XP+2*i,2)}, {R(XP+8+2*i,2)}" for i in range(4)]
xe+=[f"v_pk_add_f32 {R(XP+16+2*i,2)}, {R(XP+16+2*i,2)}, {R(XP+24+2*i,2)}" for i in range(4)]
xe+=[f"v_pk_add_f32 {R(XP+2*i,2)}, {R(XP+2*i,2)}, {R(XP+16+2*i,2)}" for i in range(4)]
xe+=[f"v_pk_mul_f32 {R(XP+2*i,2)}, {R(XP+2*i,2)}, v[26:27] op_sel_hi:[1,0]" for i in range(4)]
xe+=[f"v_cvt_pk_bf16_f32 v{8+i}, v{XP+2*i}, v{XP+2*i+1}" for i in range(4)]+[f"buffer_store_dwordx4 v[8:11], v{XOUT}, {SR(sO)}, s50 offen {OUTMOD}","L_nx:"]
epi+=xe
epi+=(["s_waitcnt vmcnt(0)"] if os.environ.get('P7') else [])+stamp(7)+(["s_mov_b32 s82, s96"] if os.environ.get('P4') else [])+(["s_getreg_b32 s75, hwreg(HW_REG_XCC_ID)"] if DIAG else [])+stampdump()
ok=["s_cmp_lg_u32 s62, 0","s_cbranch_scc1 L_done","s_cmp_lg_u32 s95, 0","s_cselect_b64 vcc, -1, 0",f"v_mov_b32 v20, {FLAG}","v_mov_b32 v21, 1","v_cndmask_b32 v24, v24, 1.0, vcc"]
ok+=chk(LR+2)+chk(LR+6)+chk(LR+10)+chk(24)+[f"v_cmp_lt_u32 vcc, 1, v{FV}","s_or_b64 s[64:65], s[64:65], vcc",
    "s_cmp_eq_u64 s[64:65], 0","s_cbranch_scc1 L_ok","ds_write_b32 v20, v21","L_ok:","s_waitcnt lgkmcnt(0)","s_barrier","ds_read_b32 v21, v20",
    "s_waitcnt lgkmcnt(0)","v_readfirstlane_b32 s48, v21","s_nop 3","s_cmp_eq_u32 s48, 0","s_cbranch_scc1 L_done"]
fb=["s_waitcnt vmcnt(0)"]+[f"v_mov_b32 v{MM+4*t}, 0xff800000" for t in range(7)]+["s_mov_b32 s60, s63","s_mov_b32 s61, 16"]
fbl=[kload(0,f) for f in range(6)]+["s_waitcnt vmcnt(0)"]
for t in range(7):
    fbl+=[M16(S0+4*k, KF+4*(3*k+j), XF+12*t+4*j, "0" if j==0 else None) for k in range(2) for j in range(3)]
    fbl+=["s_nop 7"]+[f"v_max3_f32 v{MM+4*t}, v{S0+2*i}, v{S0+2*i+1}, v{MM+4*t}" for i in range(4)]
fbl+=["s_bitcmp1_b32 s61, 0","s_cselect_b32 s48, 24576, 0","s_add_u32 s60, s60, s48","s_add_u32 s60, s60, 12288","s_sub_u32 s61, s61, 1","s_cmp_lg_u32 s61, 0","s_cbranch_scc1 L_fb"]
fb2=[f"ds_write_b32 v6, v{MM+4*t} offset:{1024*t}" for t in range(7)]
fb2+=["v_and_b32 v8, 0x300, v3","v_sub_u32 v9, v6, v8","v_sub_u32 v10, v7, v8","s_waitcnt lgkmcnt(0)","s_barrier"]
for t in range(7):
    tp=(t+3)%6 if t<6 else 6
    for G in range(4): fb2+=[f"ds_read_b32 v{12+G}, v9 offset:{1024*t+256*G}",f"ds_read_b32 v{16+G}, v10 offset:{1024*tp+256*G}"]
    fb2+=["s_waitcnt lgkmcnt(0)","v_max3_f32 v12, v12, v13, v14","v_max3_f32 v12, v12, v15, v16","v_max3_f32 v12, v12, v17, v18","v_max_f32 v12, v12, v19"]
    fb2+=[f"v_sub_f32 v{MM+4*t+i}, 0, v12" for i in range(4)]
fb2+=init_acc()+["s_barrier","s_mov_b32 s62, 1","s_branch L_pass"]


DOC=""";
; ---------------------------------------------------------------------------------------------
; Twins global sub-sampled attention, one fused launch, 256 workgroups x 4 waves (one per SIMD).
;
; Math (c = 96^-0.5 * log2(e)):  xs = bf16(mean7x7(x)),  [k|v] = bf16(xs wkv),
;   K' = bf16(c * k wq^T),  V' = bf16(v wo),  S = x K'^T (base-2 logits),  out = (exp2(S-m) V') / sum(exp2(S-m)).
;   wq and wo are folded into the 1024 keys instead of being applied to the 50176 queries.
;
; Phase 1  workgroup b owns windows 4b..4b+3 (7 rows x 28 pixels).  Waves 0,1 stream x into LDS and pool it with
;          one-hot MFMAs; waves 2,3 load the weights and compute K' / V' for the 4 keys, store them write-through
;          to d_ws in MFMA-fragment order, and signal (flag words in d_ws, cleared by workgroup 252 at the start of
;          every launch; d_debug[0] says "flags are cleared").
; Phase 2  flash-style sweep over 32-key steps.  wave = (query group, key half): 6 query tiles of 16 x 512 keys,
;          fragments straight from L2 into registers, 16x16x32 MFMAs, row sums by a sparse MFMA against ones.
;          The 4 left-over queries of workgroups 4j..4j+3 form one more tile, done by workgroup 4j + (j & 2).
; Phase 3  key halves are merged through LDS, normalised, stored.
;
; Softmax guard: pass 1 uses the stand-in m = 0 (the M registers, fed in as the accumulator of the QK MFMAs).
;   A run-time check decides whether that was safe: every row sum must lie in [2^-20, 2^90] and |V'| < 2^30, so no
;   exp2, product or sum overflowed and nothing that matters underflowed.  Otherwise the workgroup computes the true
;   row maxima (L_fb) and repeats phases 2 and 3 with m = true max.
; ---------------------------------------------------------------------------------------------""".split("\n")
flat=lambda x: [l for y in x for l in y]
B=[body(0),body(1),body(None)]; T=[tail(0),tail(1),tail(None)]
out=[]
HDR=open('standalone__window_attn_twins__vision.s.ref').read().split('\n')
out+=HDR[:10]
out.append(f"; @launch grid=(256,1,1) block=(256,1,1) lds={LDSB}")
out+=DOC
out+=['.amdgcn_target "amdgcn-amd-amdhsa--gfx950"',".text",f".globl {N}",".p2align 8",f".type {N},@function",f"{N}:"]
def E(lines,label=None,align=False):
    if align: out.append(".p2align 6")
    if label: out.append(label+":")
    out.extend(l if l.endswith(':') else "    "+l for l in lines)
E(["; entry: kernel arguments, ids, one load per wave that pulls this kernel's code into L2"]); E(entry); E(['; waves 0,1: x rows -> LDS (workgroups >= 64 let half of their first weight matrix go first, so that the']); E(["; keys needed first are ready first)"]); E(pool0); E(pz); E(pool1); E(['; waves 2 (K path), 3 (V path): weights -> LDS, fragments, two small GEMMs, write-through stores, arrival']); E(wp0,"L_wpath"); E(wp); E(wj); E(kp); E(vp,"L_vp"); E(pj,"L_pj"); E(wr_,"L_wr"); E(arr,"L_arr")
E(['; pooling by MFMA, xs -> LDS, then address set-up, x fragments and accumulator init']); E(pool,"L_pool")
E(['; wave 2 waits for the keys of the first two iterations (workgroups 0..63)']); E(poll,"L_poll"); E(go,"L_go"); E(['; first fragments, pipeline fill, jump into the loop variant (0/1: with the shared tile, 2: without)']); E(pas,"L_pass"); E(flat([[f"L_fv{q}:",f"buffer_load_dword v{FV}, v{FA}, {SR(sW)}, 0 offen sc1",f"s_branch L_fvb{q}"] for q in (0,1,None)]))
for q in range(3):
    E(flat(B[q][:2]),f"L_loop{q}",True); E(flat(B[q][2:]),f"L_s2_{q}"); E([f"s_cbranch_scc1 L_loop{q}"]); E(stamp(3) if os.environ.get('P2') else []); E(T[q])
    if q<2: E(["s_branch L_epi"])
def slow(q): return [f"L_slow{q}:","s_mov_b32 s49, 0x200000"]+(["s_mov_b32 s77, 1"] if DIAG else [])+[f"L_slowp{q}:",f"buffer_load_dword v{FV}, v{FA}, {SR(sW)}, 0 offen sc1","s_sub_u32 s49, s49, 1",f"s_cbranch_scc1 L_back{q}",
    "s_waitcnt vmcnt(0)",f"v_cmp_eq_u32 vcc, 0, v{FV}","s_nop 1",f"s_cbranch_vccnz L_slowp{q}",f"s_branch L_back{q}"]
E(['; merge key halves, normalise, store (write-through, so nothing is left to flush at the end); then the safety check']); E(epi,"L_epi"); E(ok); E(['; rare path: true row maxima, then repeat']); E(fb); E(fbl,"L_fb"); E(fb2); E(slow(0)+slow(1)+slow(None)); E(["s_endpgm","L_end:"],"L_done")
out+=['.section .rodata,"a"',".p2align 6",f".amdhsa_kernel {N}","  .amdhsa_next_free_vgpr 512","  .amdhsa_next_free_sgpr 100","  .amdhsa_accum_offset 256",
 "  .amdhsa_group_segment_fixed_size 0","  .amdhsa_kernarg_size 56","  .amdhsa_user_sgpr_count 2","  .amdhsa_user_sgpr_kernarg_segment_ptr 1",
 "  .amdhsa_system_sgpr_workgroup_id_x 1",".end_amdhsa_kernel"]
open(sys.argv[1],'w').write("\n".join(out)+"\n")
bad=0
bad+=hz.check(entry+pool0+pz+pool1+pool+go+pas,'pool')
bad+=hz.check(entry+wp0+wp+wj+kp+pj+wr_+arr+poll+go+pas,'kpath')
bad+=hz.check(entry+wp0+wp+wj+vp+pj+wr_+arr,'vpath')
for q in range(3):
    bad+=hz.check(pas+flat(B[q][2:])+["s_cbranch x"]+flat(B[q])+["s_cbranch x"]+T[q]+epi+ok+fb+fbl+fbl+fb2+pas,f'main{q}')
print("hazards:",bad)
```
